```python
import torch

def _softmax(x, axis=-1):
    return torch.softmax(x, dim=axis)
def _gelu(x):
    return torch.nn.functional.gelu(x, approximate="tanh")
def _silu(x):
    return torch.nn.functional.silu(x)
def _sigmoid(x):
    return torch.sigmoid(x)
def _layernorm(x, axis=-1, eps=1e-5):
    m = x.mean(dim=axis, keepdim=True)
    v = x.var(dim=axis, keepdim=True, unbiased=False)
    return (x - m) / torch.sqrt(v + eps)
def _scatter_add(tgt, idx, src, axis=0):
    return tgt.clone().index_add_(axis, idx, src)
def _segment_sum(src, seg, n):
    out = torch.zeros((n,) + src.shape[1:], dtype=src.dtype)
    return out.index_add_(0, seg, src)
def _pad(x, pw):
    flat = tuple(v for pair in reversed(pw) for v in pair)
    return torch.nn.functional.pad(x, flat)

kernel_name = 'gated_mix__sliding_block__linear_kernel_hedgehog__prompt'

def setup_inputs():

    _w = (lambda a: (lambda t: t.to(torch.bfloat16) if t.is_floating_point() else t)(torch.as_tensor(a)))
    def _A_setup():
        B, S, D = 1, 2048, 576
        return {
            "x": _w((lambda *s: torch.randn(*s, dtype=torch.bfloat16) * 0.05)(B, S, D)),
            "wqkv": _w((lambda *s: torch.randn(*s, dtype=torch.bfloat16) * 0.8)(D, 3 * D)),
            "wo": _w((lambda *s: torch.randn(*s, dtype=torch.bfloat16) * 0.05)(D, D)),
        }
    _A_in = _A_setup()

    def _B_setup():
        B, S, D, H = 1, 2048, 576, 32
        Dh = D // H
        return {
            "x": _w((lambda *s: torch.randn(*s, dtype=torch.bfloat16) * 0.05)(B, S, D)),
            "wqkv": _w((lambda *s: torch.randn(*s, dtype=torch.bfloat16) * 1.6)(D, 3 * D)),
            "w_phi": _w((lambda *s: torch.randn(*s, dtype=torch.bfloat16) * 1.6)(H, Dh, Dh) * (Dh ** -0.5)),
            "wo": _w((lambda *s: torch.randn(*s, dtype=torch.bfloat16) * 0.1)(D, D)),
        }
    _B_in = _B_setup()

    return {
        "A_x": _A_in["x"],
        "A_wqkv": _A_in["wqkv"],
        "A_wo": _A_in["wo"],
        "B_x": _B_in["x"],
        "B_wqkv": _B_in["wqkv"],
        "B_w_phi": _B_in["w_phi"],
        "B_wo": _B_in["wo"],
        "gate_w": _w((lambda *s: torch.randn(*s, dtype=torch.bfloat16) * 0.05)(576) * 16.0),
    }

def reference(A_x, A_wqkv, A_wo, B_x, B_wqkv, B_w_phi, B_wo, gate_w):
    def _A_ref(x, wqkv, wo):
        B, S, D = x.shape
        H = 32; Dh = D // H; W = 256
        qkv = (lambda x, *d: x.permute(*d))((x @ wqkv).reshape(B, S, 3, H, Dh), 2, 0, 3, 1, 4)
        q, k, v = qkv[0], qkv[1], qkv[2]
        scores = torch.einsum("bhqd,bhkd->bhqk", q, k) * (Dh ** -0.5)
        idx = torch.arange(S)
        mask = (idx[:, None] - idx[None, :] >= 0) & (idx[:, None] - idx[None, :] < W)
        scores = torch.where(mask[None, None], scores, -1e9)
        p = _softmax(scores, axis=-1)
        o = torch.einsum("bhqk,bhkd->bhqd", p, v)
        return (lambda x, *d: x.permute(*d))(o, 0, 2, 1, 3).reshape(B, S, D) @ wo

    def _B_ref(x, wqkv, w_phi, wo):
        B, S, D = x.shape
        H = 32; Dh = D // H
        qkv = (lambda x, *d: x.permute(*d))((x @ wqkv).reshape(B, S, 3, H, Dh), 2, 0, 3, 1, 4)
        q, k, v = qkv[0], qkv[1], qkv[2]
        pq = torch.einsum("bhsd,hdf->bhsf", q, w_phi)
        pk = torch.einsum("bhsd,hdf->bhsf", k, w_phi)
        phi_q = torch.concatenate([_softmax(pq, axis=-1), _softmax(-pq, axis=-1)], axis=-1)
        phi_k = torch.concatenate([_softmax(pk, axis=-1), _softmax(-pk, axis=-1)], axis=-1)
        kv = torch.einsum("bhsf,bhsd->bhfd", phi_k, v)
        z  = torch.einsum("bhsf->bhf", phi_k)
        num = torch.einsum("bhqf,bhfd->bhqd", phi_q, kv)
        den = torch.einsum("bhqf,bhf->bhq", phi_q, z)[..., None] + 1e-6
        o = num / den
        return (lambda x, *d: x.permute(*d))(o, 0, 2, 1, 3).reshape(B, S, D) @ wo

    x = A_x
    g = _sigmoid((x * gate_w).sum(-1, keepdims=True))
    a = _A_ref(x, A_wqkv, A_wo)
    b = _B_ref(x, B_wqkv, B_w_phi, B_wo)
    return g * a + (1 - g) * b
```

```python
import re

TRANS = ('v_exp_f32', 'v_log_f32', 'v_rcp_f32', 'v_rsq_f32', 'v_sqrt_f32', 'v_sin_f32', 'v_cos_f32')

def regs_of(tok):
    tok = tok.strip()
    tok = tok.lstrip('-')
    if tok.startswith('abs(') or tok.startswith('|'):
        tok = tok.replace('abs(', '').replace(')', '').replace('|', '')
    m = re.fullmatch(r'([vas])(\d+)', tok)
    if m: return [(m.group(1), int(m.group(2)))]
    m = re.fullmatch(r'([vas])\[(\d+):(\d+)\]', tok)
    if m: return [(m.group(1), i) for i in range(int(m.group(2)), int(m.group(3)) + 1)]
    if tok == 'vcc': return [('s', 'vcc')]
    if tok == 'exec': return [('s', 'exec')]
    if tok == 'm0': return [('s', 'm0')]
    return []

def split_ops(s):
    out = []; depth = 0; cur = ''
    for ch in s:
        if ch == '[': depth += 1
        if ch == ']': depth -= 1
        if ch == ',' and depth == 0:
            out.append(cur.strip()); cur = ''
        else: cur += ch
    if cur.strip(): out.append(cur.strip())
    return out

class Asm:
    def __init__(self):
        self.lines = []
        self.reset_state()
        self.nops_inserted = 0
    def reset_state(self):
        self.t = 0
        self.w_valu = {}
        self.w_trans = {}
        self.w_mfma = {}
        self.r_mfmaC = {}
        self.w_sgpr_valu = {}
        self.w_m0 = -100
        self.st_data = {}
        self.w_exec_valu = -100
        self.lg_issued = 0; self.lg_done = 0
        self.vm_issued = 0; self.vm_done = 0
    def raw(self, s): self.lines.append(s)
    def comment(self, s): self.lines.append('; ' + s)
    def label(self, name, flush=True):
        self.lines.append(name + ':')
    def flush_hazards(self):
        need = 0
        for r, (t, p, _f) in self.w_mfma.items(): need = max(need, t + {2:5,4:8,8:12,16:20}[p] + 1 - self.t)
        for r, t in self.w_valu.items(): need = max(need, t + 2 + 1 - self.t)
        for r, t in self.w_sgpr_valu.items(): need = max(need, t + 5 + 1 - self.t)
        self._nop(need)
    def _nop(self, n):
        while n > 0:
            k = min(n, 16)
            self.lines.append(f's_nop {k-1}')
            self.t += k; n -= k; self.nops_inserted += k
    def text(self): return '\n'.join(self.lines) + '\n'
    def wait_lg(self, tok):
        if tok is None or tok < self.lg_done: return
        n = self.lg_issued - tok - 1
        n = min(n, 15)
        self.i(f's_waitcnt lgkmcnt({n})')
    def wait_vm(self, tok):
        if tok is None or tok < self.vm_done: return
        n = self.vm_issued - tok - 1
        n = min(n, 63)
        self.i(f's_waitcnt vmcnt({n})')
    def last_vm(self): return self.vm_issued - 1
    def last_lg(self): return self.lg_issued - 1
    def i(self, s):
        s = s.strip()
        body = s.split(';')[0].strip()
        parts = body.split(None, 1)
        op = parts[0]
        rest = parts[1] if len(parts) > 1 else ''
        if op == 's_nop':
            self.lines.append(s); self.t += int(rest) + 1; return None
        if op == 's_waitcnt':
            m = re.search(r'lgkmcnt\((\d+)\)', rest)
            if m: self.lg_done = max(self.lg_done, self.lg_issued - int(m.group(1)))
            m = re.search(r'vmcnt\((\d+)\)', rest)
            if m: self.vm_done = max(self.vm_done, self.vm_issued - int(m.group(1)))
            self.lines.append(s); self.t += 1; return None
        ops = split_ops(rest)
        toks = []
        for o in ops:
            w = o.split()
            toks.append(w[0] if w else '')
        is_mfma = op.startswith('v_mfma')
        is_valu = op.startswith('v_') and not is_mfma
        is_ds = op.startswith('ds_')
        is_vmem = op.startswith('buffer_') or op.startswith('global_')
        is_lds_dma = is_vmem and (re.search(r'\blds\b', rest) is not None or 'load_lds' in op)
        is_store = is_vmem and ('store' in op or ('atomic' in op))
        dst = []; src = []
        if is_mfma:
            dst = regs_of(toks[0]); A = regs_of(toks[1]); B = regs_of(toks[2]); C = regs_of(toks[3])
            src = A + B + C
        elif is_valu:
            if op.startswith('v_permlane32_swap') or op.startswith('v_permlane16_swap'):
                dst = regs_of(toks[0]) + regs_of(toks[1]); src = list(dst)
            elif op.startswith('v_cmp'):
                dst = regs_of(toks[0]); src = sum((regs_of(x) for x in toks[1:]), [])
                if op.startswith('v_cmpx'): dst += [('s', 'exec')]
            else:
                dst = regs_of(toks[0]); k = 1
                if op.startswith(('v_add_co', 'v_sub_co', 'v_addc_co', 'v_subb_co', 'v_mad_u64', 'v_div_scale')):
                    dst += regs_of(toks[1]); k = 2
                src = sum((regs_of(x) for x in toks[k:]), [])
                if op.startswith(('v_fmac', 'v_dot2c', 'v_pk_fmac')) or 'dst_unused:UNUSED_PRESERVE' in rest: src += regs_of(toks[0])
        elif is_ds:
            if op.startswith(('ds_read', 'ds_bpermute', 'ds_permute', 'ds_swizzle')):
                dst = regs_of(toks[0]); src = sum((regs_of(x) for x in toks[1:]), [])
            else:
                src = sum((regs_of(x) for x in toks), [])
        elif is_vmem:
            if is_lds_dma or is_store:
                src = sum((regs_of(x) for x in toks), [])
                if 'atomic' in op and re.search(r'\bsc0\b', rest): dst = regs_of(toks[0])
            else:
                dst = regs_of(toks[0]); src = sum((regs_of(x) for x in toks[1:]), [])
                if 'd16' in op: src += dst
        else:
            if op.startswith(('s_cmp', 's_cbranch', 's_branch', 's_barrier', 's_endpgm', 's_setprio', 's_sleep')):
                src = sum((regs_of(x) for x in toks), [])
            else:
                dst = regs_of(toks[0]) if toks else []
                src = sum((regs_of(x) for x in toks[1:]), [])
                if 'saveexec' in op: dst += [('s', 'exec')]
        need = 0
        def req(t0, ws):
            nonlocal need
            need = max(need, t0 + ws + 1 - self.t)
        vsrc = [r for r in src if r[0] in 'va']
        vdst = [r for r in dst if r[0] in 'va']
        ssrc = [r for r in src if r[0] == 's']
        W = {2:5, 4:8, 8:12, 16:20}
        if is_mfma:
            passes = 8 if '32x32' in op else 4
            for r in src:
                if r in self.w_valu: req(self.w_valu[r], 2)
            for r in A + B:
                if r in self.w_mfma: req(self.w_mfma[r][0], W[self.w_mfma[r][1]])
            for r in C:
                if r in self.w_mfma:
                    t0, p, full = self.w_mfma[r][0], self.w_mfma[r][1], self.w_mfma[r][2]
                    if not (full == tuple(C) and p == passes): req(t0, {2:4,4:6,8:10,16:18}[p])
            for r in dst:
                if r in self.w_mfma and r not in C:
                    t0, p, full = self.w_mfma[r]
                    if full != tuple(dst): req(t0, {2:4,4:6,8:10,16:18}[p])
            req(self.w_exec_valu, 4)
        else:
            if is_valu or is_ds or is_vmem:
                for r in vsrc + vdst:
                    if r in self.w_mfma: req(self.w_mfma[r][0], W[self.w_mfma[r][1]])
            if is_valu:
                for r in vdst:
                    if r in self.r_mfmaC: req(self.r_mfmaC[r][0], {2:1,4:3,8:7,16:15}[self.r_mfmaC[r][1]])
                    if r in self.st_data: req(self.st_data[r], 2)
                if op not in TRANS:
                    for r in vsrc:
                        if r in self.w_trans: req(self.w_trans[r], 1)
                if op.startswith('v_permlane'):
                    for r in vsrc:
                        if r in self.w_valu: req(self.w_valu[r], 2)
                    req(self.w_exec_valu, 4)
                if op.startswith(('v_readfirstlane', 'v_readlane')):
                    for r in vsrc:
                        if r in self.w_valu: req(self.w_valu[r], 1)
                    req(self.w_exec_valu, 4)
                if 'dpp' in rest or 'row_' in rest or 'quad_perm' in rest:
                    for r in vsrc:
                        if r in self.w_valu: req(self.w_valu[r], 2)
                for r in ssrc:
                    if r in self.w_sgpr_valu: req(self.w_sgpr_valu[r], 2)
            if is_ds or is_vmem:
                for r in vdst:
                    if r in self.st_data: req(self.st_data[r], 1)
                for r in vsrc:
                    if r in self.w_trans: req(self.w_trans[r], 1)
            if is_vmem:
                for r in ssrc:
                    if r in self.w_sgpr_valu: req(self.w_sgpr_valu[r], 5)
                if is_lds_dma: req(self.w_m0, 1)
            if not (is_valu or is_ds or is_vmem):
                for r in ssrc:
                    if r in self.w_sgpr_valu: req(self.w_sgpr_valu[r], 1)
        self._nop(need)
        self.lines.append(s)
        t = self.t
        if is_mfma:
            for r in dst:
                self.w_mfma[r] = (t, passes, tuple(dst)); self.w_valu.pop(r, None); self.w_trans.pop(r, None)
            for r in C: self.r_mfmaC[r] = (t, passes)
        elif is_valu:
            for r in dst:
                if r[0] in 'va':
                    self.w_valu[r] = t; self.w_mfma.pop(r, None)
                    if op in TRANS: self.w_trans[r] = t
                    else: self.w_trans.pop(r, None)
                else:
                    self.w_sgpr_valu[r] = t
                    if r == ('s', 'exec'): self.w_exec_valu = t
        else:
            for r in dst:
                if r == ('s', 'm0'): self.w_m0 = t
                if r[0] == 's': self.w_sgpr_valu.pop(r, None)
                if r[0] in 'va':
                    self.w_valu.pop(r, None); self.w_mfma.pop(r, None); self.w_trans.pop(r, None)
            if is_store and re.search(r'x[34]', op):
                for r in regs_of(toks[0] if op.startswith('buffer') else toks[1]): self.st_data[r] = t
        self.t += 1
        tok = None
        if is_ds:
            tok = self.lg_issued; self.lg_issued += 1
        elif is_vmem:
            tok = self.vm_issued; self.vm_issued += 1
        elif op.startswith(('s_load', 's_memtime', 's_memrealtime', 's_buffer_load')):
            self.lg_issued += 2
        return tok
    def many(self, txt):
        for l in txt.strip().split('\n'):
            l = l.strip()
            if not l or l.startswith(';'): continue
            if l.endswith(':'): self.label(l[:-1])
            else: self.i(l)

def vr(b, n=1):
    return f'v{b}' if n == 1 else f'v[{b}:{b+n-1}]'
def ar(b, n=1):
    return f'a{b}' if n == 1 else f'a[{b}:{b+n-1}]'
def sr(b, n=1):
    return f's{b}' if n == 1 else f's[{b}:{b+n-1}]'

class RegAlloc:
    def __init__(self, start, limit):
        self.n = start; self.limit = limit; self.hi = start
    def get(self, cnt=1, align=1):
        self.n = (self.n + align - 1) // align * align
        b = self.n; self.n += cnt
        assert self.n <= self.limit, f'out of registers {self.n} > {self.limit}'
        self.hi = max(self.hi, self.n)
        return b
    def mark(self): return self.n
    def release(self, m): self.n = m

def kd(name, vgpr, sgpr=96, accum=None):
    if accum is None: accum = min(256, (vgpr + 3) // 4 * 4)
    return f'''.section .rodata,"a"
.p2align 6
.amdhsa_kernel {name}
  .amdhsa_next_free_vgpr {vgpr}
  .amdhsa_next_free_sgpr {sgpr}
  .amdhsa_accum_offset {accum}
  .amdhsa_group_segment_fixed_size 0
  .amdhsa_kernarg_size 88
  .amdhsa_user_sgpr_count 2
  .amdhsa_user_sgpr_kernarg_segment_ptr 1
  .amdhsa_system_sgpr_workgroup_id_x 1
.end_amdhsa_kernel
.text
'''
```

```python
from asmlib import *
from layout import *

ST = ''

def srd(a, d, lo, hi, nrec):
    if lo != d: a.i(f's_mov_b32 s{d}, s{lo}')
    if hi != d + 1: a.i(f's_mov_b32 s{d+1}, s{hi}')
    a.i(f's_mov_b32 s{d+2}, {nrec}')
    a.i(f's_mov_b32 s{d+3}, 0x20000')

def add64(a, d, lo, off):
    a.i(f's_add_u32 s{d}, s{lo}, {off}')
    a.i(f's_addc_u32 s{d+1}, s{lo+1}, 0')

def hedgehog(a, jobs, sC, T):
    E = [T + 26 * k for k in range(len(jobs))]
    M = [e + 18 for e in E]
    S = [e + 20 for e in E]
    U = [e + 22 for e in E]
    n = len(jobs)
    for k, (p, o) in enumerate(jobs):
        a.i(f'v_max3_f32 v{M[k]}, v{p}, v{p+1}, v{p+2}')
        a.i(f'v_max3_f32 v{M[k]+1}, -v{p}, -v{p+1}, -v{p+2}')
        for j in (3, 5, 7):
            a.i(f'v_max3_f32 v{M[k]}, v{M[k]}, v{p+j}, v{p+j+1}')
            a.i(f'v_max3_f32 v{M[k]+1}, v{M[k]+1}, -v{p+j}, -v{p+j+1}')
    for k in range(n): a.i(f'v_permlane32_swap_b32 v{M[k]}, v{M[k]+1}')
    for k in range(n): a.i(f'v_max_f32 v{M[k]}, v{M[k]}, v{M[k]+1}')
    for k in range(n): a.i(f'v_mul_f32 v{M[k]}, s{sC+1}, v{M[k]}')
    for k in range(n): a.i(f'v_mov_b32 v{M[k]+1}, v{M[k]}')
    for k in range(n): a.i(f'v_permlane32_swap_b32 v{M[k]}, v{M[k]+1}')
    for k, (p, o) in enumerate(jobs):
        for j in range(9):
            pj = p + j
            pe = pj & ~1
            sel = pj & 1
            a.i(f'v_pk_fma_f32 v[{E[k]+2*j}:{E[k]+2*j+1}], v[{pe}:{pe+1}], s[{sC}:{sC+1}], v[{M[k]}:{M[k]+1}] op_sel:[{sel},0,0] op_sel_hi:[{sel},1,1]')
        for j in range(18):
            a.i(f'v_exp_f32 v{E[k]+j}, v{E[k]+j}')
    for k in range(n):
        e = E[k]
        a.i(f'v_pk_add_f32 v[{S[k]}:{S[k]+1}], v[{e}:{e+1}], v[{e+2}:{e+3}]')
        a.i(f'v_pk_add_f32 v[{U[k]}:{U[k]+1}], v[{e+4}:{e+5}], v[{e+6}:{e+7}]')
        a.i(f'v_pk_add_f32 v[{U[k]+2}:{U[k]+3}], v[{e+8}:{e+9}], v[{e+10}:{e+11}]')
        a.i(f'v_pk_add_f32 v[{S[k]}:{S[k]+1}], v[{S[k]}:{S[k]+1}], v[{e+12}:{e+13}]')
        a.i(f'v_pk_add_f32 v[{U[k]}:{U[k]+1}], v[{U[k]}:{U[k]+1}], v[{e+14}:{e+15}]')
        a.i(f'v_pk_add_f32 v[{U[k]+2}:{U[k]+3}], v[{U[k]+2}:{U[k]+3}], v[{e+16}:{e+17}]')
        a.i(f'v_pk_add_f32 v[{S[k]}:{S[k]+1}], v[{S[k]}:{S[k]+1}], v[{U[k]}:{U[k]+1}]')
        a.i(f'v_pk_add_f32 v[{S[k]}:{S[k]+1}], v[{S[k]}:{S[k]+1}], v[{U[k]+2}:{U[k]+3}]')
    for k in range(n): a.i(f'v_permlane32_swap_b32 v{S[k]}, v{S[k]+1}')
    for k in range(n): a.i(f'v_add_f32 v{S[k]}, v{S[k]}, v{S[k]+1}')
    for k in range(n): a.i(f'v_rcp_f32 v{S[k]}, v{S[k]}')
    for k in range(n): a.i(f'v_mov_b32 v{S[k]+1}, v{S[k]}')
    for k in range(n): a.i(f'v_permlane32_swap_b32 v{S[k]}, v{S[k]+1}')
    for k, (p, o) in enumerate(jobs):
        for j in range(9):
            e = E[k] + 2 * j
            a.i(f'v_pk_mul_f32 v[{e}:{e+1}], v[{e}:{e+1}], v[{S[k]}:{S[k]+1}]')
        for j in range(9):
            e = E[k] + 2 * j
            a.i(f'v_cvt_pk_bf16_f32 v{o+j}, v{e}, v{e+1}')

def wphi_addr(a, vP, vP2, vl, t0, t1, sOOB):
    a.i(f'v_bfe_u32 v{t0}, v{vl}, 3, 2')
    a.i(f'v_and_b32 v{t1}, 3, v{vl}')
    a.i(f'v_lshl_add_u32 v{t0}, v{t0}, 2, v{t1}')
    a.i(f'v_cmp_gt_u32 vcc, 9, v{t0}')
    a.i(f'v_bfe_u32 v{t1}, v{vl}, 2, 1')
    a.i(f'v_mad_u32_u24 v{t0}, v{t1}, 9, v{t0}')
    a.i(f'v_lshlrev_b32 v{t0}, 1, v{t0}')
    a.i(f'v_mov_b32 v{vP2}, s{sOOB}')
    a.i(f'v_cndmask_b32 v{t0}, v{vP2}, v{t0}, vcc')
    a.i(f'v_lshrrev_b32 v{t1}, 5, v{vl}')
    a.i(f'v_mul_u32_u24 v{vP}, 288, v{t1}')
    a.i(f'v_add_u32 v{vP}, v{vP}, v{t0}')
    a.i(f'v_cmp_gt_u32 vcc, 32, v{vl}')
    a.i(f'v_add_u32 v{t0}, 576, v{t0}')
    a.i(f'v_cndmask_b32 v{vP2}, v{vP2}, v{t0}, vcc')

def wphi_load(a, F1, F2, HI, vP, vP2, sP, sOff):
    for j in range(8):
        if j & 1: a.i(f'buffer_load_short_d16_hi v{HI+j//2}, v{vP}, s[{sP}:{sP+3}], s{sOff} offen offset:{36*j}')
        else: a.i(f'buffer_load_ushort v{F1+j//2}, v{vP}, s[{sP}:{sP+3}], s{sOff} offen offset:{36*j}')
    a.i(f'buffer_load_ushort v{F2}, v{vP2}, s[{sP}:{sP+3}], s{sOff} offen')
    return a.i(f'buffer_load_short_d16_hi v{HI+4}, v{vP2}, s[{sP}:{sP+3}], s{sOff} offen offset:36')

def wphi_merge(a, F1, F2, HI, sMask):
    for j in range(4): a.i(f'v_and_or_b32 v{F1+j}, v{HI+j}, s{sMask}, v{F1+j}')
    a.i(f'v_and_or_b32 v{F2}, v{HI+4}, s{sMask}, v{F2}')

XB = [0, 16384, 32768]
WB0 = 49152
sX, sW, sO, sP, sG = 16, 20, 24, 28, 32
sWave, sRow, sC_, sHH = 36, 37, 38, 39
sT0, sT1, sT2, sT3 = 40, 41, 42, 43
sSoW, sSoX, sMW, sMX = 44, 45, 46, 47
sK = 48
sOOB = 50

def mainloop(a, NT, gate, RS, nW, vWoff, vXoff, vWb, vXr, vG, ACC, POOL, XF, GOFS, extra_after_prologue=None, D=7, P=8):
    WBUF = 64 * RS
    NM = NT + (1 if gate else 0)
    def dma_list(st):
        b = st % 3
        L = []
        for n in range(nW): L.append(('W', n, WB0 + b * WBUF + n * 1024))
        for n in range(4): L.append(('X', n, XB[b] + n * 1024))
        return L[nW:nW+2] + L[:nW//2] + L[nW+2:] + L[nW//2:nW]
    last_dma = {}
    def dma_setup(st):
        a.i(f's_mov_b32 s{sSoW}, {st * 64 * 3456}')
        a.i(f's_mov_b32 s{sSoX}, {st * 128}')
    def dma(st, item):
        k, n, dst = item
        if k == 'W':
            a.i(f's_add_u32 m0, s{sMW}, {dst}')
            last_dma[st] = a.i(f'buffer_load_dwordx4 v{vWoff+n}, s[{sW}:{sW+3}], s{sSoW} offen lds')
        else:
            a.i(f's_add_u32 m0, s{sMX}, {dst}')
            last_dma[st] = a.i(f'buffer_load_dwordx4 v{vXoff+n}, s[{sX}:{sX+3}], s{sSoX} offen lds')
    for st in range(3):
        dma_setup(st)
        for it in dma_list(st): dma(st, it)
        if st == 0 and extra_after_prologue: extra_after_prologue(0)
    if extra_after_prologue: extra_after_prologue(1)
    total = 36 * NM
    tokW = {}; tokX = {}
    def issue_reads(q):
        if q >= total: return
        step, m = divmod(q, NM)
        st, s = divmod(step, 4)
        b = st % 3
        if m == 0:
            xf = XF + 4 * (step & 1)
            tokX[step] = a.i(f'ds_read_b128 v[{xf}:{xf+3}], v{vXr+s} offset:{XB[b]}')
        f = POOL + 4 * (q % P)
        if m < NT:
            for rd in range(2):
                tokW[q] = a.i(f'ds_read_b64_tr_b16 v[{f+2*rd}:{f+2*rd+1}], v{vWb+b} offset:{(16*s+4*rd)*RS + 32*m}')
        else:
            tokW[q] = a.i(f'ds_read_b128 v[{f}:{f+3}], v{vG} offset:{128*st + 32*s}')
    a.wait_vm(last_dma[0])
    a.i('s_barrier')
    for q in range(D): issue_reads(q)
    for q in range(total):
        step, m = divmod(q, NM)
        st, s = divmod(step, 4)
        ql = q - st * 4 * NM
        a.wait_lg(max(tokW[q], tokX[step]))
        f = POOL + 4 * (q % P)
        xf = XF + 4 * (step & 1)
        acc = ACC + 16 * m
        c = '0' if step == 0 else f'v[{acc}:{acc+15}]'
        a.i(f'v_mfma_f32_32x32x16_bf16 v[{acc}:{acc+15}], v[{f}:{f+3}], v[{xf}:{xf+3}], {c}')
        b1 = 4 * NM - D
        if ql == b1 and st < 8:
            a.wait_vm(last_dma[st + 1])
            a.i('s_barrier')
        issue_reads(q + D)
        if 1 <= st <= 6:
            L = dma_list(st + 2)
            if ql == 0: dma_setup(st + 2)
            for k, it in enumerate(L):
                if k * (b1 - 1) // len(L) == ql: dma(st + 2, it)
        if ql == 4 * NM - 1 and st + 3 <= 8:
            a.i('s_barrier')

def gen_k1(name='k1_kernel'):
    a = Asm()
    a.raw(f'.globl {name}\n.p2align 8\n.type {name},@function\n{name}:')
    a.many(f'''
    s_cmp_ge_u32 s2, 256
    s_cbranch_scc1 L_{name}_end
    s_load_dwordx4 s[4:7], s[0:1], 0
    s_load_dwordx4 s[8:11], s[0:1], 32
    s_load_dwordx2 s[12:13], s[0:1], 56
    s_load_dwordx2 s[14:15], s[0:1], 80
    v_lshrrev_b32 v1, 6, v0
    v_and_b32 v0, 63, v0
    s_and_b32 s{sT0}, s2, 7
    v_readfirstlane_b32 s{sWave}, v1
    s_lshr_b32 s{sT1}, s2, 3
    s_and_b32 s{sHH}, s{sT0}, 1
    s_lshr_b32 s{sT0}, s{sT0}, 1
    s_lshl_b32 s{sT0}, s{sT0}, 2
    s_and_b32 s{sRow}, s{sT1}, 3
    s_add_u32 s{sRow}, s{sRow}, s{sT0}
    s_bfe_u32 s{sC_}, s{sT1}, 0x20002
    s_mov_b32 s{sOOB}, {OOB}
    s_lshl_b32 s{sMX}, s{sWave}, 12
    ''')
    R = RegAlloc(1, 256)
    vXoff = R.get(4); vXr = R.get(4); vWb = R.get(3); vG = R.get(1)
    vWoff = R.get(9)
    t = [R.get(1) for _ in range(6)]
    a.many(f'''
    v_lshrrev_b32 v{t[0]}, 3, v0
    v_lshrrev_b32 v{t[1]}, 4, v0
    v_and_b32 v{t[2]}, 7, v0
    s_lshl_b32 s{sT2}, s{sWave}, 5
    v_add_u32 v{t[0]}, s{sT2}, v{t[0]}
    v_mul_u32_u24 v{t[0]}, 1152, v{t[0]}
    v_xor_b32 v{t[3]}, v{t[2]}, v{t[1]}
    v_lshl_add_u32 v{vXoff}, v{t[3]}, 4, v{t[0]}
    v_xor_b32 v{t[3]}, 4, v{t[3]}
    v_lshl_add_u32 v{vXoff+1}, v{t[3]}, 4, v{t[0]}
    v_add_u32 v{vXoff+1}, {8*1152}, v{vXoff+1}
    v_add_u32 v{vXoff+2}, {16*1152}, v{vXoff}
    v_add_u32 v{vXoff+3}, {16*1152}, v{vXoff+1}
    v_and_b32 v{t[0]}, 31, v0
    v_lshrrev_b32 v{t[1]}, 5, v0
    v_bfe_u32 v{t[2]}, v0, 1, 3
    v_xor_b32 v{t[2]}, v{t[2]}, v{t[1]}
    v_lshlrev_b32 v{t[0]}, 7, v{t[0]}
    v_add_u32 v{t[0]}, s{sMX}, v{t[0]}
    ''')
    for s in range(4):
        if s == 0: a.i(f'v_lshl_add_u32 v{vXr}, v{t[2]}, 4, v{t[0]}')
        else:
            a.i(f'v_xor_b32 v{t[3]}, {2*s}, v{t[2]}')
            a.i(f'v_lshl_add_u32 v{vXr+s}, v{t[3]}, 4, v{t[0]}')
    vKrow, vH, vA8 = t[3], t[4], t[5]
    a.many(f'''
    v_bfe_u32 v{vKrow}, v0, 2, 2
    v_lshl_add_u32 v{vKrow}, v{t[1]}, 3, v{vKrow}
    v_and_b32 v{vH}, 1, v0
    v_bfe_u32 v{vA8}, v0, 4, 1
    v_bfe_u32 v{t[0]}, v0, 1, 1
    v_lshl_add_u32 v{vA8}, v{vA8}, 1, v{t[0]}
    v_lshlrev_b32 v{vA8}, 3, v{vA8}
    v_lshlrev_b32 v{vG}, 4, v{t[1]}
    s_waitcnt lgkmcnt(0)
    s_mul_i32 s{sT2}, s{sRow}, {128*1152}
    ''')
    add64(a, sX, 4, f's{sT2}')
    srd(a, sX, sX, sX+1, 128*1152)
    a.i(f's_cmp_ge_u32 s{sT1}, 16')
    a.i(f's_cbranch_scc1 L_{name}_V')
    mark = R.mark()
    RS = 576
    a.many(f'''
    s_mul_i32 s{sT2}, s{sC_}, 1152
    s_cmp_eq_u32 s{sC_}, 3
    s_cselect_b32 s{sT2}, 0, s{sT2}
    s_cselect_b32 s{sW}, s8, s6
    s_cselect_b32 s{sW+1}, s9, s7
    s_mul_i32 s{sT3}, s{sHH}, 576
    s_add_u32 s{sT2}, s{sT2}, s{sT3}
    s_add_u32 s{sW}, s{sW}, s{sT2}
    s_addc_u32 s{sW+1}, s{sW+1}, 0
    s_sub_u32 s{sW+2}, {576*3456}, s{sT2}
    s_mov_b32 s{sW+3}, 0x20000
    s_mul_i32 s{sMW}, s{sWave}, {9*1024}
    s_mul_i32 s{sT2}, s{sWave}, {9*64}
    v_add_u32 v{t[0]}, s{sT2}, v0
    s_mov_b32 s{sT3}, 3456
    ''')
    for n in range(9):
        a.many(f'''
        v_add_u32 v{t[1]}, {64*n}, v{t[0]}
        v_mul_u32_u24 v{t[2]}, 1821, v{t[1]}
        v_lshrrev_b32 v{t[2]}, 16, v{t[2]}
        v_mul_u32_u24 v{vWoff+n}, 36, v{t[2]}
        v_sub_u32 v{t[1]}, v{t[1]}, v{vWoff+n}
        v_lshlrev_b32 v{t[1]}, 4, v{t[1]}
        v_mad_u32_u24 v{vWoff+n}, v{t[2]}, s{sT3}, v{t[1]}
        ''')
    a.many(f'''
    v_mul_u32_u24 v{t[0]}, {RS}, v{vKrow}
    v_mul_u32_u24 v{t[1]}, 288, v{vH}
    v_add3_u32 v{t[0]}, v{t[0]}, v{t[1]}, v{vA8}
    v_add_u32 v{vWb}, {WB0}, v{t[0]}
    v_add_u32 v{vWb+1}, {WB0 + 64*RS}, v{t[0]}
    v_add_u32 v{vWb+2}, {WB0 + 128*RS}, v{t[0]}
    ''')
    XF = R.get(8, 4); POOL = R.get(32, 4); ACC = R.get(144, 4)
    vo = [R.get(1) for _ in range(3)]
    def extraR(phase):
        if phase != 1: return
        a.many(f'''
        s_cmp_eq_u32 s{sC_}, 1
        s_cselect_b32 s{sT2}, {KA_OFF}, {QA_OFF}
        s_cmp_eq_u32 s{sC_}, 2
        s_cselect_b32 s{sT2}, {VA_OFF}, s{sT2}
        s_mov_b32 s{sT3}, {QK_BLK}
        s_mov_b32 s{sO+2}, {QK_SZ}
        s_cselect_b32 s{sT3}, {V_BLK}, s{sT3}
        s_cselect_b32 s{sO+2}, {VA_SZ}, s{sO+2}
        s_cmp_eq_u32 s{sC_}, 3
        s_cselect_b32 s{sT2}, {QB_OFF}, s{sT2}
        s_add_u32 s{sO}, s14, s{sT2}
        s_addc_u32 s{sO+1}, s15, 0
        s_mov_b32 s{sO+3}, 0x20000
        s_lshl_b32 s{sT0}, s{sHH}, 10
        s_lshl_b32 s{sT1}, s{sRow}, 2
        s_add_u32 s{sT0}, s{sT0}, s{sT1}
        s_add_u32 s{sT0}, s{sT0}, s{sWave}
        s_mul_i32 s51, s{sT0}, s{sT3}
        s_lshl_b32 s52, s{sT3}, 6
        s_lshl_b32 s{sT3}, s{sT3}, 9
        v_lshrrev_b32 v{t[0]}, 5, v0
        v_mul_lo_u32 v{t[0]}, v{t[0]}, s{sT3}
        v_and_b32 v{t[1]}, 31, v0
        v_bfe_u32 v{t[2]}, v0, 2, 1
        v_bfe_u32 v{t[3]}, v0, 3, 1
        v_and_b32 v{t[4]}, 0x13, v0
        v_lshl_add_u32 v{t[4]}, v{t[2]}, 3, v{t[4]}
        v_lshl_add_u32 v{t[4]}, v{t[3]}, 2, v{t[4]}
        s_cmp_eq_u32 s{sC_}, 1
        s_cselect_b64 vcc, -1, 0
        v_cndmask_b32 v{t[4]}, v{t[1]}, v{t[4]}, vcc
        v_lshl_add_u32 v{vo[0]}, v{t[4]}, 4, v{t[0]}
        v_add_u32 v{vo[1]}, 512, v{vo[0]}
        v_lshl_add_u32 v{vo[2]}, v{t[4]}, 2, v{t[0]}
        v_add_u32 v{vo[2]}, 1024, v{vo[2]}
        s_cmp_lg_u32 s{sC_}, 2
        s_cbranch_scc1 L_{name}_nv
        v_xor_b32 v{vo[1]}, 64, v{vo[1]}
        v_xor_b32 v{t[3]}, 1, v{t[3]}
        v_bfe_u32 v{t[2]}, v0, 4, 1
        v_and_b32 v{t[4]}, 7, v0
        v_lshl_add_u32 v{t[4]}, v{t[2]}, 3, v{t[4]}
        v_lshl_add_u32 v{t[4]}, v{t[3]}, 4, v{t[4]}
        v_lshl_add_u32 v{vo[2]}, v{t[4]}, 3, v{t[0]}
        v_add_u32 v{vo[2]}, 1024, v{vo[2]}
        L_{name}_nv:
        s_mov_b32 s{sK}, {f2u(QSCALE)}
        s_mov_b32 s{sK+1}, {f2u(QSCALE)}
        ''')
    mainloop(a, 9, False, RS, 9, vWoff, vXoff, vWb, vXr, vG, ACC, POOL, XF, 0, extraR)
    a.flush_hazards()
    a.i(f's_cmp_lg_u32 s{sC_}, 0')
    a.i(f's_cbranch_scc1 L_{name}_noscale')
    for j in range(72):
        a.i(f'v_pk_mul_f32 v[{ACC+2*j}:{ACC+2*j+1}], v[{ACC+2*j}:{ACC+2*j+1}], s[{sK}:{sK+1}]')
    a.label(f'L_{name}_noscale')
    a.i(f's_cmp_eq_u32 s{sC_}, 2')
    a.i(f's_cbranch_scc1 L_{name}_stv')
    for isv in (0, 1):
        if isv: a.label(f'L_{name}_stv')
        for u in range(8):
            b = ACC + 18 * u
            for j in range(9):
                a.i(f'v_cvt_pk_bf16_f32 v{b+j}, v{b+2*j}, v{b+2*j+1}')
            if isv: a.i(f'v_mov_b32 v{b+9}, 0x3f80')
            a.i(f'buffer_store_dwordx4 v[{b}:{b+3}], v{vo[0]}, s[{sO}:{sO+3}], s51 offen {ST}')
            a.i(f'buffer_store_dwordx4 v[{b+4}:{b+7}], v{vo[1]}, s[{sO}:{sO+3}], s51 offen {ST}')
            if isv: a.i(f'buffer_store_dwordx2 v[{b+8}:{b+9}], v{vo[2]}, s[{sO}:{sO+3}], s51 offen {ST}')
            else: a.i(f'buffer_store_dword v{b+8}, v{vo[2]}, s[{sO}:{sO+3}], s51 offen {ST}')
            if u < 7: a.i(f's_add_u32 s51, s51, s52')
        a.i('s_endpgm')
    hiR = R.hi
    a.label(f'L_{name}_V')
    a.reset_state()
    R.release(mark)
    RS = 320
    GOFS = WB0 + 3 * 64 * RS
    a.many(f'''
    s_lshl_b32 s{sT0}, s{sHH}, 2
    s_add_u32 s{sC_}, s{sC_}, s{sT0}
    s_mul_i32 s{sT2}, s{sC_}, 144
    s_add_u32 s{sT2}, s{sT2}, 1152
    s_add_u32 s{sW}, s8, s{sT2}
    s_addc_u32 s{sW+1}, s9, 0
    s_sub_u32 s{sW+2}, {576*3456}, s{sT2}
    s_mov_b32 s{sW+3}, 0x20000
    s_mul_i32 s{sMW}, s{sWave}, {5*1024}
    s_mul_i32 s{sT2}, s{sWave}, {16*3456}
    s_mov_b32 s{sT3}, 3456
    v_mov_b32 v{vWoff+8}, s{sOOB}
    ''')
    for n in range(5):
        a.many(f'''
        v_add_u32 v{t[1]}, {64*n}, v0
        v_mul_u32_u24 v{t[2]}, 3277, v{t[1]}
        v_lshrrev_b32 v{t[2]}, 16, v{t[2]}
        v_mul_u32_u24 v{t[0]}, 20, v{t[2]}
        v_sub_u32 v{t[1]}, v{t[1]}, v{t[0]}
        v_mul_u32_u24 v{t[2]}, s{sT3}, v{t[2]}
        v_lshl_add_u32 v{t[2]}, v{t[1]}, 4, v{t[2]}
        v_add_u32 v{t[2]}, s{sT2}, v{t[2]}
        v_add_u32 v{t[0]}, {1152-160}, v{t[2]}
        v_cmp_lt_u32 vcc, 9, v{t[1]}
        v_cndmask_b32 v{t[2]}, v{t[2]}, v{t[0]}, vcc
        v_cmp_eq_u32 vcc, 9, v{t[1]}
        v_cndmask_b32 v{t[2]}, v{t[2]}, v{vWoff+8}, vcc
        v_cmp_eq_u32 vcc, 19, v{t[1]}
        v_cndmask_b32 v{vWoff+n}, v{t[2]}, v{vWoff+8}, vcc
        ''')
    a.many(f'''
    v_mul_u32_u24 v{t[0]}, {RS}, v{vKrow}
    v_mul_u32_u24 v{t[1]}, 160, v{vH}
    v_add3_u32 v{t[0]}, v{t[0]}, v{t[1]}, v{vA8}
    v_add_u32 v{vWb}, {WB0}, v{t[0]}
    v_add_u32 v{vWb+1}, {WB0 + 64*RS}, v{t[0]}
    v_add_u32 v{vWb+2}, {WB0 + 128*RS}, v{t[0]}
    v_add_u32 v{vG}, {GOFS}, v{vG}
    ''')
    srd(a, sG, 12, 13, 1152)
    srd(a, sP, 10, 11, 32*648)
    XF = R.get(8, 4); POOL = R.get(32, 4); ACC = R.get(96, 4)
    T = R.get(52, 4); F1 = T; F2 = T + 16
    vP = R.get(1); vP2 = R.get(1)
    def extraV(phase):
        if phase == 0:
            a.i(f'v_lshlrev_b32 v{t[0]}, 4, v0')
            a.i(f's_lshl_b32 s{sT0}, s{sWave}, 10')
            a.i(f's_add_u32 m0, s{sT0}, {GOFS}')
            tok = a.i(f'buffer_load_dwordx4 v{t[0]}, s[{sG}:{sG+3}], s{sT0} offen lds')
            extraV.gtok = tok
            return
        wphi_addr(a, vP, vP2, 0, t[0], t[1], sOOB)
        a.i(f's_mul_i32 s{sT0}, s{sC_}, {4*648}')
        for H in range(4):
            for z in range(1, 4): a.i(f'v_mov_b32 v{F2+4*H+z}, 0')
            extraV.ptok = wphi_load(a, F1+4*H, F2+4*H, T+32+5*H, vP, vP2, sP, sT0)
            if H < 3: a.i(f's_add_u32 s{sT0}, s{sT0}, 648')
        a.wait_vm(extraV.gtok)
    mainloop(a, 5, True, RS, 5, vWoff, vXoff, vWb, vXr, vG, ACC, POOL, XF, GOFS, extraV)
    a.i(f's_mov_b32 s{sK}, {f2u(LOG2E)}')
    a.i(f's_mov_b32 s{sK+1}, {f2u(-LOG2E)}')
    a.i('s_barrier')
    for H in range(4):
        b = ACC + 18 * H
        for j in range(9): a.i(f'v_cvt_pk_bf16_f32 v{b+j}, v{b+2*j}, v{b+2*j+1}')
        a.i(f'v_mov_b32 v{b+9}, 0x3f80')
        a.i(f'v_mov_b32 v{b+10}, 0')
        a.i(f'v_mov_b32 v{b+11}, 0')
    for H in range(4):
        b = ACC + 18 * H
        for j in range(4): a.i(f'v_permlane32_swap_b32 v{b+j}, v{b+4+j}')
    a.wait_vm(extraV.ptok)
    a.i(f's_mov_b32 s{sT0}, 0xffff0000')
    for H in range(4): wphi_merge(a, F1+4*H, F2+4*H, T+32+5*H, sT0)
    gl = t[5]
    a.i(f'v_mul_f32 v{gl}, s{sK+1}, v{ACC+80}')
    Dr = [XF, XF + 16, ACC + 80, R.get(16, 4)]
    for H in range(4):
        b = ACC + 18 * H
        a.i(f'v_mfma_f32_32x32x16_bf16 v[{Dr[H]}:{Dr[H]+15}], v[{F1+4*H}:{F1+4*H+3}], v[{b}:{b+3}], 0')
    for H in range(4):
        b = ACC + 18 * H
        a.i(f'v_mfma_f32_32x32x16_bf16 v[{Dr[H]}:{Dr[H]+15}], v[{F2+4*H}:{F2+4*H+3}], v[{b+8}:{b+11}], v[{Dr[H]}:{Dr[H]+15}]')
    vL = R.get(1); vLV = R.get(1)
    a.many(f'''
    v_exp_f32 v{gl}, v{gl}
    s_lshl_b32 s{sT0}, s{sRow}, 7
    s_lshl_b32 s{sT1}, s{sWave}, 5
    s_add_u32 s{sT0}, s{sT0}, s{sT1}
    s_lshl_b32 s{sT0}, s{sT0}, 2
    s_add_u32 s{sO}, s14, {G_OFF}
    s_addc_u32 s{sO+1}, s15, 0
    s_mov_b32 s{sO+2}, 8192
    s_mov_b32 s{sO+3}, 0x20000
    v_add_f32 v{gl}, 1.0, v{gl}
    v_rcp_f32 v{gl}, v{gl}
    v_and_b32 v{t[0]}, 31, v0
    v_lshlrev_b32 v{t[1]}, 2, v{t[0]}
    buffer_store_dword v{gl}, v{t[1]}, s[{sO}:{sO+3}], s{sT0} offen {ST}
    s_lshl_b32 s{sT1}, s{sWave}, 5
    v_add_u32 v{t[0]}, s{sT1}, v{t[0]}
    v_mul_u32_u24 v{t[0]}, 120, v{t[0]}
    v_lshrrev_b32 v{t[1]}, 5, v0
    v_mad_u32_u24 v{vL}, v{t[1]}, 40, v{t[0]}
    v_lshl_add_u32 v{vLV}, v{t[1]}, 4, v{t[0]}
    ''')
    for H in range(4):
        b = ACC + 18 * H
        o = H * 128 * 120 + 80
        a.i(f'ds_write_b64 v{vLV}, v[{b+4}:{b+5}] offset:{o}')
        a.i(f'ds_write_b64 v{vLV}, v[{b+6}:{b+7}] offset:{o+8}')
    a.i('s_mov_b64 exec, 0xffffffff00000000' if False else 's_mov_b32 exec_lo, 0')
    for H in range(4):
        b = ACC + 18 * H
        a.i(f'ds_write_b64 v{vLV}, v[{b+8}:{b+9}] offset:{H*128*120 + 80 + 16}')
    a.i('s_mov_b32 exec_lo, -1')
    for pair in range(2):
        jobs = [(Dr[2*pair+k], ACC + 18 * (2*pair+k)) for k in range(2)]
        a.wait_lg(a.last_lg())
        hedgehog(a, jobs, sK, T)
        for k in range(2):
            H = 2 * pair + k
            o = ACC + 18 * H
            for j in range(5):
                a.i(f'ds_write_b64 v{vL}, v[{o+2*j}:{o+2*j+1}] offset:{H*128*120 + 8*j}')
    a.many(f'''
    v_bfe_u32 v{t[0]}, v0, 4, 1
    v_bfe_u32 v{t[1]}, v0, 2, 2
    v_lshl_add_u32 v{t[0]}, v{t[0]}, 2, v{t[1]}
    v_lshrrev_b32 v{t[1]}, 5, v0
    v_lshlrev_b32 v{t[1]}, 1, v{t[1]}
    v_lshl_add_u32 v{t[0]}, v{t[0]}, 2, v{t[1]}
    s_lshl_b32 s{sT0}, s{sWave}, 7
    v_add_u32 v{t[0]}, s{sT0}, v{t[0]}
    v_mul_u32_u24 v{t[0]}, 120, v{t[0]}
    v_and_b32 v{t[1]}, 3, v0
    v_lshl_add_u32 v{t[0]}, v{t[1]}, 3, v{t[0]}
    s_lshl_b32 s{sT0}, s{sC_}, 2
    s_add_u32 s{sT0}, s{sT0}, s{sWave}
    s_lshl_b32 s{sT0}, s{sT0}, 4
    s_add_u32 s{sT0}, s{sT0}, s{sRow}
    s_mul_i32 s{sT0}, s{sT0}, {KVP_BLK}
    s_add_u32 s{sT0}, s{sT0}, {KVP_OFF}
    s_add_u32 s{sO}, s14, s{sT0}
    s_addc_u32 s{sO+1}, s15, 0
    s_mov_b32 s{sO+2}, {KVP_BLK}
    v_and_b32 v{t[1]}, 15, v0
    v_mul_u32_u24 v{t[1]}, 160, v{t[1]}
    v_lshrrev_b32 v{t[2]}, 4, v0
    v_lshl_add_u32 v{t[1]}, v{t[2]}, 4, v{t[1]}
    v_mov_b32 v{t[2]}, s{sOOB}
    v_cmp_gt_u32 vcc, 32, v0
    v_cndmask_b32 v{t[2]}, v{t[2]}, v{t[1]}, vcc
    s_waitcnt lgkmcnt(0)
    s_barrier
    ''')
    FR = T
    KV = XF
    toks = {}
    def rd_step(ts):
        fb = FR + 20 * (ts & 1)
        for k in range(5):
            co = 32 * k if k < 3 else 80 + 32 * (k - 3)
            for rd in range(2):
                toks[ts] = a.i(f'ds_read_b64_tr_b16 v[{fb+4*k+2*rd}:{fb+4*k+2*rd+1}], v{t[0]} offset:{(32*ts+rd)*120 + co}')
    rd_step(0); rd_step(1)
    for ts in range(4):
        a.wait_lg(toks[ts])
        fb = FR + 20 * (ts & 1)
        for ft in range(3):
            for dt in range(2):
                d = KV + 4 * (2 * ft + dt)
                c = '0' if ts == 0 else f'v[{d}:{d+3}]'
                a.i(f'v_mfma_f32_16x16x32_bf16 v[{d}:{d+3}], v[{fb+4*ft}:{fb+4*ft+3}], v[{fb+12+4*dt}:{fb+15+4*dt}], {c}')
        if ts + 2 < 4: rd_step(ts + 2)
    for ft in range(3):
        for dt in range(2):
            d = KV + 4 * (2 * ft + dt)
            va = t[2] if ft == 2 else t[1]
            a.i(f'buffer_store_dwordx4 v[{d}:{d+3}], v{va}, s[{sO}:{sO+3}], 0 offen offset:{dt*2560 + ft*64} {ST}')
    a.label(f'L_{name}_end')
    a.i('s_endpgm')
    hi = max(hiR, R.hi)
    return a.text() + kd(name, hi), 159744, hi

if __name__ == '__main__':
    for x in range(2304): assert (x * 1821) >> 16 == x // 36
    for x in range(320): assert (x * 3277) >> 16 == x // 20
    txt, lds, hi = gen_k1()
    print(len(txt.split('\n')), 'lines; vgprs', hi)
```

```python
from asmlib import *
from layout import *
import k1
from k1 import srd, add64, hedgehog, wphi_addr, wphi_load, wphi_merge

KB, VB, KVL = 0, 20480, 40960
K2_LDS = 43008
NEG = f2u(-1e30)

def gen_k2(name='k2_kernel', fast=False):
    ST = k1.ST
    a = Asm()
    a.raw(f'.globl {name}\n.p2align 8\n.type {name},@function\n{name}:')
    sQA, sQB, sKA, sVA, sKV, sP, sGt, sO16, sO2 = 16, 20, 24, 28, 32, 36, 40, 44, 48
    sWave, sHead, sT8, sT0, sT1, sT2, sOOB, sVF, sTile = 52, 53, 54, 55, 56, 57, 58, 59, 60
    sK = 62
    a.many(f'''
    s_cmp_ge_u32 s2, 256
    s_cbranch_scc1 L_{name}_end
    s_load_dwordx2 s[10:11], s[0:1], 40
    s_load_dwordx2 s[14:15], s[0:1], 80
    v_lshrrev_b32 v1, 6, v0
    s_and_b32 s{sT0}, s2, 7
    s_lshr_b32 s{sT1}, s2, 3
    v_readfirstlane_b32 s{sWave}, v1
    s_and_b32 s{sHead}, s{sT0}, 1
    s_lshl_b32 s{sHead}, s{sHead}, 4
    s_lshr_b32 s{sT2}, s{sT1}, 1
    s_add_u32 s{sHead}, s{sHead}, s{sT2}
    s_and_b32 s{sT8}, s{sT0}, 6
    s_and_b32 s{sT1}, s{sT1}, 1
    s_add_u32 s{sT8}, s{sT8}, s{sT1}
    s_mov_b32 s{sOOB}, {OOB}
    s_cmp_eq_u32 s{sT8}, 0
    s_cselect_b32 s{sVF}, 8, 0
    s_lshl_b32 s{sTile}, s{sT8}, 3
    s_lshl_b32 s{sT0}, s{sWave}, 1
    s_add_u32 s{sTile}, s{sTile}, s{sT0}
    s_mov_b32 s{sK}, {f2u(LOG2E)}
    s_mov_b32 s{sK+1}, {f2u(-LOG2E)}
    ''')
    R = RegAlloc(1, 256)
    vT = R.get(1)
    vL16 = R.get(1); vL4 = R.get(1); vL4m = R.get(1)
    t = [R.get(1) for _ in range(6)]
    vK = R.get(1); vK2 = R.get(1); vV = R.get(4); vKV = R.get(1); vP = R.get(1); vP2 = R.get(1)
    G = R.get(2)
    QA = R.get(16, 4); QB = R.get(16, 4)
    F1 = R.get(4, 4); F2 = R.get(4, 4)
    S = R.get(144, 4)
    MD = R.get(16, 4); ME = R.get(16, 4)
    O = R.get(16, 4)
    a.many(f'''
    v_mov_b32 v{vT}, v0
    v_and_b32 v0, 63, v0
    v_lshlrev_b32 v{vL16}, 4, v0
    v_and_b32 v{t[0]}, 31, v0
    v_lshlrev_b32 v{vL4}, 2, v{t[0]}
    v_mov_b32 v{t[1]}, s{sOOB}
    v_cmp_gt_u32 vcc, 32, v0
    v_cndmask_b32 v{vL4m}, v{t[1]}, v{vL4}, vcc
    s_waitcnt lgkmcnt(0)
    s_mul_i32 s{sT0}, s{sHead}, {64*QK_BLK}
    s_add_u32 s{sT1}, s{sT0}, {KA_OFF}
    ''')
    add64(a, sKA, 14, f's{sT1}'); srd(a, sKA, sKA, sKA+1, 64*QK_BLK)
    a.i(f's_mul_i32 s{sT1}, s{sHead}, {64*V_BLK}')
    a.i(f's_add_u32 s{sT1}, s{sT1}, {VA_OFF}')
    add64(a, sVA, 14, f's{sT1}'); srd(a, sVA, sVA, sVA+1, 64*V_BLK)
    for (sR, blk, lbase, nval) in ((sKA, QK_BLK, KB, 9), (sVA, V_BLK, VB, 10)):
        a.i(f's_lshl_b32 s{sT1}, s{sT8}, 3')
        a.i(f's_sub_u32 s{sT1}, s{sT1}, 8')
        a.i(f's_mul_i32 s{sT1}, s{sT1}, {blk}')
        a.i(f's_lshl_b32 s{sT2}, s{sWave}, 10')
        a.i(f's_add_u32 s{sT1}, s{sT1}, s{sT2}')
        for k in range(5):
            a.i(f's_cmp_lt_i32 s{sT1}, 0')
            a.i(f's_cselect_b32 s61, s{sOOB}, s{sT1}')
            a.i(f'v_add_u32 v{t[k]}, s61, v{vL16}')
            a.i(f's_add_u32 m0, s{sT2}, {lbase + 4096*k}')
            a.i(f'buffer_load_dwordx4 v{t[k]}, s[{sR}:{sR+3}], 0 offen lds')
            if k < 4: a.i(f's_add_u32 s{sT1}, s{sT1}, 4096')
    tokKV_dma = a.last_vm()
    a.i(f's_add_u32 s{sT1}, s{sT0}, {QA_OFF}')
    add64(a, sQA, 14, f's{sT1}'); srd(a, sQA, sQA, sQA+1, 64*QK_BLK)
    a.i(f's_add_u32 s{sT1}, s{sT0}, {QB_OFF}')
    add64(a, sQB, 14, f's{sT1}'); srd(a, sQB, sQB, sQB+1, 64*QK_BLK)
    a.i(f's_mul_i32 s{sT1}, s{sTile}, {QK_BLK}')
    a.i(f's_add_u32 s{sT2}, s{sT1}, {QK_BLK}')
    for (sR, Q) in ((sQA, QA), (sQB, QB)):
        for x in range(2):
            so = sT1 if x == 0 else sT2
            a.i(f'buffer_load_dwordx4 v[{Q+8*x}:{Q+8*x+3}], v{vL16}, s[{sR}:{sR+3}], s{so} offen')
            a.i(f'buffer_load_dword v{Q+8*x+4}, v{vL4m}, s[{sR}:{sR+3}], s{so} offen offset:1024')
            for z in range(5, 8): a.i(f'v_mov_b32 v{Q+8*x+z}, 0')
    a.i(f's_add_u32 s{sGt}, s14, {G_OFF}'); a.i(f's_addc_u32 s{sGt+1}, s15, 0'); srd(a, sGt, sGt, sGt+1, 8192)
    a.i(f's_lshl_b32 s{sT1}, s{sTile}, 7')
    a.i(f'buffer_load_dword v{G}, v{vL4}, s[{sGt}:{sGt+3}], s{sT1} offen')
    a.i(f'buffer_load_dword v{G+1}, v{vL4}, s[{sGt}:{sGt+3}], s{sT1} offen offset:128')
    srd(a, sP, 10, 11, 32*648)
    wphi_addr(a, vP, vP2, 0, t[0], t[1], sOOB)
    a.i(f's_mul_i32 s{sT1}, s{sHead}, 648')
    for z in range(1, 4): a.i(f'v_mov_b32 v{F2+z}, 0')
    wphi_load(a, F1, F2, S+64, vP, vP2, sP, sT1)
    a.i(f's_mul_i32 s{sT1}, s{sHead}, {16*KVP_BLK}')
    a.i(f's_add_u32 s{sT1}, s{sT1}, {KVP_OFF}')
    add64(a, sKV, 14, f's{sT1}'); srd(a, sKV, sKV, sKV+1, 16*KVP_BLK)
    a.many(f'''
    v_lshlrev_b32 v{t[0]}, 4, v{vT}
    v_mov_b32 v{t[1]}, s{sOOB}
    v_cmp_gt_u32 vcc, 200, v{vT}
    v_cndmask_b32 v{t[0]}, v{t[1]}, v{t[0]}, vcc
    s_mov_b32 s{sT1}, 0
    ''')
    ptok = []
    for p in range(16):
        ptok.append(a.i(f'buffer_load_dwordx4 v[{S+4*p}:{S+4*p+3}], v{t[0]}, s[{sKV}:{sKV+3}], s{sT1} offen'))
        if p < 15: a.i(f's_add_u32 s{sT1}, s{sT1}, {KVP_BLK}')
    a.i(f's_add_u32 s{sO16}, s14, {O16_OFF}'); a.i(f's_addc_u32 s{sO16+1}, s15, 0'); srd(a, sO16, sO16, sO16+1, O16_SZ)
    a.i(f's_add_u32 s{sO2}, s14, {O2_OFF}'); a.i(f's_addc_u32 s{sO2+1}, s15, 0'); srd(a, sO2, sO2, sO2+1, O2_SZ)
    a.many(f'''
    s_mul_i32 s{sT1}, s{sWave}, {2*QK_BLK}
    v_add_u32 v{vK}, s{sT1}, v{vL16}
    v_add_u32 v{vK2}, s{sT1}, v{vL4}
    v_add_u32 v{vK2}, {KB+1024}, v{vK2}
    s_mul_i32 s{sT1}, s{sWave}, {2*V_BLK}
    s_add_u32 s{sT1}, s{sT1}, {VB}
    v_lshrrev_b32 v{t[1]}, 5, v0
    v_bfe_u32 v{t[2]}, v0, 2, 2
    v_and_b32 v{t[3]}, 1, v0
    v_bfe_u32 v{t[4]}, v0, 1, 1
    v_bfe_u32 v{t[5]}, v0, 4, 1
    v_cmp_eq_u32 vcc, 1, v{t[5]}
    ''')
    tmpA, tmpB = MD, MD + 1
    for s in range(2):
        for rd in range(2):
            d = vV + 2 * s + rd
            a.many(f'''
            v_lshl_add_u32 v{tmpA}, v{t[1]}, 3, v{t[2]}
            v_add_u32 v{tmpA}, {16*s+4*rd}, v{tmpA}
            v_lshlrev_b32 v{tmpB}, 2, v{t[3]}
            v_xor_b32 v{tmpA}, v{tmpA}, v{tmpB}
            v_lshlrev_b32 v{tmpA}, 4, v{tmpA}
            v_lshl_add_u32 v{tmpA}, v{t[3]}, 9, v{tmpA}
            v_lshl_add_u32 v{tmpA}, v{t[4]}, 3, v{tmpA}
            v_xor_b32 v{tmpB}, 1, v{t[1]}
            v_lshl_add_u32 v{tmpB}, v{tmpB}, 4, v{t[2]}
            v_add_u32 v{tmpB}, {128 + 8*s + 4*rd}, v{tmpB}
            v_lshlrev_b32 v{tmpB}, 3, v{tmpB}
            v_cndmask_b32 v{d}, v{tmpA}, v{tmpB}, vcc
            v_add_u32 v{d}, s{sT1}, v{d}
            ''')
    a.many(f'''
    v_bfe_u32 v{t[2]}, v0, 3, 2
    v_bfe_u32 v{t[3]}, v0, 2, 1
    v_lshl_add_u32 v{t[3]}, v{t[3]}, 1, v{t[2]}
    v_cmp_lt_u32 vcc, 1, v{t[2]}
    v_cndmask_b32 v{t[3]}, v{t[3]}, 4, vcc
    v_and_b32 v{t[2]}, 3, v0
    v_lshl_add_u32 v{t[3]}, v{t[3]}, 2, v{t[2]}
    v_mul_u32_u24 v{t[3]}, 80, v{t[3]}
    v_mad_u32_u24 v{vKV}, v{t[1]}, 40, v{t[3]}
    v_add_u32 v{vKV}, {KVL}, v{vKV}
    ''')
    a.many(f'''
    v_and_b32 v{t[2]}, 31, v0
    v_lshlrev_b32 v{t[3]}, 3, v{t[1]}
    v_sub_u32 v{t[2]}, v{t[2]}, v{t[3]}
    v_mov_b32 v{t[3]}, {NEG}
    ''')
    for r in range(16):
        aa, e = r >> 2, r & 3
        kc = 16 * (aa >> 1) + 4 * (aa & 1) + e
        a.i(f'v_cmp_le_i32 vcc, {kc}, v{t[2]}')
        a.i(f'v_cndmask_b32 v{MD+r}, v{t[3]}, 0, vcc')
        a.i(f'v_cndmask_b32 v{ME+r}, 0, v{t[3]}, vcc')
    for lvl in (8, 4, 2, 1):
        for p in range(lvl):
            if lvl == 8: a.wait_vm(ptok[p + 8])
            for h in (0, 2):
                x = S + 4 * p + h; y = S + 4 * (p + lvl) + h
                a.i(f'v_pk_add_f32 v[{x}:{x+1}], v[{x}:{x+1}], v[{y}:{y+1}]')
    a.i(f'v_cvt_pk_bf16_f32 v{S}, v{S}, v{S+1}')
    a.i(f'v_cvt_pk_bf16_f32 v{S+1}, v{S+2}, v{S+3}')
    a.i(f'v_lshlrev_b32 v{t[0]}, 3, v{vT}')
    a.i(f'ds_write_b64 v{t[0]}, v[{S}:{S+1}] offset:{KVL}')
    a.i(f's_mov_b32 s{sT0}, 0xffff0000')
    wphi_merge(a, F1, F2, S+64, sT0)
    a.i('s_waitcnt vmcnt(0) lgkmcnt(0)')
    a.i('s_barrier')
    vo2 = t[5]
    a.many(f'''
    s_and_b32 s{sT0}, s{sHead}, 3
    s_lshl_b32 s{sT0}, s{sT0}, 2
    v_lshlrev_b32 v{vo2}, 2, v{vL4m}
    v_cmp_gt_u32 vcc, 32, v0
    v_cndmask_b32 v{vo2}, v{vL4m}, v{vo2}, vcc
    v_add_u32 v{vo2}, s{sT0}, v{vo2}
    ''')
    def store_o(Oreg, side, x, scale):
        for j in range(5):
            a.i(f'v_pk_mul_f32 v[{Oreg+2*j}:{Oreg+2*j+1}], v[{Oreg+2*j}:{Oreg+2*j+1}], v[{scale}:{scale+1}] op_sel_hi:[1,0]')
        for j in range(5):
            a.i(f'v_cvt_pk_bf16_f32 v{Oreg+j}, v{Oreg+2*j}, v{Oreg+2*j+1}')
        a.many(f'''
        s_lshl_b32 s{sT0}, s{sHead}, 6
        s_add_u32 s{sT0}, s{sT0}, s{sTile}
        s_add_u32 s{sT0}, s{sT0}, {side*2048 + x}
        s_lshl_b32 s{sT0}, s{sT0}, 10
        s_add_u32 s{sT1}, s{sTile}, {side*64 + x}
        s_lshl_b32 s{sT1}, s{sT1}, 3
        s_lshr_b32 s{sT2}, s{sHead}, 2
        s_add_u32 s{sT1}, s{sT1}, s{sT2}
        s_lshl_b32 s{sT1}, s{sT1}, 9
        buffer_store_dwordx4 v[{Oreg}:{Oreg+3}], v{vL16}, s[{sO16}:{sO16+3}], s{sT0} offen {ST}
        buffer_store_dword v{Oreg+4}, v{vo2}, s[{sO2}:{sO2+3}], s{sT1} offen {ST}
        ''')
    KVF = S
    D = [S + 16, S + 32]
    PH = [S + 48, S + 60]
    T = S + 72
    for s in range(2):
        a.i(f'ds_read_b64 v[{KVF+4*s}:{KVF+4*s+1}], v{vKV} offset:{16*s}')
        a.i(f'ds_read_b64 v[{KVF+4*s+2}:{KVF+4*s+3}], v{vKV} offset:{16*s+8}')
    ktok = a.i(f'ds_read_b32 v{KVF+8}, v{vKV} offset:32')
    for z in range(9, 12): a.i(f'v_mov_b32 v{KVF+z}, 0')
    for x in range(2):
        a.i(f'v_mfma_f32_32x32x16_bf16 v[{D[x]}:{D[x]+15}], v[{F1}:{F1+3}], v[{QB+8*x}:{QB+8*x+3}], 0')
    for x in range(2):
        a.i(f'v_mfma_f32_32x32x16_bf16 v[{D[x]}:{D[x]+15}], v[{F2}:{F2+3}], v[{QB+8*x+4}:{QB+8*x+7}], v[{D[x]}:{D[x]+15}]')
        for z in range(9, 12): a.i(f'v_mov_b32 v{PH[x]+z}, 0')
    hedgehog(a, [(D[0], PH[0]), (D[1], PH[1])], sK, T)
    a.wait_lg(ktok)
    for s in range(3):
        for x in range(2):
            c = '0' if s == 0 else f'v[{D[x]}:{D[x]+15}]'
            a.i(f'v_mfma_f32_32x32x16_bf16 v[{D[x]}:{D[x]+15}], v[{KVF+4*s}:{KVF+4*s+3}], v[{PH[x]+4*s}:{PH[x]+4*s+3}], {c}')
    for x in range(2):
        sc = T + 2 * x
        a.i(f'v_add_f32 v{sc}, {f2u(1e-6)}, v{D[x]+10}')
        a.i(f'v_rcp_f32 v{sc}, v{sc}')
        a.i(f'v_sub_f32 v{sc+1}, 1.0, v{G+x}')
        a.i(f'v_mul_f32 v{sc}, v{sc}, v{sc+1}')
        store_o(D[x], 1, x, sc)
    KF = QB
    for z in (5, 6, 7, 13, 14, 15): a.i(f'v_mov_b32 v{KF+z}, 0')
    VF = F1
    for x in range(2):
        kt = {}
        def rdK(n):
            f = KF + 8 * (n & 1)
            a.i(f'ds_read_b128 v[{f}:{f+3}], v{vK} offset:{(x+n)*QK_BLK}')
            kt[n] = a.i(f'ds_read_b32 v{f+4}, v{vK2} offset:{(x+n)*QK_BLK}')
        rdK(0); rdK(1)
        for n in range(9):
            a.wait_lg(kt[n])
            f = KF + 8 * (n & 1); sn = S + 16 * n
            c = f'v[{ME}:{ME+15}]' if n == 0 else (f'v[{MD}:{MD+15}]' if n == 8 else '0')
            a.i(f'v_mfma_f32_32x32x16_bf16 v[{sn}:{sn+15}], v[{f}:{f+3}], v[{QA+8*x}:{QA+8*x+3}], {c}')
            a.i(f'v_mfma_f32_32x32x16_bf16 v[{sn}:{sn+15}], v[{f+4}:{f+7}], v[{QA+8*x+4}:{QA+8*x+7}], v[{sn}:{sn+15}]')
            if n + 2 < 9: rdK(n + 2)
        a.flush_hazards()
        a.i(f's_lshl_b32 s{sT0}, s{sWave}, 1')
        for n in range(8):
            a.i(f's_add_u32 s{sT1}, s{sT0}, {x+n}')
            a.i(f's_cmp_ge_u32 s{sT1}, s{sVF}')
            a.i(f's_cbranch_scc1 L_{name}_v{x}')
            for r in range(16): a.i(f'v_mov_b32 v{S+16*n+r}, {NEG}')
        a.label(f'L_{name}_v{x}')
        m = t[0:4]
        for k in range(4):
            b = S + 36 * k
            a.i(f'v_max3_f32 v{m[k]}, v{b}, v{b+1}, v{b+2}')
        for j in range(3, 35, 2):
            for k in range(4):
                b = S + 36 * k
                a.i(f'v_max3_f32 v{m[k]}, v{m[k]}, v{b+j}, v{b+j+1}')
        for k in range(4): a.i(f'v_max_f32 v{m[k]}, v{m[k]}, v{S+36*k+35}')
        a.i(f'v_max3_f32 v{m[0]}, v{m[0]}, v{m[1]}, v{m[2]}')
        a.i(f'v_max_f32 v{m[0]}, v{m[0]}, v{m[3]}')
        a.i(f'v_mov_b32 v{m[1]}, v{m[0]}')
        a.i(f'v_permlane32_swap_b32 v{m[0]}, v{m[1]}')
        a.i(f'v_max_f32 v{m[0]}, v{m[0]}, v{m[1]}')
        for n in range(9):
            sn = S + 16 * n
            for s in range(2):
                for rd in range(2):
                    vt = a.i(f'ds_read_b64_tr_b16 v[{VF+4*s+2*rd}:{VF+4*s+2*rd+1}], v{vV+2*s+rd} offset:{(x+n)*V_BLK}')
            for r in range(16): a.i(f'v_sub_f32 v{sn+r}, v{sn+r}, v{m[0]}')
            for r in range(16): a.i(f'v_exp_f32 v{sn+r}, v{sn+r}')
            PP = sn
            for r in range(8): a.i(f'v_cvt_pk_bf16_f32 v{PP+r}, v{sn+2*r}, v{sn+2*r+1}')
            a.wait_lg(vt)
            c = '0' if n == 0 else f'v[{O}:{O+15}]'
            a.i(f'v_mfma_f32_32x32x16_bf16 v[{O}:{O+15}], v[{VF}:{VF+3}], v[{PP}:{PP+3}], {c}')
            a.i(f'v_mfma_f32_32x32x16_bf16 v[{O}:{O+15}], v[{VF+4}:{VF+7}], v[{PP+4}:{PP+7}], v[{O}:{O+15}]')
        sc = S
        a.i(f'v_rcp_f32 v{sc}, v{O+10}')
        a.i(f'v_mul_f32 v{sc}, v{sc}, v{G+x}')
        store_o(O, 0, x, sc)
    a.label(f'L_{name}_end')
    a.i('s_endpgm')
    return a.text() + kd(name, R.hi), K2_LDS, R.hi

if __name__ == '__main__':
    txt, lds, hi = gen_k2()
    print(len(txt.split('\n')), 'lines; vgprs', hi)
```

```python
from asmlib import *
from layout import *
from k1 import srd, add64

K3_LDS = 1152 * 128

def gen_k3(name='k3_kernel'):
    a = Asm()
    a.raw(f'.globl {name}\n.p2align 8\n.type {name},@function\n{name}:')
    sWo = [16, 20]; sO16, sO2, sOut = 24, 28, 32
    sWave, sRow, sCol, sT0, sT1, sT2, sM = 36, 37, 38, 39, 40, 41, 42
    a.many(f'''
    s_cmp_ge_u32 s2, 144
    s_cbranch_scc1 L_{name}_end
    s_load_dwordx2 s[4:5], s[0:1], 16
    s_load_dwordx2 s[6:7], s[0:1], 48
    s_load_dwordx2 s[8:9], s[0:1], 64
    s_load_dwordx2 s[14:15], s[0:1], 80
    v_lshrrev_b32 v1, 6, v0
    v_and_b32 v0, 63, v0
    s_and_b32 s{sT0}, s2, 7
    v_readfirstlane_b32 s{sWave}, v1
    s_lshr_b32 s{sT1}, s2, 3
    s_and_b32 s{sRow}, s{sT1}, 1
    s_lshl_b32 s{sT0}, s{sT0}, 1
    s_add_u32 s{sRow}, s{sRow}, s{sT0}
    s_lshr_b32 s{sCol}, s{sT1}, 1
    s_lshl_b32 s{sM}, s{sWave}, 10
    ''')
    R = RegAlloc(1, 256)
    t = [R.get(1) for _ in range(6)]
    vWh = R.get(1); vWt = R.get(1); vL16 = R.get(1); vOut = R.get(1)
    vA = R.get(6)
    NO = 16
    OF = R.get(4 * NO, 4)
    P = 8
    POOL = R.get(4 * P, 4)
    ACC = R.get(32, 4)
    a.many(f'''
    v_lshrrev_b32 v{t[0]}, 3, v0
    v_and_b32 v{t[1]}, 7, v0
    v_bfe_u32 v{t[2]}, v0, 4, 1
    v_lshlrev_b32 v{t[2]}, 1, v{t[2]}
    v_xor_b32 v{t[1]}, v{t[1]}, v{t[2]}
    v_lshlrev_b32 v{t[1]}, 4, v{t[1]}
    v_mul_u32_u24 v{vWh}, 1152, v{t[0]}
    v_add_u32 v{vWh}, v{vWh}, v{t[1]}
    v_lshrrev_b32 v{t[2]}, 1, v{t[0]}
    v_mul_u32_u24 v{t[2]}, 18, v{t[2]}
    v_and_b32 v{t[3]}, 1, v{t[0]}
    v_add3_u32 v{t[2]}, v{t[2]}, v{t[3]}, 16
    v_mul_u32_u24 v{vWt}, 1152, v{t[2]}
    v_add_u32 v{vWt}, v{vWt}, v{t[1]}
    v_lshlrev_b32 v{vL16}, 4, v0
    v_lshrrev_b32 v{t[0]}, 5, v0
    v_bfe_u32 v{t[1]}, v0, 2, 2
    v_lshl_add_u32 v{t[2]}, v{t[0]}, 3, v{t[1]}
    v_lshlrev_b32 v{t[2]}, 7, v{t[2]}
    v_and_b32 v{t[3]}, 1, v0
    v_lshlrev_b32 v{t[3]}, 2, v{t[3]}
    v_bfe_u32 v{t[4]}, v0, 4, 1
    v_add_u32 v{t[3]}, v{t[3]}, v{t[4]}
    v_and_b32 v{t[1]}, 2, v{t[1]}
    v_xor_b32 v{t[3]}, v{t[3]}, v{t[1]}
    v_bfe_u32 v{t[4]}, v0, 1, 1
    v_lshl_add_u32 v{t[2]}, v{t[4]}, 3, v{t[2]}
    v_lshl_add_u32 v{vA}, v{t[3]}, 4, v{t[2]}
    v_xor_b32 v{t[3]}, 2, v{t[3]}
    v_lshl_add_u32 v{vA+1}, v{t[3]}, 4, v{t[2]}
    v_add_u32 v{vA+2}, 49152, v{vA}
    v_add_u32 v{vA+3}, 49152, v{vA+1}
    v_add_u32 v{vA+4}, 98304, v{vA}
    v_add_u32 v{vA+5}, 98304, v{vA+1}
    v_and_b32 v{t[1]}, 31, v0
    v_mul_u32_u24 v{vOut}, 1152, v{t[1]}
    v_lshl_add_u32 v{vOut}, v{t[0]}, 6, v{vOut}
    s_waitcnt lgkmcnt(0)
    s_lshl_b32 s{sT0}, s{sCol}, 7
    ''')
    for side in range(2):
        add64(a, sWo[side], 4 + 2 * side, f's{sT0}')
        a.i(f's_sub_u32 s{sWo[side]+2}, {576*1152}, s{sT0}')
        a.i(f's_mov_b32 s{sWo[side]+3}, 0x20000')
    a.i(f's_lshl_b32 s{sT1}, s{sRow}, 2'); a.i(f's_add_u32 s{sT1}, s{sT1}, s{sWave}')
    a.i(f's_lshl_b32 s{sT2}, s{sT1}, 10'); a.i(f's_add_u32 s{sT2}, s{sT2}, {O16_OFF}')
    add64(a, sO16, 14, f's{sT2}'); srd(a, sO16, sO16, sO16+1, O16_SZ - 63*1024)
    a.i(f's_lshl_b32 s{sT2}, s{sT1}, 12'); a.i(f's_add_u32 s{sT2}, s{sT2}, {O2_OFF}')
    add64(a, sO2, 14, f's{sT2}'); srd(a, sO2, sO2, sO2+1, O2_SZ - 63*4096)
    a.i(f's_mul_i32 s{sT2}, s{sT1}, {32*1152}'); a.i(f's_add_u32 s{sT2}, s{sT2}, s{sT0}')
    add64(a, sOut, 8, f's{sT2}')
    a.i(f's_sub_u32 s{sOut+2}, {2048*1152}, s{sT2}'); a.i(f's_mov_b32 s{sOut+3}, 0x20000')
    sWh, sWt = 43, 44
    a.i(f's_mul_i32 s{sWh}, s{sWave}, {18*1152}')
    a.i(f's_mul_i32 s{sWt}, s{sWave}, {8*18*1152}')
    a.i(f's_lshl_b32 s{sM}, s{sWave}, 11')
    NST = 18
    wtok = {}; otok = {}
    def dmaW(st):
        side, ls = divmod(st, 9)
        for k in range(2):
            if ls < 8:
                a.i(f's_add_u32 s{sT2}, s{sWh}, {(4*ls*18 + 8*k)*1152}')
                va = vWh
            else:
                a.i(f's_add_u32 s{sT2}, s{sWt}, {k*4*18*1152}')
                va = vWt
            a.i(f's_add_u32 m0, s{sM}, {st*8192 + k*1024}')
            wtok[st] = a.i(f'buffer_load_dwordx4 v{va}, s[{sWo[side]}:{sWo[side]+3}], s{sT2} offen lds')
    def loadO(step):
        if step >= 72: return
        side, ls = divmod(step, 36)
        f = OF + 4 * (step % NO)
        if ls < 32:
            a.i(f's_mov_b32 s{sT2}, {(side*32 + ls)*65536}')
            otok[step] = a.i(f'buffer_load_dwordx4 v[{f}:{f+3}], v{vL16}, s[{sO16}:{sO16+3}], s{sT2} offen')
        else:
            a.i(f's_mov_b32 s{sT2}, {side*64*4096 + (ls-32)*1024}')
            otok[step] = a.i(f'buffer_load_dwordx4 v[{f}:{f+3}], v{vL16}, s[{sO2}:{sO2+3}], s{sT2} offen')
    LEAD = 4
    for st in range(LEAD):
        dmaW(st)
        for s in range(4): loadO(4 * st + s)
    D = 6
    ftok = {}
    def rd(q):
        if q >= 144: return
        step, m = divmod(q, 2)
        row = 16 * step
        third = (row * 128) // 49152
        f = POOL + 4 * (q % P)
        for r in range(2):
            ftok[q] = a.i(f'ds_read_b64_tr_b16 v[{f+2*r}:{f+2*r+1}], v{vA+2*third+m} offset:{(row+4*r)*128 - third*49152}')
    a.wait_vm(wtok[0]); a.i('s_barrier')
    for q in range(D): rd(q)
    for q in range(144):
        step, m = divmod(q, 2)
        st = step // 4
        a.wait_vm(otok[step]); a.wait_lg(ftok[q])
        f = POOL + 4 * (q % P); o = OF + 4 * (step % NO); acc = ACC + 16 * m
        c = '0' if step == 0 else f'v[{acc}:{acc+15}]'
        a.i(f'v_mfma_f32_32x32x16_bf16 v[{acc}:{acc+15}], v[{f}:{f+3}], v[{o}:{o+3}], {c}')
        if (q + D) % 8 == 0 and (q + D) // 8 < NST:
            a.wait_vm(wtok[(q + D) // 8]); a.i('s_barrier')
        rd(q + D)
        if m == 1:
            if step % 4 == 0 and st + LEAD < NST: dmaW(st + LEAD)
            loadO(step + NO)
    for j in range(16):
        a.i(f'v_cvt_pk_bf16_f32 v{ACC+j}, v{ACC+2*j}, v{ACC+2*j+1}')
    for j in range(4):
        a.i(f'buffer_store_dwordx4 v[{ACC+4*j}:{ACC+4*j+3}], v{vOut}, s[{sOut}:{sOut+3}], 0 offen offset:{16*j}')
    a.label(f'L_{name}_end')
    a.i('s_endpgm')
    return a.text() + kd(name, R.hi), K3_LDS, R.hi

if __name__ == '__main__':
    txt, lds, hi = gen_k3()
    print(len(txt.split('\n')), 'lines; vgprs', hi)
```

```python
QK_BLK = 1152
V_BLK = 1280
QA_OFF = 0
KA_OFF = 2359296
QB_OFF = 2 * 2359296
VA_OFF = 3 * 2359296
QK_SZ = 2359296
VA_SZ = 32 * 64 * V_BLK
KVP_OFF = VA_OFF + VA_SZ
KVP_BLK = 3200
KVP_SZ = 32 * 16 * KVP_BLK
G_OFF = KVP_OFF + KVP_SZ
O16_OFF = G_OFF + 8192
O16_SZ = 2 * 32 * 64 * 1024
O2_OFF = O16_OFF + O16_SZ
O2_SZ = 2 * 64 * 8 * 512
WS_USED = O2_OFF + O2_SZ
LOG2E = 1.4426950408889634
QSCALE = 18 ** -0.5 * LOG2E
OOB = 0x40000000
import struct
def f2u(x): return struct.unpack('<I', struct.pack('<f', x))[0]
```

```python
import sys
import k1, k2, k3
def build(**opt):
    k1.ST = opt.get('st', '').replace('+', ' ')
    import asmlib
    asmlib.Asm.prof = bool(int(opt.get('prof', 0)))
    t1, l1, _ = k1.gen_k1()
    t2, l2, _ = k2.gen_k2()
    t3, l3, _ = k3.gen_k3()
    hdr = open('gated_mix__sliding_block__linear_kernel_hedgehog__prompt.s.ref').read().split('; Override')[0]
    hdr += f'; @launch kernel=k1_kernel grid=(256,1,1) block=(256,1,1) lds={l1}\n'
    hdr += f'; @launch kernel=k2_kernel grid=(256,1,1) block=(256,1,1) lds={l2}\n'
    hdr += f'; @launch kernel=k3_kernel grid=(144,1,1) block=(256,1,1) lds={l3}\n'
    hdr += '.amdgcn_target "amdgcn-amd-amdhsa--gfx950"\n.text\n'
    return hdr + t1 + t2 + t3
if __name__ == '__main__':
    out = sys.argv[1] if len(sys.argv) > 1 else 'gated_mix__sliding_block__linear_kernel_hedgehog__prompt.s'
    opt = dict(x.split('=') for x in sys.argv[2:])
    open(out, 'w').write(build(**opt))
```

```python
import re

TRANS = ('v_exp_f32', 'v_log_f32', 'v_rcp_f32', 'v_rsq_f32', 'v_sqrt_f32', 'v_sin_f32', 'v_cos_f32')

def regs_of(tok):
    tok = tok.strip()
    tok = tok.lstrip('-')
    if tok.startswith('abs(') or tok.startswith('|'):
        tok = tok.replace('abs(', '').replace(')', '').replace('|', '')
    m = re.fullmatch(r'([vas])(\d+)', tok)
    if m: return [(m.group(1), int(m.group(2)))]
    m = re.fullmatch(r'([vas])\[(\d+):(\d+)\]', tok)
    if m: return [(m.group(1), i) for i in range(int(m.group(2)), int(m.group(3)) + 1)]
    if tok == 'vcc': return [('s', 'vcc')]
    if tok == 'exec': return [('s', 'exec')]
    if tok == 'm0': return [('s', 'm0')]
    return []

def split_ops(s):
    out = []; depth = 0; cur = ''
    for ch in s:
        if ch == '[': depth += 1
        if ch == ']': depth -= 1
        if ch == ',' and depth == 0:
            out.append(cur.strip()); cur = ''
        else: cur += ch
    if cur.strip(): out.append(cur.strip())
    return out

class Asm:
    def __init__(self):
        self.lines = []
        self.reset_state()
        self.nops_inserted = 0
    def reset_state(self):
        self.t = 0
        self.w_valu = {}
        self.w_trans = {}
        self.w_mfma = {}
        self.r_mfmaC = {}
        self.w_sgpr_valu = {}
        self.w_m0 = -100
        self.st_data = {}
        self.w_exec_valu = -100
        self.lg_issued = 0; self.lg_done = 0
        self.vm_issued = 0; self.vm_done = 0
    def raw(self, s): self.lines.append(s)
    def comment(self, s): self.lines.append('; ' + s)
    def label(self, name, flush=True):
        self.lines.append(name + ':')
    def flush_hazards(self):
        need = 0
        for r, (t, p, _f) in self.w_mfma.items(): need = max(need, t + {2:5,4:8,8:12,16:20}[p] + 1 - self.t)
        for r, t in self.w_valu.items(): need = max(need, t + 2 + 1 - self.t)
        for r, t in self.w_sgpr_valu.items(): need = max(need, t + 5 + 1 - self.t)
        self._nop(need)
    def _nop(self, n):
        while n > 0:
            k = min(n, 16)
            self.lines.append(f's_nop {k-1}')
            self.t += k; n -= k; self.nops_inserted += k
    def text(self): return '\n'.join(self.lines) + '\n'
    def wait_lg(self, tok):
        if tok is None or tok < self.lg_done: return
        n = self.lg_issued - tok - 1
        n = min(n, 15)
        self.i(f's_waitcnt lgkmcnt({n})')
    def wait_vm(self, tok):
        if tok is None or tok < self.vm_done: return
        n = self.vm_issued - tok - 1
        n = min(n, 63)
        self.i(f's_waitcnt vmcnt({n})')
    def last_vm(self): return self.vm_issued - 1
    def last_lg(self): return self.lg_issued - 1
    def i(self, s):
        s = s.strip()
        body = s.split(';')[0].strip()
        parts = body.split(None, 1)
        op = parts[0]
        rest = parts[1] if len(parts) > 1 else ''
        if op == 's_nop':
            self.lines.append(s); self.t += int(rest) + 1; return None
        if op == 's_waitcnt':
            m = re.search(r'lgkmcnt\((\d+)\)', rest)
            if m: self.lg_done = max(self.lg_done, self.lg_issued - int(m.group(1)))
            m = re.search(r'vmcnt\((\d+)\)', rest)
            if m: self.vm_done = max(self.vm_done, self.vm_issued - int(m.group(1)))
            self.lines.append(s); self.t += 1; return None
        ops = split_ops(rest)
        toks = []
        for o in ops:
            w = o.split()
            toks.append(w[0] if w else '')
        is_mfma = op.startswith('v_mfma')
        is_valu = op.startswith('v_') and not is_mfma
        is_ds = op.startswith('ds_')
        is_vmem = op.startswith('buffer_') or op.startswith('global_')
        is_lds_dma = is_vmem and (re.search(r'\blds\b', rest) is not None or 'load_lds' in op)
        is_store = is_vmem and ('store' in op or ('atomic' in op))
        dst = []; src = []
        if is_mfma:
            dst = regs_of(toks[0]); A = regs_of(toks[1]); B = regs_of(toks[2]); C = regs_of(toks[3])
            src = A + B + C
        elif is_valu:
            if op.startswith('v_permlane32_swap') or op.startswith('v_permlane16_swap'):
                dst = regs_of(toks[0]) + regs_of(toks[1]); src = list(dst)
            elif op.startswith('v_cmp'):
                dst = regs_of(toks[0]); src = sum((regs_of(x) for x in toks[1:]), [])
                if op.startswith('v_cmpx'): dst += [('s', 'exec')]
            else:
                dst = regs_of(toks[0]); k = 1
                if op.startswith(('v_add_co', 'v_sub_co', 'v_addc_co', 'v_subb_co', 'v_mad_u64', 'v_div_scale')):
                    dst += regs_of(toks[1]); k = 2
                src = sum((regs_of(x) for x in toks[k:]), [])
                if op.startswith(('v_fmac', 'v_dot2c', 'v_pk_fmac')) or 'dst_unused:UNUSED_PRESERVE' in rest: src += regs_of(toks[0])
        elif is_ds:
            if op.startswith(('ds_read', 'ds_bpermute', 'ds_permute', 'ds_swizzle')):
                dst = regs_of(toks[0]); src = sum((regs_of(x) for x in toks[1:]), [])
            else:
                src = sum((regs_of(x) for x in toks), [])
        elif is_vmem:
            if is_lds_dma or is_store:
                src = sum((regs_of(x) for x in toks), [])
                if 'atomic' in op and re.search(r'\bsc0\b', rest): dst = regs_of(toks[0])
            else:
                dst = regs_of(toks[0]); src = sum((regs_of(x) for x in toks[1:]), [])
                if 'd16' in op: src += dst
        else:
            if op.startswith(('s_cmp', 's_cbranch', 's_branch', 's_barrier', 's_endpgm', 's_setprio', 's_sleep')):
                src = sum((regs_of(x) for x in toks), [])
            else:
                dst = regs_of(toks[0]) if toks else []
                src = sum((regs_of(x) for x in toks[1:]), [])
                if 'saveexec' in op: dst += [('s', 'exec')]
        need = 0
        def req(t0, ws):
            nonlocal need
            need = max(need, t0 + ws + 1 - self.t)
        vsrc = [r for r in src if r[0] in 'va']
        vdst = [r for r in dst if r[0] in 'va']
        ssrc = [r for r in src if r[0] == 's']
        W = {2:5, 4:8, 8:12, 16:20}
        if is_mfma:
            passes = 8 if '32x32' in op else 4
            for r in src:
                if r in self.w_valu: req(self.w_valu[r], 2)
            for r in A + B:
                if r in self.w_mfma: req(self.w_mfma[r][0], W[self.w_mfma[r][1]])
            for r in C:
                if r in self.w_mfma:
                    t0, p, full = self.w_mfma[r][0], self.w_mfma[r][1], self.w_mfma[r][2]
                    if not (full == tuple(C) and p == passes): req(t0, {2:4,4:6,8:10,16:18}[p])
            for r in dst:
                if r in self.w_mfma and r not in C:
                    t0, p, full = self.w_mfma[r]
                    if full != tuple(dst): req(t0, {2:4,4:6,8:10,16:18}[p])
            req(self.w_exec_valu, 4)
        else:
            if is_valu or is_ds or is_vmem:
                for r in vsrc + vdst:
                    if r in self.w_mfma: req(self.w_mfma[r][0], W[self.w_mfma[r][1]])
            if is_valu:
                for r in vdst:
                    if r in self.r_mfmaC: req(self.r_mfmaC[r][0], {2:1,4:3,8:7,16:15}[self.r_mfmaC[r][1]])
                    if r in self.st_data: req(self.st_data[r], 2)
                if op not in TRANS:
                    for r in vsrc:
                        if r in self.w_trans: req(self.w_trans[r], 1)
                if op.startswith('v_permlane'):
                    for r in vsrc:
                        if r in self.w_valu: req(self.w_valu[r], 2)
                    req(self.w_exec_valu, 4)
                if op.startswith(('v_readfirstlane', 'v_readlane')):
                    for r in vsrc:
                        if r in self.w_valu: req(self.w_valu[r], 1)
                    req(self.w_exec_valu, 4)
                if 'dpp' in rest or 'row_' in rest or 'quad_perm' in rest:
                    for r in vsrc:
                        if r in self.w_valu: req(self.w_valu[r], 2)
                for r in ssrc:
                    if r in self.w_sgpr_valu: req(self.w_sgpr_valu[r], 2)
            if is_ds or is_vmem:
                for r in vdst:
                    if r in self.st_data: req(self.st_data[r], 1)
                for r in vsrc:
                    if r in self.w_trans: req(self.w_trans[r], 1)
            if is_vmem:
                for r in ssrc:
                    if r in self.w_sgpr_valu: req(self.w_sgpr_valu[r], 5)
                if is_lds_dma: req(self.w_m0, 1)
            if not (is_valu or is_ds or is_vmem):
                for r in ssrc:
                    if r in self.w_sgpr_valu: req(self.w_sgpr_valu[r], 1)
        self._nop(need)
        self.lines.append(s)
        t = self.t
        if is_mfma:
            for r in dst:
                self.w_mfma[r] = (t, passes, tuple(dst)); self.w_valu.pop(r, None); self.w_trans.pop(r, None)
            for r in C: self.r_mfmaC[r] = (t, passes)
        elif is_valu:
            for r in dst:
                if r[0] in 'va':
                    self.w_valu[r] = t; self.w_mfma.pop(r, None)
                    if op in TRANS: self.w_trans[r] = t
                    else: self.w_trans.pop(r, None)
                else:
                    self.w_sgpr_valu[r] = t
                    if r == ('s', 'exec'): self.w_exec_valu = t
        else:
            for r in dst:
                if r == ('s', 'm0'): self.w_m0 = t
                if r[0] == 's': self.w_sgpr_valu.pop(r, None)
                if r[0] in 'va':
                    self.w_valu.pop(r, None); self.w_mfma.pop(r, None); self.w_trans.pop(r, None)
            if is_store and re.search(r'x[34]', op):
                for r in regs_of(toks[0] if op.startswith('buffer') else toks[1]): self.st_data[r] = t
        self.t += 1
        tok = None
        if is_ds:
            tok = self.lg_issued; self.lg_issued += 1
        elif is_vmem:
            tok = self.vm_issued; self.vm_issued += 1
        elif op.startswith(('s_load', 's_memtime', 's_memrealtime', 's_buffer_load')):
            self.lg_issued += 2
        return tok
    prof = False
    def stamp(self, k):
        if not Asm.prof: return
        self.lines.append(f's_memtime s[{64+2*k}:{65+2*k}]')
        self.lg_issued += 2; self.t += 1
        self.nstamp = max(getattr(self, 'nstamp', 0), k + 1)
    def stamp_begin(self):
        if not Asm.prof: return
        self.lines.append('s_memrealtime s[92:93]')
        self.stamp(0)
    def stamp_end(self, kid, ws_lo, wave):
        if not Asm.prof: return
        self.lines.append('s_waitcnt vmcnt(0)')
        self.lines.append('s_memtime s[90:91]')
        self.lines.append('s_memrealtime s[94:95]')
        self.lines.append('s_waitcnt lgkmcnt(0)')
        L = self.lines
        L.append(f's_add_u32 s4, s{ws_lo}, {(64 << 20) + kid * (1 << 20)}')
        L.append(f's_addc_u32 s5, s{ws_lo+1}, 0')
        L.append('s_mov_b32 s6, 0x100000'); L.append('s_mov_b32 s7, 0x20000')
        L.append(f's_lshl_b32 s8, s2, 3'); L.append(f's_add_u32 s8, s8, s{wave}'); L.append('s_lshl_b32 s8, s8, 6')
        L.append('v_mov_b32 v1, 0')
        for k in range(1, 14):
            L.append(f's_sub_u32 s9, s{64+2*k}, s64'); L.append('v_mov_b32 v2, s9')
            L.append(f'buffer_store_dword v2, v1, s[4:7], s8 offen offset:{4*k}')
        L.append('v_mov_b32 v2, s92'); L.append('buffer_store_dword v2, v1, s[4:7], s8 offen offset:56')
        L.append('v_mov_b32 v2, s94'); L.append('buffer_store_dword v2, v1, s[4:7], s8 offen offset:60')
    def many(self, txt):
        for l in txt.strip().split('\n'):
            l = l.strip()
            if not l or l.startswith(';'): continue
            if l.endswith(':'): self.label(l[:-1])
            else: self.i(l)

def vr(b, n=1):
    return f'v{b}' if n == 1 else f'v[{b}:{b+n-1}]'
def ar(b, n=1):
    return f'a{b}' if n == 1 else f'a[{b}:{b+n-1}]'
def sr(b, n=1):
    return f's{b}' if n == 1 else f's[{b}:{b+n-1}]'

class RegAlloc:
    def __init__(self, start, limit):
        self.n = start; self.limit = limit; self.hi = start
    def get(self, cnt=1, align=1):
        self.n = (self.n + align - 1) // align * align
        b = self.n; self.n += cnt
        assert self.n <= self.limit, f'out of registers {self.n} > {self.limit}'
        self.hi = max(self.hi, self.n)
        return b
    def mark(self): return self.n
    def release(self, m): self.n = m

def kd(name, vgpr, sgpr=96, accum=None):
    if accum is None: accum = min(256, (vgpr + 3) // 4 * 4)
    return f'''.section .rodata,"a"
.p2align 6
.amdhsa_kernel {name}
  .amdhsa_next_free_vgpr {vgpr}
  .amdhsa_next_free_sgpr {sgpr}
  .amdhsa_accum_offset {accum}
  .amdhsa_group_segment_fixed_size 0
  .amdhsa_kernarg_size 88
  .amdhsa_user_sgpr_count 2
  .amdhsa_user_sgpr_kernarg_segment_ptr 1
  .amdhsa_system_sgpr_workgroup_id_x 1
.end_amdhsa_kernel
.text
'''
```

```python
from asmlib import *
from layout import *

ST = ''

def srd(a, d, lo, hi, nrec):
    if lo != d: a.i(f's_mov_b32 s{d}, s{lo}')
    if hi != d + 1: a.i(f's_mov_b32 s{d+1}, s{hi}')
    a.i(f's_mov_b32 s{d+2}, {nrec}')
    a.i(f's_mov_b32 s{d+3}, 0x20000')

def add64(a, d, lo, off):
    a.i(f's_add_u32 s{d}, s{lo}, {off}')
    a.i(f's_addc_u32 s{d+1}, s{lo+1}, 0')

def hedgehog(a, jobs, sC, T):
    E = [T + 26 * k for k in range(len(jobs))]
    M = [e + 18 for e in E]
    S = [e + 20 for e in E]
    U = [e + 22 for e in E]
    n = len(jobs)
    for k, (p, o) in enumerate(jobs):
        a.i(f'v_max3_f32 v{M[k]}, v{p}, v{p+1}, v{p+2}')
        a.i(f'v_max3_f32 v{M[k]+1}, -v{p}, -v{p+1}, -v{p+2}')
        for j in (3, 5, 7):
            a.i(f'v_max3_f32 v{M[k]}, v{M[k]}, v{p+j}, v{p+j+1}')
            a.i(f'v_max3_f32 v{M[k]+1}, v{M[k]+1}, -v{p+j}, -v{p+j+1}')
    for k in range(n): a.i(f'v_permlane32_swap_b32 v{M[k]}, v{M[k]+1}')
    for k in range(n): a.i(f'v_max_f32 v{M[k]}, v{M[k]}, v{M[k]+1}')
    for k in range(n): a.i(f'v_mul_f32 v{M[k]}, s{sC+1}, v{M[k]}')
    for k in range(n): a.i(f'v_mov_b32 v{M[k]+1}, v{M[k]}')
    for k in range(n): a.i(f'v_permlane32_swap_b32 v{M[k]}, v{M[k]+1}')
    for k, (p, o) in enumerate(jobs):
        for j in range(9):
            pj = p + j
            pe = pj & ~1
            sel = pj & 1
            a.i(f'v_pk_fma_f32 v[{E[k]+2*j}:{E[k]+2*j+1}], v[{pe}:{pe+1}], s[{sC}:{sC+1}], v[{M[k]}:{M[k]+1}] op_sel:[{sel},0,0] op_sel_hi:[{sel},1,1]')
        for j in range(18):
            a.i(f'v_exp_f32 v{E[k]+j}, v{E[k]+j}')
    for k in range(n):
        e = E[k]
        a.i(f'v_pk_add_f32 v[{S[k]}:{S[k]+1}], v[{e}:{e+1}], v[{e+2}:{e+3}]')
        a.i(f'v_pk_add_f32 v[{U[k]}:{U[k]+1}], v[{e+4}:{e+5}], v[{e+6}:{e+7}]')
        a.i(f'v_pk_add_f32 v[{U[k]+2}:{U[k]+3}], v[{e+8}:{e+9}], v[{e+10}:{e+11}]')
        a.i(f'v_pk_add_f32 v[{S[k]}:{S[k]+1}], v[{S[k]}:{S[k]+1}], v[{e+12}:{e+13}]')
        a.i(f'v_pk_add_f32 v[{U[k]}:{U[k]+1}], v[{U[k]}:{U[k]+1}], v[{e+14}:{e+15}]')
        a.i(f'v_pk_add_f32 v[{U[k]+2}:{U[k]+3}], v[{U[k]+2}:{U[k]+3}], v[{e+16}:{e+17}]')
        a.i(f'v_pk_add_f32 v[{S[k]}:{S[k]+1}], v[{S[k]}:{S[k]+1}], v[{U[k]}:{U[k]+1}]')
        a.i(f'v_pk_add_f32 v[{S[k]}:{S[k]+1}], v[{S[k]}:{S[k]+1}], v[{U[k]+2}:{U[k]+3}]')
    for k in range(n): a.i(f'v_permlane32_swap_b32 v{S[k]}, v{S[k]+1}')
    for k in range(n): a.i(f'v_add_f32 v{S[k]}, v{S[k]}, v{S[k]+1}')
    for k in range(n): a.i(f'v_rcp_f32 v{S[k]}, v{S[k]}')
    for k in range(n): a.i(f'v_mov_b32 v{S[k]+1}, v{S[k]}')
    for k in range(n): a.i(f'v_permlane32_swap_b32 v{S[k]}, v{S[k]+1}')
    for k, (p, o) in enumerate(jobs):
        for j in range(9):
            e = E[k] + 2 * j
            a.i(f'v_pk_mul_f32 v[{e}:{e+1}], v[{e}:{e+1}], v[{S[k]}:{S[k]+1}]')
        for j in range(9):
            e = E[k] + 2 * j
            a.i(f'v_cvt_pk_bf16_f32 v{o+j}, v{e}, v{e+1}')

def wphi_addr(a, vP, vP2, vl, t0, t1, sOOB):
    a.i(f'v_bfe_u32 v{t0}, v{vl}, 3, 2')
    a.i(f'v_and_b32 v{t1}, 3, v{vl}')
    a.i(f'v_lshl_add_u32 v{t0}, v{t0}, 2, v{t1}')
    a.i(f'v_cmp_gt_u32 vcc, 9, v{t0}')
    a.i(f'v_bfe_u32 v{t1}, v{vl}, 2, 1')
    a.i(f'v_mad_u32_u24 v{t0}, v{t1}, 9, v{t0}')
    a.i(f'v_lshlrev_b32 v{t0}, 1, v{t0}')
    a.i(f'v_mov_b32 v{vP2}, s{sOOB}')
    a.i(f'v_cndmask_b32 v{t0}, v{vP2}, v{t0}, vcc')
    a.i(f'v_lshrrev_b32 v{t1}, 5, v{vl}')
    a.i(f'v_mul_u32_u24 v{vP}, 288, v{t1}')
    a.i(f'v_add_u32 v{vP}, v{vP}, v{t0}')
    a.i(f'v_cmp_gt_u32 vcc, 32, v{vl}')
    a.i(f'v_add_u32 v{t0}, 576, v{t0}')
    a.i(f'v_cndmask_b32 v{vP2}, v{vP2}, v{t0}, vcc')

def wphi_load(a, F1, F2, HI, vP, vP2, sP, sOff):
    for j in range(8):
        if j & 1: a.i(f'buffer_load_short_d16_hi v{HI+j//2}, v{vP}, s[{sP}:{sP+3}], s{sOff} offen offset:{36*j}')
        else: a.i(f'buffer_load_ushort v{F1+j//2}, v{vP}, s[{sP}:{sP+3}], s{sOff} offen offset:{36*j}')
    a.i(f'buffer_load_ushort v{F2}, v{vP2}, s[{sP}:{sP+3}], s{sOff} offen')
    return a.i(f'buffer_load_short_d16_hi v{HI+4}, v{vP2}, s[{sP}:{sP+3}], s{sOff} offen offset:36')

def wphi_merge(a, F1, F2, HI, sMask):
    for j in range(4): a.i(f'v_and_or_b32 v{F1+j}, v{HI+j}, s{sMask}, v{F1+j}')
    a.i(f'v_and_or_b32 v{F2}, v{HI+4}, s{sMask}, v{F2}')

XB = [0, 16384, 32768]
WB0 = 49152
sX, sW, sO, sP, sG = 16, 20, 24, 28, 32
sWave, sRow, sC_, sHH = 36, 37, 38, 39
sT0, sT1, sT2, sT3 = 40, 41, 42, 43
sSoW, sSoX, sMW, sMX = 44, 45, 46, 47
sK = 48
sOOB = 50

def mainloop(a, NT, gate, RS, nW, vWoff, vXoff, vWb, vXr, vG, ACC, POOL, XF, GOFS, extra_after_prologue=None, D=7, P=8):
    WBUF = 64 * RS
    NM = NT + (1 if gate else 0)
    def dma_list(st):
        b = st % 3
        L = []
        for n in range(nW): L.append(('W', n, WB0 + b * WBUF + n * 1024))
        for n in range(4): L.append(('X', n, XB[b] + n * 1024))
        return L[nW:nW+2] + L[:nW//2] + L[nW+2:] + L[nW//2:nW]
    last_dma = {}
    def dma_setup(st):
        a.i(f's_mov_b32 s{sSoW}, {st * 64 * 3456}')
        a.i(f's_mov_b32 s{sSoX}, {st * 128}')
    def dma(st, item):
        k, n, dst = item
        if k == 'W':
            a.i(f's_add_u32 m0, s{sMW}, {dst}')
            last_dma[st] = a.i(f'buffer_load_dwordx4 v{vWoff+n}, s[{sW}:{sW+3}], s{sSoW} offen lds')
        else:
            a.i(f's_add_u32 m0, s{sMX}, {dst}')
            last_dma[st] = a.i(f'buffer_load_dwordx4 v{vXoff+n}, s[{sX}:{sX+3}], s{sSoX} offen lds')
    for st in range(3):
        dma_setup(st)
        for it in dma_list(st): dma(st, it)
        if st == 0 and extra_after_prologue: extra_after_prologue(0)
    if extra_after_prologue: extra_after_prologue(1)
    total = 36 * NM
    tokW = {}; tokX = {}
    def issue_reads(q):
        if q >= total: return
        step, m = divmod(q, NM)
        st, s = divmod(step, 4)
        b = st % 3
        if m == 0:
            xf = XF + 4 * (step & 1)
            tokX[step] = a.i(f'ds_read_b128 v[{xf}:{xf+3}], v{vXr+s} offset:{XB[b]}')
        f = POOL + 4 * (q % P)
        if m < NT:
            for rd in range(2):
                tokW[q] = a.i(f'ds_read_b64_tr_b16 v[{f+2*rd}:{f+2*rd+1}], v{vWb+b} offset:{(16*s+4*rd)*RS + 32*m}')
        else:
            tokW[q] = a.i(f'ds_read_b128 v[{f}:{f+3}], v{vG} offset:{128*st + 32*s}')
    a.stamp(1)
    a.wait_vm(last_dma[0])
    a.i('s_barrier')
    a.stamp(2)
    for q in range(D): issue_reads(q)
    for q in range(total):
        step, m = divmod(q, NM)
        st, s = divmod(step, 4)
        ql = q - st * 4 * NM
        a.wait_lg(max(tokW[q], tokX[step]))
        f = POOL + 4 * (q % P)
        xf = XF + 4 * (step & 1)
        acc = ACC + 16 * m
        c = '0' if step == 0 else f'v[{acc}:{acc+15}]'
        a.i(f'v_mfma_f32_32x32x16_bf16 v[{acc}:{acc+15}], v[{f}:{f+3}], v[{xf}:{xf+3}], {c}')
        b1 = 4 * NM - D
        if ql == b1 and st < 8:
            a.wait_vm(last_dma[st + 1])
            a.i('s_barrier')
        issue_reads(q + D)
        if 1 <= st <= 6:
            L = dma_list(st + 2)
            if ql == 0: dma_setup(st + 2)
            for k, it in enumerate(L):
                if k * (b1 - 1) // len(L) == ql: dma(st + 2, it)
        if ql == 4 * NM - 1 and st + 3 <= 8:
            a.i('s_barrier')
        if ql == 4 * NM - 1: a.stamp(3 + st)

def gen_k1(name='k1_kernel'):
    a = Asm()
    a.raw(f'.globl {name}\n.p2align 8\n.type {name},@function\n{name}:')
    a.many(f'''
    s_cmp_ge_u32 s2, 256
    s_cbranch_scc1 L_{name}_end''')
    a.stamp_begin()
    a.many(f'''
    s_load_dwordx4 s[4:7], s[0:1], 0
    s_load_dwordx4 s[8:11], s[0:1], 32
    s_load_dwordx2 s[12:13], s[0:1], 56
    s_load_dwordx2 s[14:15], s[0:1], 80
    v_lshrrev_b32 v1, 6, v0
    v_and_b32 v0, 63, v0
    s_and_b32 s{sT0}, s2, 7
    v_readfirstlane_b32 s{sWave}, v1
    s_lshr_b32 s{sT1}, s2, 3
    s_and_b32 s{sHH}, s{sT0}, 1
    s_lshr_b32 s{sT0}, s{sT0}, 1
    s_lshl_b32 s{sT0}, s{sT0}, 2
    s_and_b32 s{sRow}, s{sT1}, 3
    s_add_u32 s{sRow}, s{sRow}, s{sT0}
    s_bfe_u32 s{sC_}, s{sT1}, 0x20002
    s_mov_b32 s{sOOB}, {OOB}
    s_lshl_b32 s{sMX}, s{sWave}, 12
    ''')
    R = RegAlloc(1, 256)
    vXoff = R.get(4); vXr = R.get(4); vWb = R.get(3); vG = R.get(1)
    vWoff = R.get(9)
    t = [R.get(1) for _ in range(6)]
    a.many(f'''
    v_lshrrev_b32 v{t[0]}, 3, v0
    v_lshrrev_b32 v{t[1]}, 4, v0
    v_and_b32 v{t[2]}, 7, v0
    s_lshl_b32 s{sT2}, s{sWave}, 5
    v_add_u32 v{t[0]}, s{sT2}, v{t[0]}
    v_mul_u32_u24 v{t[0]}, 1152, v{t[0]}
    v_xor_b32 v{t[3]}, v{t[2]}, v{t[1]}
    v_lshl_add_u32 v{vXoff}, v{t[3]}, 4, v{t[0]}
    v_xor_b32 v{t[3]}, 4, v{t[3]}
    v_lshl_add_u32 v{vXoff+1}, v{t[3]}, 4, v{t[0]}
    v_add_u32 v{vXoff+1}, {8*1152}, v{vXoff+1}
    v_add_u32 v{vXoff+2}, {16*1152}, v{vXoff}
    v_add_u32 v{vXoff+3}, {16*1152}, v{vXoff+1}
    v_and_b32 v{t[0]}, 31, v0
    v_lshrrev_b32 v{t[1]}, 5, v0
    v_bfe_u32 v{t[2]}, v0, 1, 3
    v_xor_b32 v{t[2]}, v{t[2]}, v{t[1]}
    v_lshlrev_b32 v{t[0]}, 7, v{t[0]}
    v_add_u32 v{t[0]}, s{sMX}, v{t[0]}
    ''')
    for s in range(4):
        if s == 0: a.i(f'v_lshl_add_u32 v{vXr}, v{t[2]}, 4, v{t[0]}')
        else:
            a.i(f'v_xor_b32 v{t[3]}, {2*s}, v{t[2]}')
            a.i(f'v_lshl_add_u32 v{vXr+s}, v{t[3]}, 4, v{t[0]}')
    vKrow, vH, vA8 = t[3], t[4], t[5]
    a.many(f'''
    v_bfe_u32 v{vKrow}, v0, 2, 2
    v_lshl_add_u32 v{vKrow}, v{t[1]}, 3, v{vKrow}
    v_and_b32 v{vH}, 1, v0
    v_bfe_u32 v{vA8}, v0, 4, 1
    v_bfe_u32 v{t[0]}, v0, 1, 1
    v_lshl_add_u32 v{vA8}, v{vA8}, 1, v{t[0]}
    v_lshlrev_b32 v{vA8}, 3, v{vA8}
    v_lshlrev_b32 v{vG}, 4, v{t[1]}
    s_waitcnt lgkmcnt(0)
    s_mul_i32 s{sT2}, s{sRow}, {128*1152}
    ''')
    add64(a, sX, 4, f's{sT2}')
    srd(a, sX, sX, sX+1, 128*1152)
    a.i(f's_cmp_ge_u32 s{sT1}, 16')
    a.i(f's_cbranch_scc1 L_{name}_V')
    mark = R.mark()
    RS = 576
    a.many(f'''
    s_mul_i32 s{sT2}, s{sC_}, 1152
    s_cmp_eq_u32 s{sC_}, 3
    s_cselect_b32 s{sT2}, 0, s{sT2}
    s_cselect_b32 s{sW}, s8, s6
    s_cselect_b32 s{sW+1}, s9, s7
    s_mul_i32 s{sT3}, s{sHH}, 576
    s_add_u32 s{sT2}, s{sT2}, s{sT3}
    s_add_u32 s{sW}, s{sW}, s{sT2}
    s_addc_u32 s{sW+1}, s{sW+1}, 0
    s_sub_u32 s{sW+2}, {576*3456}, s{sT2}
    s_mov_b32 s{sW+3}, 0x20000
    s_mul_i32 s{sMW}, s{sWave}, {9*1024}
    s_mul_i32 s{sT2}, s{sWave}, {9*64}
    v_add_u32 v{t[0]}, s{sT2}, v0
    s_mov_b32 s{sT3}, 3456
    ''')
    for n in range(9):
        a.many(f'''
        v_add_u32 v{t[1]}, {64*n}, v{t[0]}
        v_mul_u32_u24 v{t[2]}, 1821, v{t[1]}
        v_lshrrev_b32 v{t[2]}, 16, v{t[2]}
        v_mul_u32_u24 v{vWoff+n}, 36, v{t[2]}
        v_sub_u32 v{t[1]}, v{t[1]}, v{vWoff+n}
        v_lshlrev_b32 v{t[1]}, 4, v{t[1]}
        v_mad_u32_u24 v{vWoff+n}, v{t[2]}, s{sT3}, v{t[1]}
        ''')
    a.many(f'''
    v_mul_u32_u24 v{t[0]}, {RS}, v{vKrow}
    v_mul_u32_u24 v{t[1]}, 288, v{vH}
    v_add3_u32 v{t[0]}, v{t[0]}, v{t[1]}, v{vA8}
    v_add_u32 v{vWb}, {WB0}, v{t[0]}
    v_add_u32 v{vWb+1}, {WB0 + 64*RS}, v{t[0]}
    v_add_u32 v{vWb+2}, {WB0 + 128*RS}, v{t[0]}
    ''')
    XF = R.get(8, 4); POOL = R.get(32, 4); ACC = R.get(144, 4)
    vo = [R.get(1) for _ in range(3)]
    def extraR(phase):
        if phase != 1: return
        a.many(f'''
        s_cmp_eq_u32 s{sC_}, 1
        s_cselect_b32 s{sT2}, {KA_OFF}, {QA_OFF}
        s_cmp_eq_u32 s{sC_}, 2
        s_cselect_b32 s{sT2}, {VA_OFF}, s{sT2}
        s_mov_b32 s{sT3}, {QK_BLK}
        s_mov_b32 s{sO+2}, {QK_SZ}
        s_cselect_b32 s{sT3}, {V_BLK}, s{sT3}
        s_cselect_b32 s{sO+2}, {VA_SZ}, s{sO+2}
        s_cmp_eq_u32 s{sC_}, 3
        s_cselect_b32 s{sT2}, {QB_OFF}, s{sT2}
        s_add_u32 s{sO}, s14, s{sT2}
        s_addc_u32 s{sO+1}, s15, 0
        s_mov_b32 s{sO+3}, 0x20000
        s_lshl_b32 s{sT0}, s{sHH}, 10
        s_lshl_b32 s{sT1}, s{sRow}, 2
        s_add_u32 s{sT0}, s{sT0}, s{sT1}
        s_add_u32 s{sT0}, s{sT0}, s{sWave}
        s_mul_i32 s51, s{sT0}, s{sT3}
        s_lshl_b32 s52, s{sT3}, 6
        s_lshl_b32 s{sT3}, s{sT3}, 9
        v_lshrrev_b32 v{t[0]}, 5, v0
        v_mul_lo_u32 v{t[0]}, v{t[0]}, s{sT3}
        v_and_b32 v{t[1]}, 31, v0
        v_bfe_u32 v{t[2]}, v0, 2, 1
        v_bfe_u32 v{t[3]}, v0, 3, 1
        v_and_b32 v{t[4]}, 0x13, v0
        v_lshl_add_u32 v{t[4]}, v{t[2]}, 3, v{t[4]}
        v_lshl_add_u32 v{t[4]}, v{t[3]}, 2, v{t[4]}
        s_cmp_eq_u32 s{sC_}, 1
        s_cselect_b64 vcc, -1, 0
        v_cndmask_b32 v{t[4]}, v{t[1]}, v{t[4]}, vcc
        v_lshl_add_u32 v{vo[0]}, v{t[4]}, 4, v{t[0]}
        v_add_u32 v{vo[1]}, 512, v{vo[0]}
        v_lshl_add_u32 v{vo[2]}, v{t[4]}, 2, v{t[0]}
        v_add_u32 v{vo[2]}, 1024, v{vo[2]}
        s_cmp_lg_u32 s{sC_}, 2
        s_cbranch_scc1 L_{name}_nv
        v_xor_b32 v{vo[1]}, 64, v{vo[1]}
        v_xor_b32 v{t[3]}, 1, v{t[3]}
        v_bfe_u32 v{t[2]}, v0, 4, 1
        v_and_b32 v{t[4]}, 7, v0
        v_lshl_add_u32 v{t[4]}, v{t[2]}, 3, v{t[4]}
        v_lshl_add_u32 v{t[4]}, v{t[3]}, 4, v{t[4]}
        v_lshl_add_u32 v{vo[2]}, v{t[4]}, 3, v{t[0]}
        v_add_u32 v{vo[2]}, 1024, v{vo[2]}
        L_{name}_nv:
        s_mov_b32 s{sK}, {f2u(QSCALE)}
        s_mov_b32 s{sK+1}, {f2u(QSCALE)}
        ''')
    mainloop(a, 9, False, RS, 9, vWoff, vXoff, vWb, vXr, vG, ACC, POOL, XF, 0, extraR)
    a.flush_hazards()
    a.i(f's_cmp_lg_u32 s{sC_}, 0')
    a.i(f's_cbranch_scc1 L_{name}_noscale')
    for j in range(72):
        a.i(f'v_pk_mul_f32 v[{ACC+2*j}:{ACC+2*j+1}], v[{ACC+2*j}:{ACC+2*j+1}], s[{sK}:{sK+1}]')
    a.label(f'L_{name}_noscale')
    a.i(f's_cmp_eq_u32 s{sC_}, 2')
    a.i(f's_cbranch_scc1 L_{name}_stv')
    for isv in (0, 1):
        if isv: a.label(f'L_{name}_stv')
        for u in range(8):
            b = ACC + 18 * u
            for j in range(9):
                a.i(f'v_cvt_pk_bf16_f32 v{b+j}, v{b+2*j}, v{b+2*j+1}')
            if isv: a.i(f'v_mov_b32 v{b+9}, 0x3f80')
            a.i(f'buffer_store_dwordx4 v[{b}:{b+3}], v{vo[0]}, s[{sO}:{sO+3}], s51 offen {ST}')
            a.i(f'buffer_store_dwordx4 v[{b+4}:{b+7}], v{vo[1]}, s[{sO}:{sO+3}], s51 offen {ST}')
            if isv: a.i(f'buffer_store_dwordx2 v[{b+8}:{b+9}], v{vo[2]}, s[{sO}:{sO+3}], s51 offen {ST}')
            else: a.i(f'buffer_store_dword v{b+8}, v{vo[2]}, s[{sO}:{sO+3}], s51 offen {ST}')
            if u < 7: a.i(f's_add_u32 s51, s51, s52')
        a.stamp(12)
        a.stamp_end(0, 14, sWave)
        a.i('s_endpgm')
    hiR = R.hi
    a.label(f'L_{name}_V')
    a.reset_state()
    R.release(mark)
    RS = 320
    GOFS = WB0 + 3 * 64 * RS
    a.many(f'''
    s_lshl_b32 s{sT0}, s{sHH}, 2
    s_add_u32 s{sC_}, s{sC_}, s{sT0}
    s_mul_i32 s{sT2}, s{sC_}, 144
    s_add_u32 s{sT2}, s{sT2}, 1152
    s_add_u32 s{sW}, s8, s{sT2}
    s_addc_u32 s{sW+1}, s9, 0
    s_sub_u32 s{sW+2}, {576*3456}, s{sT2}
    s_mov_b32 s{sW+3}, 0x20000
    s_mul_i32 s{sMW}, s{sWave}, {5*1024}
    s_mul_i32 s{sT2}, s{sWave}, {16*3456}
    s_mov_b32 s{sT3}, 3456
    v_mov_b32 v{vWoff+8}, s{sOOB}
    ''')
    for n in range(5):
        a.many(f'''
        v_add_u32 v{t[1]}, {64*n}, v0
        v_mul_u32_u24 v{t[2]}, 3277, v{t[1]}
        v_lshrrev_b32 v{t[2]}, 16, v{t[2]}
        v_mul_u32_u24 v{t[0]}, 20, v{t[2]}
        v_sub_u32 v{t[1]}, v{t[1]}, v{t[0]}
        v_mul_u32_u24 v{t[2]}, s{sT3}, v{t[2]}
        v_lshl_add_u32 v{t[2]}, v{t[1]}, 4, v{t[2]}
        v_add_u32 v{t[2]}, s{sT2}, v{t[2]}
        v_add_u32 v{t[0]}, {1152-160}, v{t[2]}
        v_cmp_lt_u32 vcc, 9, v{t[1]}
        v_cndmask_b32 v{t[2]}, v{t[2]}, v{t[0]}, vcc
        v_cmp_eq_u32 vcc, 9, v{t[1]}
        v_cndmask_b32 v{t[2]}, v{t[2]}, v{vWoff+8}, vcc
        v_cmp_eq_u32 vcc, 19, v{t[1]}
        v_cndmask_b32 v{vWoff+n}, v{t[2]}, v{vWoff+8}, vcc
        ''')
    a.many(f'''
    v_mul_u32_u24 v{t[0]}, {RS}, v{vKrow}
    v_mul_u32_u24 v{t[1]}, 160, v{vH}
    v_add3_u32 v{t[0]}, v{t[0]}, v{t[1]}, v{vA8}
    v_add_u32 v{vWb}, {WB0}, v{t[0]}
    v_add_u32 v{vWb+1}, {WB0 + 64*RS}, v{t[0]}
    v_add_u32 v{vWb+2}, {WB0 + 128*RS}, v{t[0]}
    v_add_u32 v{vG}, {GOFS}, v{vG}
    ''')
    srd(a, sG, 12, 13, 1152)
    srd(a, sP, 10, 11, 32*648)
    XF = R.get(8, 4); POOL = R.get(32, 4); ACC = R.get(96, 4)
    T = R.get(52, 4); F1 = T; F2 = T + 16
    vP = R.get(1); vP2 = R.get(1)
    def extraV(phase):
        if phase == 0:
            a.i(f'v_lshlrev_b32 v{t[0]}, 4, v0')
            a.i(f's_lshl_b32 s{sT0}, s{sWave}, 10')
            a.i(f's_add_u32 m0, s{sT0}, {GOFS}')
            tok = a.i(f'buffer_load_dwordx4 v{t[0]}, s[{sG}:{sG+3}], s{sT0} offen lds')
            extraV.gtok = tok
            return
        wphi_addr(a, vP, vP2, 0, t[0], t[1], sOOB)
        a.i(f's_mul_i32 s{sT0}, s{sC_}, {4*648}')
        for H in range(4):
            for z in range(1, 4): a.i(f'v_mov_b32 v{F2+4*H+z}, 0')
            extraV.ptok = wphi_load(a, F1+4*H, F2+4*H, T+32+5*H, vP, vP2, sP, sT0)
            if H < 3: a.i(f's_add_u32 s{sT0}, s{sT0}, 648')
        a.wait_vm(extraV.gtok)
    mainloop(a, 5, True, RS, 5, vWoff, vXoff, vWb, vXr, vG, ACC, POOL, XF, GOFS, extraV)
    a.i(f's_mov_b32 s{sK}, {f2u(LOG2E)}')
    a.i(f's_mov_b32 s{sK+1}, {f2u(-LOG2E)}')
    a.i('s_barrier')
    for H in range(4):
        b = ACC + 18 * H
        for j in range(9): a.i(f'v_cvt_pk_bf16_f32 v{b+j}, v{b+2*j}, v{b+2*j+1}')
        a.i(f'v_mov_b32 v{b+9}, 0x3f80')
        a.i(f'v_mov_b32 v{b+10}, 0')
        a.i(f'v_mov_b32 v{b+11}, 0')
    for H in range(4):
        b = ACC + 18 * H
        for j in range(4): a.i(f'v_permlane32_swap_b32 v{b+j}, v{b+4+j}')
    a.wait_vm(extraV.ptok)
    a.i(f's_mov_b32 s{sT0}, 0xffff0000')
    for H in range(4): wphi_merge(a, F1+4*H, F2+4*H, T+32+5*H, sT0)
    gl = t[5]
    a.i(f'v_mul_f32 v{gl}, s{sK+1}, v{ACC+80}')
    Dr = [XF, XF + 16, ACC + 80, R.get(16, 4)]
    for H in range(4):
        b = ACC + 18 * H
        a.i(f'v_mfma_f32_32x32x16_bf16 v[{Dr[H]}:{Dr[H]+15}], v[{F1+4*H}:{F1+4*H+3}], v[{b}:{b+3}], 0')
    for H in range(4):
        b = ACC + 18 * H
        a.i(f'v_mfma_f32_32x32x16_bf16 v[{Dr[H]}:{Dr[H]+15}], v[{F2+4*H}:{F2+4*H+3}], v[{b+8}:{b+11}], v[{Dr[H]}:{Dr[H]+15}]')
    vL = R.get(1); vLV = R.get(1)
    a.many(f'''
    v_exp_f32 v{gl}, v{gl}
    s_lshl_b32 s{sT0}, s{sRow}, 7
    s_lshl_b32 s{sT1}, s{sWave}, 5
    s_add_u32 s{sT0}, s{sT0}, s{sT1}
    s_lshl_b32 s{sT0}, s{sT0}, 2
    s_add_u32 s{sO}, s14, {G_OFF}
    s_addc_u32 s{sO+1}, s15, 0
    s_mov_b32 s{sO+2}, 8192
    s_mov_b32 s{sO+3}, 0x20000
    v_add_f32 v{gl}, 1.0, v{gl}
    v_rcp_f32 v{gl}, v{gl}
    v_and_b32 v{t[0]}, 31, v0
    v_lshlrev_b32 v{t[1]}, 2, v{t[0]}
    buffer_store_dword v{gl}, v{t[1]}, s[{sO}:{sO+3}], s{sT0} offen {ST}
    s_lshl_b32 s{sT1}, s{sWave}, 5
    v_add_u32 v{t[0]}, s{sT1}, v{t[0]}
    v_mul_u32_u24 v{t[0]}, 120, v{t[0]}
    v_lshrrev_b32 v{t[1]}, 5, v0
    v_mad_u32_u24 v{vL}, v{t[1]}, 40, v{t[0]}
    v_lshl_add_u32 v{vLV}, v{t[1]}, 4, v{t[0]}
    ''')
    for H in range(4):
        b = ACC + 18 * H
        o = H * 128 * 120 + 80
        a.i(f'ds_write_b64 v{vLV}, v[{b+4}:{b+5}] offset:{o}')
        a.i(f'ds_write_b64 v{vLV}, v[{b+6}:{b+7}] offset:{o+8}')
    a.i('s_mov_b64 exec, 0xffffffff00000000' if False else 's_mov_b32 exec_lo, 0')
    for H in range(4):
        b = ACC + 18 * H
        a.i(f'ds_write_b64 v{vLV}, v[{b+8}:{b+9}] offset:{H*128*120 + 80 + 16}')
    a.i('s_mov_b32 exec_lo, -1')
    for pair in range(2):
        jobs = [(Dr[2*pair+k], ACC + 18 * (2*pair+k)) for k in range(2)]
        a.wait_lg(a.last_lg())
        hedgehog(a, jobs, sK, T)
        for k in range(2):
            H = 2 * pair + k
            o = ACC + 18 * H
            for j in range(5):
                a.i(f'ds_write_b64 v{vL}, v[{o+2*j}:{o+2*j+1}] offset:{H*128*120 + 8*j}')
    a.many(f'''
    v_bfe_u32 v{t[0]}, v0, 4, 1
    v_bfe_u32 v{t[1]}, v0, 2, 2
    v_lshl_add_u32 v{t[0]}, v{t[0]}, 2, v{t[1]}
    v_lshrrev_b32 v{t[1]}, 5, v0
    v_lshlrev_b32 v{t[1]}, 1, v{t[1]}
    v_lshl_add_u32 v{t[0]}, v{t[0]}, 2, v{t[1]}
    s_lshl_b32 s{sT0}, s{sWave}, 7
    v_add_u32 v{t[0]}, s{sT0}, v{t[0]}
    v_mul_u32_u24 v{t[0]}, 120, v{t[0]}
    v_and_b32 v{t[1]}, 3, v0
    v_lshl_add_u32 v{t[0]}, v{t[1]}, 3, v{t[0]}
    s_lshl_b32 s{sT0}, s{sC_}, 2
    s_add_u32 s{sT0}, s{sT0}, s{sWave}
    s_lshl_b32 s{sT0}, s{sT0}, 4
    s_add_u32 s{sT0}, s{sT0}, s{sRow}
    s_mul_i32 s{sT0}, s{sT0}, {KVP_BLK}
    s_add_u32 s{sT0}, s{sT0}, {KVP_OFF}
    s_add_u32 s{sO}, s14, s{sT0}
    s_addc_u32 s{sO+1}, s15, 0
    s_mov_b32 s{sO+2}, {KVP_BLK}
    v_and_b32 v{t[1]}, 15, v0
    v_mul_u32_u24 v{t[1]}, 160, v{t[1]}
    v_lshrrev_b32 v{t[2]}, 4, v0
    v_lshl_add_u32 v{t[1]}, v{t[2]}, 4, v{t[1]}
    v_mov_b32 v{t[2]}, s{sOOB}
    v_cmp_gt_u32 vcc, 32, v0
    v_cndmask_b32 v{t[2]}, v{t[2]}, v{t[1]}, vcc
    s_waitcnt lgkmcnt(0)
    s_barrier
    ''')
    FR = T
    KV = XF
    toks = {}
    def rd_step(ts):
        fb = FR + 20 * (ts & 1)
        for k in range(5):
            co = 32 * k if k < 3 else 80 + 32 * (k - 3)
            for rd in range(2):
                toks[ts] = a.i(f'ds_read_b64_tr_b16 v[{fb+4*k+2*rd}:{fb+4*k+2*rd+1}], v{t[0]} offset:{(32*ts+rd)*120 + co}')
    rd_step(0); rd_step(1)
    for ts in range(4):
        a.wait_lg(toks[ts])
        fb = FR + 20 * (ts & 1)
        for ft in range(3):
            for dt in range(2):
                d = KV + 4 * (2 * ft + dt)
                c = '0' if ts == 0 else f'v[{d}:{d+3}]'
                a.i(f'v_mfma_f32_16x16x32_bf16 v[{d}:{d+3}], v[{fb+4*ft}:{fb+4*ft+3}], v[{fb+12+4*dt}:{fb+15+4*dt}], {c}')
        if ts + 2 < 4: rd_step(ts + 2)
    for ft in range(3):
        for dt in range(2):
            d = KV + 4 * (2 * ft + dt)
            va = t[2] if ft == 2 else t[1]
            a.i(f'buffer_store_dwordx4 v[{d}:{d+3}], v{va}, s[{sO}:{sO+3}], 0 offen offset:{dt*2560 + ft*64} {ST}')
    a.stamp(12)
    a.stamp_end(0, 14, sWave)
    a.label(f'L_{name}_end')
    a.i('s_endpgm')
    hi = max(hiR, R.hi)
    return a.text() + kd(name, hi), 159744, hi

if __name__ == '__main__':
    for x in range(2304): assert (x * 1821) >> 16 == x // 36
    for x in range(320): assert (x * 3277) >> 16 == x // 20
    txt, lds, hi = gen_k1()
    print(len(txt.split('\n')), 'lines; vgprs', hi)
```

```python
from asmlib import *
from layout import *
import k1
from k1 import srd, add64, hedgehog, wphi_addr, wphi_load, wphi_merge

KB, VB, KVL = 0, 20480, 40960
K2_LDS = 43008
NEG = f2u(-1e30)

def gen_k2(name='k2_kernel', fast=False):
    ST = k1.ST
    a = Asm()
    a.raw(f'.globl {name}\n.p2align 8\n.type {name},@function\n{name}:')
    sQA, sQB, sKA, sVA, sKV, sP, sGt, sO16, sO2 = 16, 20, 24, 28, 32, 36, 40, 44, 48
    sWave, sHead, sT8, sT0, sT1, sT2, sOOB, sVF, sTile = 52, 53, 54, 55, 56, 57, 58, 59, 60
    sK = 62
    a.many(f'''
    s_cmp_ge_u32 s2, 256
    s_cbranch_scc1 L_{name}_end''')
    a.stamp_begin()
    a.many(f'''
    s_load_dwordx2 s[10:11], s[0:1], 40
    s_load_dwordx2 s[14:15], s[0:1], 80
    v_lshrrev_b32 v1, 6, v0
    s_and_b32 s{sT0}, s2, 7
    s_lshr_b32 s{sT1}, s2, 3
    v_readfirstlane_b32 s{sWave}, v1
    s_and_b32 s{sHead}, s{sT0}, 1
    s_lshl_b32 s{sHead}, s{sHead}, 4
    s_lshr_b32 s{sT2}, s{sT1}, 1
    s_add_u32 s{sHead}, s{sHead}, s{sT2}
    s_and_b32 s{sT8}, s{sT0}, 6
    s_and_b32 s{sT1}, s{sT1}, 1
    s_add_u32 s{sT8}, s{sT8}, s{sT1}
    s_mov_b32 s{sOOB}, {OOB}
    s_cmp_eq_u32 s{sT8}, 0
    s_cselect_b32 s{sVF}, 8, 0
    s_lshl_b32 s{sTile}, s{sT8}, 3
    s_lshl_b32 s{sT0}, s{sWave}, 1
    s_add_u32 s{sTile}, s{sTile}, s{sT0}
    s_mov_b32 s{sK}, {f2u(LOG2E)}
    s_mov_b32 s{sK+1}, {f2u(-LOG2E)}
    ''')
    R = RegAlloc(1, 256)
    vT = R.get(1)
    vL16 = R.get(1); vL4 = R.get(1); vL4m = R.get(1)
    t = [R.get(1) for _ in range(6)]
    vK = R.get(1); vK2 = R.get(1); vV = R.get(4); vKV = R.get(1); vP = R.get(1); vP2 = R.get(1)
    G = R.get(2)
    QA = R.get(16, 4); QB = R.get(16, 4)
    F1 = R.get(4, 4); F2 = R.get(4, 4)
    S = R.get(144, 4)
    MD = R.get(16, 4); ME = R.get(16, 4)
    O = R.get(16, 4)
    a.many(f'''
    v_mov_b32 v{vT}, v0
    v_and_b32 v0, 63, v0
    v_lshlrev_b32 v{vL16}, 4, v0
    v_and_b32 v{t[0]}, 31, v0
    v_lshlrev_b32 v{vL4}, 2, v{t[0]}
    v_mov_b32 v{t[1]}, s{sOOB}
    v_cmp_gt_u32 vcc, 32, v0
    v_cndmask_b32 v{vL4m}, v{t[1]}, v{vL4}, vcc
    s_waitcnt lgkmcnt(0)
    s_mul_i32 s{sT0}, s{sHead}, {64*QK_BLK}
    s_add_u32 s{sT1}, s{sT0}, {KA_OFF}
    ''')
    add64(a, sKA, 14, f's{sT1}'); srd(a, sKA, sKA, sKA+1, 64*QK_BLK)
    a.i(f's_mul_i32 s{sT1}, s{sHead}, {64*V_BLK}')
    a.i(f's_add_u32 s{sT1}, s{sT1}, {VA_OFF}')
    add64(a, sVA, 14, f's{sT1}'); srd(a, sVA, sVA, sVA+1, 64*V_BLK)
    for (sR, blk, lbase, nval) in ((sKA, QK_BLK, KB, 9), (sVA, V_BLK, VB, 10)):
        a.i(f's_lshl_b32 s{sT1}, s{sT8}, 3')
        a.i(f's_sub_u32 s{sT1}, s{sT1}, 8')
        a.i(f's_mul_i32 s{sT1}, s{sT1}, {blk}')
        a.i(f's_lshl_b32 s{sT2}, s{sWave}, 10')
        a.i(f's_add_u32 s{sT1}, s{sT1}, s{sT2}')
        for k in range(5):
            a.i(f's_cmp_lt_i32 s{sT1}, 0')
            a.i(f's_cselect_b32 s61, s{sOOB}, s{sT1}')
            a.i(f'v_add_u32 v{t[k]}, s61, v{vL16}')
            a.i(f's_add_u32 m0, s{sT2}, {lbase + 4096*k}')
            a.i(f'buffer_load_dwordx4 v{t[k]}, s[{sR}:{sR+3}], 0 offen lds')
            if k < 4: a.i(f's_add_u32 s{sT1}, s{sT1}, 4096')
    tokKV_dma = a.last_vm()
    a.i(f's_add_u32 s{sT1}, s{sT0}, {QA_OFF}')
    add64(a, sQA, 14, f's{sT1}'); srd(a, sQA, sQA, sQA+1, 64*QK_BLK)
    a.i(f's_add_u32 s{sT1}, s{sT0}, {QB_OFF}')
    add64(a, sQB, 14, f's{sT1}'); srd(a, sQB, sQB, sQB+1, 64*QK_BLK)
    a.i(f's_mul_i32 s{sT1}, s{sTile}, {QK_BLK}')
    a.i(f's_add_u32 s{sT2}, s{sT1}, {QK_BLK}')
    for (sR, Q) in ((sQA, QA), (sQB, QB)):
        for x in range(2):
            so = sT1 if x == 0 else sT2
            a.i(f'buffer_load_dwordx4 v[{Q+8*x}:{Q+8*x+3}], v{vL16}, s[{sR}:{sR+3}], s{so} offen')
            a.i(f'buffer_load_dword v{Q+8*x+4}, v{vL4m}, s[{sR}:{sR+3}], s{so} offen offset:1024')
            for z in range(5, 8): a.i(f'v_mov_b32 v{Q+8*x+z}, 0')
    a.i(f's_add_u32 s{sGt}, s14, {G_OFF}'); a.i(f's_addc_u32 s{sGt+1}, s15, 0'); srd(a, sGt, sGt, sGt+1, 8192)
    a.i(f's_lshl_b32 s{sT1}, s{sTile}, 7')
    a.i(f'buffer_load_dword v{G}, v{vL4}, s[{sGt}:{sGt+3}], s{sT1} offen')
    a.i(f'buffer_load_dword v{G+1}, v{vL4}, s[{sGt}:{sGt+3}], s{sT1} offen offset:128')
    srd(a, sP, 10, 11, 32*648)
    wphi_addr(a, vP, vP2, 0, t[0], t[1], sOOB)
    a.i(f's_mul_i32 s{sT1}, s{sHead}, 648')
    for z in range(1, 4): a.i(f'v_mov_b32 v{F2+z}, 0')
    wphi_load(a, F1, F2, S+64, vP, vP2, sP, sT1)
    a.i(f's_mul_i32 s{sT1}, s{sHead}, {16*KVP_BLK}')
    a.i(f's_add_u32 s{sT1}, s{sT1}, {KVP_OFF}')
    add64(a, sKV, 14, f's{sT1}'); srd(a, sKV, sKV, sKV+1, 16*KVP_BLK)
    a.many(f'''
    v_lshlrev_b32 v{t[0]}, 4, v{vT}
    v_mov_b32 v{t[1]}, s{sOOB}
    v_cmp_gt_u32 vcc, 200, v{vT}
    v_cndmask_b32 v{t[0]}, v{t[1]}, v{t[0]}, vcc
    s_mov_b32 s{sT1}, 0
    ''')
    ptok = []
    for p in range(16):
        ptok.append(a.i(f'buffer_load_dwordx4 v[{S+4*p}:{S+4*p+3}], v{t[0]}, s[{sKV}:{sKV+3}], s{sT1} offen'))
        if p < 15: a.i(f's_add_u32 s{sT1}, s{sT1}, {KVP_BLK}')
    a.i(f's_add_u32 s{sO16}, s14, {O16_OFF}'); a.i(f's_addc_u32 s{sO16+1}, s15, 0'); srd(a, sO16, sO16, sO16+1, O16_SZ)
    a.i(f's_add_u32 s{sO2}, s14, {O2_OFF}'); a.i(f's_addc_u32 s{sO2+1}, s15, 0'); srd(a, sO2, sO2, sO2+1, O2_SZ)
    a.many(f'''
    s_mul_i32 s{sT1}, s{sWave}, {2*QK_BLK}
    v_add_u32 v{vK}, s{sT1}, v{vL16}
    v_add_u32 v{vK2}, s{sT1}, v{vL4}
    v_add_u32 v{vK2}, {KB+1024}, v{vK2}
    s_mul_i32 s{sT1}, s{sWave}, {2*V_BLK}
    s_add_u32 s{sT1}, s{sT1}, {VB}
    v_lshrrev_b32 v{t[1]}, 5, v0
    v_bfe_u32 v{t[2]}, v0, 2, 2
    v_and_b32 v{t[3]}, 1, v0
    v_bfe_u32 v{t[4]}, v0, 1, 1
    v_bfe_u32 v{t[5]}, v0, 4, 1
    v_cmp_eq_u32 vcc, 1, v{t[5]}
    ''')
    tmpA, tmpB = MD, MD + 1
    for s in range(2):
        for rd in range(2):
            d = vV + 2 * s + rd
            a.many(f'''
            v_lshl_add_u32 v{tmpA}, v{t[1]}, 3, v{t[2]}
            v_add_u32 v{tmpA}, {16*s+4*rd}, v{tmpA}
            v_lshlrev_b32 v{tmpB}, 2, v{t[3]}
            v_xor_b32 v{tmpA}, v{tmpA}, v{tmpB}
            v_lshlrev_b32 v{tmpA}, 4, v{tmpA}
            v_lshl_add_u32 v{tmpA}, v{t[3]}, 9, v{tmpA}
            v_lshl_add_u32 v{tmpA}, v{t[4]}, 3, v{tmpA}
            v_xor_b32 v{tmpB}, 1, v{t[1]}
            v_lshl_add_u32 v{tmpB}, v{tmpB}, 4, v{t[2]}
            v_add_u32 v{tmpB}, {128 + 8*s + 4*rd}, v{tmpB}
            v_lshlrev_b32 v{tmpB}, 3, v{tmpB}
            v_cndmask_b32 v{d}, v{tmpA}, v{tmpB}, vcc
            v_add_u32 v{d}, s{sT1}, v{d}
            ''')
    a.many(f'''
    v_bfe_u32 v{t[2]}, v0, 3, 2
    v_bfe_u32 v{t[3]}, v0, 2, 1
    v_lshl_add_u32 v{t[3]}, v{t[3]}, 1, v{t[2]}
    v_cmp_lt_u32 vcc, 1, v{t[2]}
    v_cndmask_b32 v{t[3]}, v{t[3]}, 4, vcc
    v_and_b32 v{t[2]}, 3, v0
    v_lshl_add_u32 v{t[3]}, v{t[3]}, 2, v{t[2]}
    v_mul_u32_u24 v{t[3]}, 80, v{t[3]}
    v_mad_u32_u24 v{vKV}, v{t[1]}, 40, v{t[3]}
    v_add_u32 v{vKV}, {KVL}, v{vKV}
    ''')
    a.many(f'''
    v_and_b32 v{t[2]}, 31, v0
    v_lshlrev_b32 v{t[3]}, 3, v{t[1]}
    v_sub_u32 v{t[2]}, v{t[2]}, v{t[3]}
    v_mov_b32 v{t[3]}, {NEG}
    ''')
    for r in range(16):
        aa, e = r >> 2, r & 3
        kc = 16 * (aa >> 1) + 4 * (aa & 1) + e
        a.i(f'v_cmp_le_i32 vcc, {kc}, v{t[2]}')
        a.i(f'v_cndmask_b32 v{MD+r}, v{t[3]}, 0, vcc')
        a.i(f'v_cndmask_b32 v{ME+r}, 0, v{t[3]}, vcc')
    a.stamp(1)
    for lvl in (8, 4, 2, 1):
        for p in range(lvl):
            if lvl == 8: a.wait_vm(ptok[p + 8])
            for h in (0, 2):
                x = S + 4 * p + h; y = S + 4 * (p + lvl) + h
                a.i(f'v_pk_add_f32 v[{x}:{x+1}], v[{x}:{x+1}], v[{y}:{y+1}]')
    a.i(f'v_cvt_pk_bf16_f32 v{S}, v{S}, v{S+1}')
    a.i(f'v_cvt_pk_bf16_f32 v{S+1}, v{S+2}, v{S+3}')
    a.i(f'v_lshlrev_b32 v{t[0]}, 3, v{vT}')
    a.i(f'ds_write_b64 v{t[0]}, v[{S}:{S+1}] offset:{KVL}')
    a.i(f's_mov_b32 s{sT0}, 0xffff0000')
    wphi_merge(a, F1, F2, S+64, sT0)
    a.i('s_waitcnt vmcnt(0) lgkmcnt(0)')
    a.i('s_barrier')
    a.stamp(2)
    vo2 = t[5]
    a.many(f'''
    s_and_b32 s{sT0}, s{sHead}, 3
    s_lshl_b32 s{sT0}, s{sT0}, 2
    v_lshlrev_b32 v{vo2}, 2, v{vL4m}
    v_cmp_gt_u32 vcc, 32, v0
    v_cndmask_b32 v{vo2}, v{vL4m}, v{vo2}, vcc
    v_add_u32 v{vo2}, s{sT0}, v{vo2}
    ''')
    def store_o(Oreg, side, x, scale):
        for j in range(5):
            a.i(f'v_pk_mul_f32 v[{Oreg+2*j}:{Oreg+2*j+1}], v[{Oreg+2*j}:{Oreg+2*j+1}], v[{scale}:{scale+1}] op_sel_hi:[1,0]')
        for j in range(5):
            a.i(f'v_cvt_pk_bf16_f32 v{Oreg+j}, v{Oreg+2*j}, v{Oreg+2*j+1}')
        a.many(f'''
        s_lshl_b32 s{sT0}, s{sHead}, 6
        s_add_u32 s{sT0}, s{sT0}, s{sTile}
        s_add_u32 s{sT0}, s{sT0}, {side*2048 + x}
        s_lshl_b32 s{sT0}, s{sT0}, 10
        s_add_u32 s{sT1}, s{sTile}, {side*64 + x}
        s_lshl_b32 s{sT1}, s{sT1}, 3
        s_lshr_b32 s{sT2}, s{sHead}, 2
        s_add_u32 s{sT1}, s{sT1}, s{sT2}
        s_lshl_b32 s{sT1}, s{sT1}, 9
        buffer_store_dwordx4 v[{Oreg}:{Oreg+3}], v{vL16}, s[{sO16}:{sO16+3}], s{sT0} offen {ST}
        buffer_store_dword v{Oreg+4}, v{vo2}, s[{sO2}:{sO2+3}], s{sT1} offen {ST}
        ''')
    KVF = S
    D = [S + 16, S + 32]
    PH = [S + 48, S + 60]
    T = S + 72
    for s in range(2):
        a.i(f'ds_read_b64 v[{KVF+4*s}:{KVF+4*s+1}], v{vKV} offset:{16*s}')
        a.i(f'ds_read_b64 v[{KVF+4*s+2}:{KVF+4*s+3}], v{vKV} offset:{16*s+8}')
    ktok = a.i(f'ds_read_b32 v{KVF+8}, v{vKV} offset:32')
    for z in range(9, 12): a.i(f'v_mov_b32 v{KVF+z}, 0')
    for x in range(2):
        a.i(f'v_mfma_f32_32x32x16_bf16 v[{D[x]}:{D[x]+15}], v[{F1}:{F1+3}], v[{QB+8*x}:{QB+8*x+3}], 0')
    for x in range(2):
        a.i(f'v_mfma_f32_32x32x16_bf16 v[{D[x]}:{D[x]+15}], v[{F2}:{F2+3}], v[{QB+8*x+4}:{QB+8*x+7}], v[{D[x]}:{D[x]+15}]')
        for z in range(9, 12): a.i(f'v_mov_b32 v{PH[x]+z}, 0')
    hedgehog(a, [(D[0], PH[0]), (D[1], PH[1])], sK, T)
    a.wait_lg(ktok)
    for s in range(3):
        for x in range(2):
            c = '0' if s == 0 else f'v[{D[x]}:{D[x]+15}]'
            a.i(f'v_mfma_f32_32x32x16_bf16 v[{D[x]}:{D[x]+15}], v[{KVF+4*s}:{KVF+4*s+3}], v[{PH[x]+4*s}:{PH[x]+4*s+3}], {c}')
    for x in range(2):
        sc = T + 2 * x
        a.i(f'v_add_f32 v{sc}, {f2u(1e-6)}, v{D[x]+10}')
        a.i(f'v_rcp_f32 v{sc}, v{sc}')
        a.i(f'v_sub_f32 v{sc+1}, 1.0, v{G+x}')
        a.i(f'v_mul_f32 v{sc}, v{sc}, v{sc+1}')
        store_o(D[x], 1, x, sc)
    a.stamp(3)
    KF = QB
    for z in (5, 6, 7, 13, 14, 15): a.i(f'v_mov_b32 v{KF+z}, 0')
    VF = F1
    for x in range(2):
        kt = {}
        def rdK(n):
            f = KF + 8 * (n & 1)
            a.i(f'ds_read_b128 v[{f}:{f+3}], v{vK} offset:{(x+n)*QK_BLK}')
            kt[n] = a.i(f'ds_read_b32 v{f+4}, v{vK2} offset:{(x+n)*QK_BLK}')
        rdK(0); rdK(1)
        for n in range(9):
            a.wait_lg(kt[n])
            f = KF + 8 * (n & 1); sn = S + 16 * n
            c = f'v[{ME}:{ME+15}]' if n == 0 else (f'v[{MD}:{MD+15}]' if n == 8 else '0')
            a.i(f'v_mfma_f32_32x32x16_bf16 v[{sn}:{sn+15}], v[{f}:{f+3}], v[{QA+8*x}:{QA+8*x+3}], {c}')
            a.i(f'v_mfma_f32_32x32x16_bf16 v[{sn}:{sn+15}], v[{f+4}:{f+7}], v[{QA+8*x+4}:{QA+8*x+7}], v[{sn}:{sn+15}]')
            if n + 2 < 9: rdK(n + 2)
        a.flush_hazards()
        a.i(f's_lshl_b32 s{sT0}, s{sWave}, 1')
        for n in range(8):
            a.i(f's_add_u32 s{sT1}, s{sT0}, {x+n}')
            a.i(f's_cmp_ge_u32 s{sT1}, s{sVF}')
            a.i(f's_cbranch_scc1 L_{name}_v{x}')
            for r in range(16): a.i(f'v_mov_b32 v{S+16*n+r}, {NEG}')
        a.label(f'L_{name}_v{x}')
        m = t[0:4]
        for k in range(4):
            b = S + 36 * k
            a.i(f'v_max3_f32 v{m[k]}, v{b}, v{b+1}, v{b+2}')
        for j in range(3, 35, 2):
            for k in range(4):
                b = S + 36 * k
                a.i(f'v_max3_f32 v{m[k]}, v{m[k]}, v{b+j}, v{b+j+1}')
        for k in range(4): a.i(f'v_max_f32 v{m[k]}, v{m[k]}, v{S+36*k+35}')
        a.i(f'v_max3_f32 v{m[0]}, v{m[0]}, v{m[1]}, v{m[2]}')
        a.i(f'v_max_f32 v{m[0]}, v{m[0]}, v{m[3]}')
        a.i(f'v_mov_b32 v{m[1]}, v{m[0]}')
        a.i(f'v_permlane32_swap_b32 v{m[0]}, v{m[1]}')
        a.i(f'v_max_f32 v{m[0]}, v{m[0]}, v{m[1]}')
        for n in range(9):
            sn = S + 16 * n
            for s in range(2):
                for rd in range(2):
                    vt = a.i(f'ds_read_b64_tr_b16 v[{VF+4*s+2*rd}:{VF+4*s+2*rd+1}], v{vV+2*s+rd} offset:{(x+n)*V_BLK}')
            for r in range(16): a.i(f'v_sub_f32 v{sn+r}, v{sn+r}, v{m[0]}')
            for r in range(16): a.i(f'v_exp_f32 v{sn+r}, v{sn+r}')
            PP = sn
            for r in range(8): a.i(f'v_cvt_pk_bf16_f32 v{PP+r}, v{sn+2*r}, v{sn+2*r+1}')
            a.wait_lg(vt)
            c = '0' if n == 0 else f'v[{O}:{O+15}]'
            a.i(f'v_mfma_f32_32x32x16_bf16 v[{O}:{O+15}], v[{VF}:{VF+3}], v[{PP}:{PP+3}], {c}')
            a.i(f'v_mfma_f32_32x32x16_bf16 v[{O}:{O+15}], v[{VF+4}:{VF+7}], v[{PP+4}:{PP+7}], v[{O}:{O+15}]')
        sc = S
        a.i(f'v_rcp_f32 v{sc}, v{O+10}')
        a.i(f'v_mul_f32 v{sc}, v{sc}, v{G+x}')
        store_o(O, 0, x, sc)
        a.stamp(4 + x)
    a.stamp_end(1, 14, sWave)
    a.label(f'L_{name}_end')
    a.i('s_endpgm')
    return a.text() + kd(name, R.hi), K2_LDS, R.hi

if __name__ == '__main__':
    txt, lds, hi = gen_k2()
    print(len(txt.split('\n')), 'lines; vgprs', hi)
```

```python
from asmlib import *
from layout import *
from k1 import srd, add64

K3_LDS = 1152 * 128

def gen_k3(name='k3_kernel'):
    a = Asm()
    a.raw(f'.globl {name}\n.p2align 8\n.type {name},@function\n{name}:')
    sWo = [16, 20]; sO16, sO2, sOut = 24, 28, 32
    sWave, sRow, sCol, sT0, sT1, sT2, sM = 36, 37, 38, 39, 40, 41, 42
    a.many(f'''
    s_cmp_ge_u32 s2, 144
    s_cbranch_scc1 L_{name}_end''')
    a.stamp_begin()
    a.many(f'''
    s_load_dwordx2 s[4:5], s[0:1], 16
    s_load_dwordx2 s[6:7], s[0:1], 48
    s_load_dwordx2 s[8:9], s[0:1], 64
    s_load_dwordx2 s[14:15], s[0:1], 80
    v_lshrrev_b32 v1, 6, v0
    v_and_b32 v0, 63, v0
    s_and_b32 s{sT0}, s2, 7
    v_readfirstlane_b32 s{sWave}, v1
    s_lshr_b32 s{sT1}, s2, 3
    s_and_b32 s{sRow}, s{sT1}, 1
    s_lshl_b32 s{sT0}, s{sT0}, 1
    s_add_u32 s{sRow}, s{sRow}, s{sT0}
    s_lshr_b32 s{sCol}, s{sT1}, 1
    s_lshl_b32 s{sM}, s{sWave}, 10
    ''')
    R = RegAlloc(1, 256)
    t = [R.get(1) for _ in range(6)]
    vWh = R.get(1); vWt = R.get(1); vL16 = R.get(1); vOut = R.get(1)
    vA = R.get(6)
    NO = 16
    OF = R.get(4 * NO, 4)
    P = 8
    POOL = R.get(4 * P, 4)
    ACC = R.get(32, 4)
    a.many(f'''
    v_lshrrev_b32 v{t[0]}, 3, v0
    v_and_b32 v{t[1]}, 7, v0
    v_bfe_u32 v{t[2]}, v0, 4, 1
    v_lshlrev_b32 v{t[2]}, 1, v{t[2]}
    v_xor_b32 v{t[1]}, v{t[1]}, v{t[2]}
    v_lshlrev_b32 v{t[1]}, 4, v{t[1]}
    v_mul_u32_u24 v{vWh}, 1152, v{t[0]}
    v_add_u32 v{vWh}, v{vWh}, v{t[1]}
    v_lshrrev_b32 v{t[2]}, 1, v{t[0]}
    v_mul_u32_u24 v{t[2]}, 18, v{t[2]}
    v_and_b32 v{t[3]}, 1, v{t[0]}
    v_add3_u32 v{t[2]}, v{t[2]}, v{t[3]}, 16
    v_mul_u32_u24 v{vWt}, 1152, v{t[2]}
    v_add_u32 v{vWt}, v{vWt}, v{t[1]}
    v_lshlrev_b32 v{vL16}, 4, v0
    v_lshrrev_b32 v{t[0]}, 5, v0
    v_bfe_u32 v{t[1]}, v0, 2, 2
    v_lshl_add_u32 v{t[2]}, v{t[0]}, 3, v{t[1]}
    v_lshlrev_b32 v{t[2]}, 7, v{t[2]}
    v_and_b32 v{t[3]}, 1, v0
    v_lshlrev_b32 v{t[3]}, 2, v{t[3]}
    v_bfe_u32 v{t[4]}, v0, 4, 1
    v_add_u32 v{t[3]}, v{t[3]}, v{t[4]}
    v_and_b32 v{t[1]}, 2, v{t[1]}
    v_xor_b32 v{t[3]}, v{t[3]}, v{t[1]}
    v_bfe_u32 v{t[4]}, v0, 1, 1
    v_lshl_add_u32 v{t[2]}, v{t[4]}, 3, v{t[2]}
    v_lshl_add_u32 v{vA}, v{t[3]}, 4, v{t[2]}
    v_xor_b32 v{t[3]}, 2, v{t[3]}
    v_lshl_add_u32 v{vA+1}, v{t[3]}, 4, v{t[2]}
    v_add_u32 v{vA+2}, 49152, v{vA}
    v_add_u32 v{vA+3}, 49152, v{vA+1}
    v_add_u32 v{vA+4}, 98304, v{vA}
    v_add_u32 v{vA+5}, 98304, v{vA+1}
    v_and_b32 v{t[1]}, 31, v0
    v_mul_u32_u24 v{vOut}, 1152, v{t[1]}
    v_lshl_add_u32 v{vOut}, v{t[0]}, 6, v{vOut}
    s_waitcnt lgkmcnt(0)
    s_lshl_b32 s{sT0}, s{sCol}, 7
    ''')
    for side in range(2):
        add64(a, sWo[side], 4 + 2 * side, f's{sT0}')
        a.i(f's_sub_u32 s{sWo[side]+2}, {576*1152}, s{sT0}')
        a.i(f's_mov_b32 s{sWo[side]+3}, 0x20000')
    a.i(f's_lshl_b32 s{sT1}, s{sRow}, 2'); a.i(f's_add_u32 s{sT1}, s{sT1}, s{sWave}')
    a.i(f's_lshl_b32 s{sT2}, s{sT1}, 10'); a.i(f's_add_u32 s{sT2}, s{sT2}, {O16_OFF}')
    add64(a, sO16, 14, f's{sT2}'); srd(a, sO16, sO16, sO16+1, O16_SZ - 63*1024)
    a.i(f's_lshl_b32 s{sT2}, s{sT1}, 12'); a.i(f's_add_u32 s{sT2}, s{sT2}, {O2_OFF}')
    add64(a, sO2, 14, f's{sT2}'); srd(a, sO2, sO2, sO2+1, O2_SZ - 63*4096)
    a.i(f's_mul_i32 s{sT2}, s{sT1}, {32*1152}'); a.i(f's_add_u32 s{sT2}, s{sT2}, s{sT0}')
    add64(a, sOut, 8, f's{sT2}')
    a.i(f's_sub_u32 s{sOut+2}, {2048*1152}, s{sT2}'); a.i(f's_mov_b32 s{sOut+3}, 0x20000')
    sWh, sWt = 43, 44
    a.i(f's_mul_i32 s{sWh}, s{sWave}, {18*1152}')
    a.i(f's_mul_i32 s{sWt}, s{sWave}, {8*18*1152}')
    a.i(f's_lshl_b32 s{sM}, s{sWave}, 11')
    NST = 18
    wtok = {}; otok = {}
    def dmaW(st):
        side, ls = divmod(st, 9)
        for k in range(2):
            if ls < 8:
                a.i(f's_add_u32 s{sT2}, s{sWh}, {(4*ls*18 + 8*k)*1152}')
                va = vWh
            else:
                a.i(f's_add_u32 s{sT2}, s{sWt}, {k*4*18*1152}')
                va = vWt
            a.i(f's_add_u32 m0, s{sM}, {st*8192 + k*1024}')
            wtok[st] = a.i(f'buffer_load_dwordx4 v{va}, s[{sWo[side]}:{sWo[side]+3}], s{sT2} offen lds')
    def loadO(step):
        if step >= 72: return
        side, ls = divmod(step, 36)
        f = OF + 4 * (step % NO)
        if ls < 32:
            a.i(f's_mov_b32 s{sT2}, {(side*32 + ls)*65536}')
            otok[step] = a.i(f'buffer_load_dwordx4 v[{f}:{f+3}], v{vL16}, s[{sO16}:{sO16+3}], s{sT2} offen')
        else:
            a.i(f's_mov_b32 s{sT2}, {side*64*4096 + (ls-32)*1024}')
            otok[step] = a.i(f'buffer_load_dwordx4 v[{f}:{f+3}], v{vL16}, s[{sO2}:{sO2+3}], s{sT2} offen')
    LEAD = 4
    for st in range(LEAD):
        dmaW(st)
        for s in range(4): loadO(4 * st + s)
    D = 6
    ftok = {}
    def rd(q):
        if q >= 144: return
        step, m = divmod(q, 2)
        row = 16 * step
        third = (row * 128) // 49152
        f = POOL + 4 * (q % P)
        for r in range(2):
            ftok[q] = a.i(f'ds_read_b64_tr_b16 v[{f+2*r}:{f+2*r+1}], v{vA+2*third+m} offset:{(row+4*r)*128 - third*49152}')
    a.stamp(1)
    a.wait_vm(wtok[0]); a.i('s_barrier')
    a.stamp(2)
    for q in range(D): rd(q)
    for q in range(144):
        step, m = divmod(q, 2)
        st = step // 4
        a.wait_vm(otok[step]); a.wait_lg(ftok[q])
        f = POOL + 4 * (q % P); o = OF + 4 * (step % NO); acc = ACC + 16 * m
        c = '0' if step == 0 else f'v[{acc}:{acc+15}]'
        a.i(f'v_mfma_f32_32x32x16_bf16 v[{acc}:{acc+15}], v[{f}:{f+3}], v[{o}:{o+3}], {c}')
        if (q + D) % 8 == 0 and (q + D) // 8 < NST:
            a.wait_vm(wtok[(q + D) // 8]); a.i('s_barrier')
        rd(q + D)
        if m == 1:
            if step % 4 == 0 and st + LEAD < NST: dmaW(st + LEAD)
            loadO(step + NO)
            if step % 8 == 7: a.stamp(3 + step // 8)
    for j in range(16):
        a.i(f'v_cvt_pk_bf16_f32 v{ACC+j}, v{ACC+2*j}, v{ACC+2*j+1}')
    for j in range(4):
        a.i(f'buffer_store_dwordx4 v[{ACC+4*j}:{ACC+4*j+3}], v{vOut}, s[{sOut}:{sOut+3}], 0 offen offset:{16*j}')
    a.stamp(12)
    a.stamp_end(2, 14, sWave)
    a.label(f'L_{name}_end')
    a.i('s_endpgm')
    return a.text() + kd(name, R.hi), K3_LDS, R.hi

if __name__ == '__main__':
    txt, lds, hi = gen_k3()
    print(len(txt.split('\n')), 'lines; vgprs', hi)
```

```python
import re

TRANS = ('v_exp_f32', 'v_log_f32', 'v_rcp_f32', 'v_rsq_f32', 'v_sqrt_f32', 'v_sin_f32', 'v_cos_f32')

def regs_of(tok):
    tok = tok.strip()
    tok = tok.lstrip('-')
    if tok.startswith('abs(') or tok.startswith('|'):
        tok = tok.replace('abs(', '').replace(')', '').replace('|', '')
    m = re.fullmatch(r'([vas])(\d+)', tok)
    if m: return [(m.group(1), int(m.group(2)))]
    m = re.fullmatch(r'([vas])\[(\d+):(\d+)\]', tok)
    if m: return [(m.group(1), i) for i in range(int(m.group(2)), int(m.group(3)) + 1)]
    if tok == 'vcc': return [('s', 'vcc')]
    if tok == 'exec': return [('s', 'exec')]
    if tok == 'm0': return [('s', 'm0')]
    return []

def split_ops(s):
    out = []; depth = 0; cur = ''
    for ch in s:
        if ch == '[': depth += 1
        if ch == ']': depth -= 1
        if ch == ',' and depth == 0:
            out.append(cur.strip()); cur = ''
        else: cur += ch
    if cur.strip(): out.append(cur.strip())
    return out

class Asm:
    def __init__(self):
        self.lines = []
        self.reset_state()
        self.nops_inserted = 0
    def reset_state(self):
        self.t = 0
        self.w_valu = {}
        self.w_trans = {}
        self.w_mfma = {}
        self.r_mfmaC = {}
        self.w_sgpr_valu = {}
        self.w_m0 = -100
        self.st_data = {}
        self.w_exec_valu = -100
        self.lg_issued = 0; self.lg_done = 0
        self.vm_issued = 0; self.vm_done = 0
    _ST = ('t', 'w_valu', 'w_trans', 'w_mfma', 'r_mfmaC', 'w_sgpr_valu', 'w_m0', 'st_data', 'w_exec_valu',
           'lg_issued', 'lg_done', 'vm_issued', 'vm_done')
    def snapshot(self):
        import copy
        return {k: copy.copy(getattr(self, k)) for k in Asm._ST}
    def restore(self, snap):
        import copy
        for k, v in snap.items(): setattr(self, k, copy.copy(v))
    def raw(self, s): self.lines.append(s)
    def comment(self, s): self.lines.append('; ' + s)
    def label(self, name, flush=True):
        self.lines.append(name + ':')
    def flush_hazards(self):
        need = 0
        for r, (t, p, _f) in self.w_mfma.items(): need = max(need, t + {2:5,4:8,8:12,16:20}[p] + 1 - self.t)
        for r, t in self.w_valu.items(): need = max(need, t + 2 + 1 - self.t)
        for r, t in self.w_sgpr_valu.items(): need = max(need, t + 5 + 1 - self.t)
        self._nop(need)
    def _nop(self, n):
        while n > 0:
            k = min(n, 16)
            self.lines.append(f's_nop {k-1}')
            self.t += k; n -= k; self.nops_inserted += k
    def text(self): return '\n'.join(self.lines) + '\n'
    def wait_lg(self, tok):
        if tok is None or tok < self.lg_done: return
        n = self.lg_issued - tok - 1
        n = min(n, 15)
        self.i(f's_waitcnt lgkmcnt({n})')
    def wait_vm(self, tok):
        if tok is None or tok < self.vm_done: return
        n = self.vm_issued - tok - 1
        n = min(n, 63)
        self.i(f's_waitcnt vmcnt({n})')
    def last_vm(self): return self.vm_issued - 1
    def last_lg(self): return self.lg_issued - 1
    def i(self, s):
        s = s.strip()
        body = s.split(';')[0].strip()
        parts = body.split(None, 1)
        op = parts[0]
        rest = parts[1] if len(parts) > 1 else ''
        if op == 's_nop':
            self.lines.append(s); self.t += int(rest) + 1; return None
        if op == 's_waitcnt':
            m = re.search(r'lgkmcnt\((\d+)\)', rest)
            if m: self.lg_done = max(self.lg_done, self.lg_issued - int(m.group(1)))
            m = re.search(r'vmcnt\((\d+)\)', rest)
            if m: self.vm_done = max(self.vm_done, self.vm_issued - int(m.group(1)))
            self.lines.append(s); self.t += 1; return None
        ops = split_ops(rest)
        toks = []
        for o in ops:
            w = o.split()
            toks.append(w[0] if w else '')
        is_mfma = op.startswith('v_mfma')
        is_valu = op.startswith('v_') and not is_mfma
        is_ds = op.startswith('ds_')
        is_vmem = op.startswith('buffer_') or op.startswith('global_')
        is_lds_dma = is_vmem and (re.search(r'\blds\b', rest) is not None or 'load_lds' in op)
        is_store = is_vmem and ('store' in op or ('atomic' in op))
        dst = []; src = []
        if is_mfma:
            dst = regs_of(toks[0]); A = regs_of(toks[1]); B = regs_of(toks[2]); C = regs_of(toks[3])
            src = A + B + C
        elif is_valu:
            if op.startswith('v_permlane32_swap') or op.startswith('v_permlane16_swap'):
                dst = regs_of(toks[0]) + regs_of(toks[1]); src = list(dst)
            elif op.startswith('v_cmp'):
                dst = regs_of(toks[0]); src = sum((regs_of(x) for x in toks[1:]), [])
                if op.startswith('v_cmpx'): dst += [('s', 'exec')]
            else:
                dst = regs_of(toks[0]); k = 1
                if op.startswith(('v_add_co', 'v_sub_co', 'v_addc_co', 'v_subb_co', 'v_mad_u64', 'v_div_scale')):
                    dst += regs_of(toks[1]); k = 2
                src = sum((regs_of(x) for x in toks[k:]), [])
                if op.startswith(('v_fmac', 'v_dot2c', 'v_pk_fmac')) or 'dst_unused:UNUSED_PRESERVE' in rest: src += regs_of(toks[0])
        elif is_ds:
            if op.startswith(('ds_read', 'ds_bpermute', 'ds_permute', 'ds_swizzle')):
                dst = regs_of(toks[0]); src = sum((regs_of(x) for x in toks[1:]), [])
            else:
                src = sum((regs_of(x) for x in toks), [])
        elif is_vmem:
            if is_lds_dma or is_store:
                src = sum((regs_of(x) for x in toks), [])
                if 'atomic' in op and re.search(r'\bsc0\b', rest): dst = regs_of(toks[0])
            else:
                dst = regs_of(toks[0]); src = sum((regs_of(x) for x in toks[1:]), [])
                if 'd16' in op: src += dst
        else:
            if op.startswith(('s_cmp', 's_cbranch', 's_branch', 's_barrier', 's_endpgm', 's_setprio', 's_sleep')):
                src = sum((regs_of(x) for x in toks), [])
            else:
                dst = regs_of(toks[0]) if toks else []
                src = sum((regs_of(x) for x in toks[1:]), [])
                if 'saveexec' in op: dst += [('s', 'exec')]
        need = 0
        def req(t0, ws):
            nonlocal need
            need = max(need, t0 + ws + 1 - self.t)
        vsrc = [r for r in src if r[0] in 'va']
        vdst = [r for r in dst if r[0] in 'va']
        ssrc = [r for r in src if r[0] == 's']
        W = {2:5, 4:8, 8:12, 16:20}
        if is_mfma:
            passes = 8 if '32x32' in op else 4
            for r in src:
                if r in self.w_valu: req(self.w_valu[r], 2)
            for r in A + B:
                if r in self.w_mfma: req(self.w_mfma[r][0], W[self.w_mfma[r][1]])
            for r in C:
                if r in self.w_mfma:
                    t0, p, full = self.w_mfma[r][0], self.w_mfma[r][1], self.w_mfma[r][2]
                    if not (full == tuple(C) and p == passes): req(t0, {2:4,4:6,8:10,16:18}[p])
            for r in dst:
                if r in self.w_mfma and r not in C:
                    t0, p, full = self.w_mfma[r]
                    if full != tuple(dst): req(t0, {2:4,4:6,8:10,16:18}[p])
            req(self.w_exec_valu, 4)
        else:
            if is_valu or is_ds or is_vmem:
                for r in vsrc + vdst:
                    if r in self.w_mfma: req(self.w_mfma[r][0], W[self.w_mfma[r][1]])
            if is_valu:
                for r in vdst:
                    if r in self.r_mfmaC: req(self.r_mfmaC[r][0], {2:1,4:3,8:7,16:15}[self.r_mfmaC[r][1]])
                    if r in self.st_data: req(self.st_data[r], 2)
                if op not in TRANS:
                    for r in vsrc:
                        if r in self.w_trans: req(self.w_trans[r], 1)
                if op.startswith('v_permlane'):
                    for r in vsrc:
                        if r in self.w_valu: req(self.w_valu[r], 2)
                    req(self.w_exec_valu, 4)
                if op.startswith(('v_readfirstlane', 'v_readlane')):
                    for r in vsrc:
                        if r in self.w_valu: req(self.w_valu[r], 1)
                    req(self.w_exec_valu, 4)
                if 'dpp' in rest or 'row_' in rest or 'quad_perm' in rest:
                    for r in vsrc:
                        if r in self.w_valu: req(self.w_valu[r], 2)
                for r in ssrc:
                    if r in self.w_sgpr_valu: req(self.w_sgpr_valu[r], 2)
            if is_ds or is_vmem:
                for r in vdst:
                    if r in self.st_data: req(self.st_data[r], 1)
                for r in vsrc:
                    if r in self.w_trans: req(self.w_trans[r], 1)
            if is_vmem:
                for r in ssrc:
                    if r in self.w_sgpr_valu: req(self.w_sgpr_valu[r], 5)
                if is_lds_dma: req(self.w_m0, 1)
            if not (is_valu or is_ds or is_vmem):
                for r in ssrc:
                    if r in self.w_sgpr_valu: req(self.w_sgpr_valu[r], 1)
        self._nop(need)
        self.lines.append(s)
        t = self.t
        if is_mfma:
            for r in dst:
                self.w_mfma[r] = (t, passes, tuple(dst)); self.w_valu.pop(r, None); self.w_trans.pop(r, None)
            for r in C: self.r_mfmaC[r] = (t, passes)
        elif is_valu:
            for r in dst:
                if r[0] in 'va':
                    self.w_valu[r] = t; self.w_mfma.pop(r, None)
                    if op in TRANS: self.w_trans[r] = t
                    else: self.w_trans.pop(r, None)
                else:
                    self.w_sgpr_valu[r] = t
                    if r == ('s', 'exec'): self.w_exec_valu = t
        else:
            for r in dst:
                if r == ('s', 'm0'): self.w_m0 = t
                if r[0] == 's': self.w_sgpr_valu.pop(r, None)
                if r[0] in 'va':
                    self.w_valu.pop(r, None); self.w_mfma.pop(r, None); self.w_trans.pop(r, None)
            if is_store and re.search(r'x[34]', op):
                for r in regs_of(toks[0] if op.startswith('buffer') else toks[1]): self.st_data[r] = t
        self.t += 1
        tok = None
        if is_ds:
            tok = self.lg_issued; self.lg_issued += 1
        elif is_vmem:
            tok = self.vm_issued; self.vm_issued += 1
        elif op.startswith(('s_load', 's_memtime', 's_memrealtime', 's_buffer_load')):
            self.lg_issued += 2
        return tok
    prof = False
    def stamp(self, k):
        if not Asm.prof: return
        self.lines.append(f's_memtime s[{64+2*k}:{65+2*k}]')
        self.lg_issued += 2; self.t += 1
        self.nstamp = max(getattr(self, 'nstamp', 0), k + 1)
    def stamp_begin(self):
        if not Asm.prof: return
        self.lines.append('s_memrealtime s[92:93]')
        self.stamp(0)
    def stamp_end(self, kid, ws_lo, wave):
        if not Asm.prof: return
        self.lines.append('s_waitcnt vmcnt(0)')
        self.lines.append('s_memtime s[90:91]')
        self.lines.append('s_memrealtime s[94:95]')
        self.lines.append('s_waitcnt lgkmcnt(0)')
        L = self.lines
        L.append(f's_add_u32 s4, s{ws_lo}, {(64 << 20) + kid * (1 << 20)}')
        L.append(f's_addc_u32 s5, s{ws_lo+1}, 0')
        L.append('s_mov_b32 s6, 0x100000'); L.append('s_mov_b32 s7, 0x20000')
        L.append(f's_lshl_b32 s8, s2, 3'); L.append(f's_add_u32 s8, s8, s{wave}'); L.append('s_lshl_b32 s8, s8, 6')
        L.append('v_mov_b32 v1, 0')
        for k in range(1, 14):
            L.append(f's_sub_u32 s9, s{64+2*k}, s64'); L.append('v_mov_b32 v2, s9')
            L.append(f'buffer_store_dword v2, v1, s[4:7], s8 offen offset:{4*k}')
        L.append('v_mov_b32 v2, s92'); L.append('buffer_store_dword v2, v1, s[4:7], s8 offen offset:56')
        L.append('v_mov_b32 v2, s94'); L.append('buffer_store_dword v2, v1, s[4:7], s8 offen offset:60')
    def many(self, txt):
        for l in txt.strip().split('\n'):
            l = l.strip()
            if not l or l.startswith(';'): continue
            if l.endswith(':'): self.label(l[:-1])
            else: self.i(l)

def vr(b, n=1):
    return f'v{b}' if n == 1 else f'v[{b}:{b+n-1}]'
def ar(b, n=1):
    return f'a{b}' if n == 1 else f'a[{b}:{b+n-1}]'
def sr(b, n=1):
    return f's{b}' if n == 1 else f's[{b}:{b+n-1}]'

class RegAlloc:
    def __init__(self, start, limit):
        self.n = start; self.limit = limit; self.hi = start
    def get(self, cnt=1, align=1):
        self.n = (self.n + align - 1) // align * align
        b = self.n; self.n += cnt
        assert self.n <= self.limit, f'out of registers {self.n} > {self.limit}'
        self.hi = max(self.hi, self.n)
        return b
    def mark(self): return self.n
    def release(self, m): self.n = m

def kd(name, vgpr, sgpr=96, accum=None):
    if accum is None: accum = min(256, (vgpr + 3) // 4 * 4)
    return f'''.section .rodata,"a"
.p2align 6
.amdhsa_kernel {name}
  .amdhsa_next_free_vgpr {vgpr}
  .amdhsa_next_free_sgpr {sgpr}
  .amdhsa_accum_offset {accum}
  .amdhsa_group_segment_fixed_size 0
  .amdhsa_kernarg_size 88
  .amdhsa_user_sgpr_count 2
  .amdhsa_user_sgpr_kernarg_segment_ptr 1
  .amdhsa_system_sgpr_workgroup_id_x 1
.end_amdhsa_kernel
.text
'''
```

```python
from asmlib import *
from layout import *

ST = ''
PRE1R = 6
PRE1V = 6
EPI_LAG = 2
EPI_PER = 7

def srd(a, d, lo, hi, nrec):
    if lo != d: a.i(f's_mov_b32 s{d}, s{lo}')
    if hi != d + 1: a.i(f's_mov_b32 s{d+1}, s{hi}')
    a.i(f's_mov_b32 s{d+2}, {nrec}')
    a.i(f's_mov_b32 s{d+3}, 0x20000')

def add64(a, d, lo, off):
    a.i(f's_add_u32 s{d}, s{lo}, {off}')
    a.i(f's_addc_u32 s{d+1}, s{lo+1}, 0')

def hedgehog(a, jobs, sC, T, sHi):
    E = [T + 26 * k for k in range(len(jobs))]
    M = [e + 18 for e in E]
    S = [e + 20 for e in E]
    U = [e + 22 for e in E]
    n = len(jobs)
    for k, (p, o) in enumerate(jobs):
        a.i(f'v_cndmask_b32 v{p+8}, v{p+8}, v{p+9}, s[{sHi}:{sHi+1}]')
    for k, (p, o) in enumerate(jobs):
        a.i(f'v_max3_f32 v{M[k]}, v{p}, v{p+1}, v{p+2}')
        a.i(f'v_max3_f32 v{M[k]+1}, -v{p}, -v{p+1}, -v{p+2}')
        for j in (3, 5, 7):
            a.i(f'v_max3_f32 v{M[k]}, v{M[k]}, v{p+j}, v{p+j+1}')
            a.i(f'v_max3_f32 v{M[k]+1}, v{M[k]+1}, -v{p+j}, -v{p+j+1}')
    for k in range(n): a.i(f'v_permlane32_swap_b32 v{M[k]}, v{M[k]+1}')
    for k in range(n): a.i(f'v_max_f32 v{M[k]}, v{M[k]}, v{M[k]+1}')
    for k in range(n): a.i(f'v_mul_f32 v{M[k]}, s{sC+1}, v{M[k]}')
    for k in range(n): a.i(f'v_mov_b32 v{M[k]+1}, v{M[k]}')
    for k in range(n): a.i(f'v_permlane32_swap_b32 v{M[k]}, v{M[k]+1}')
    for k, (p, o) in enumerate(jobs):
        for j in range(9):
            pj = p + j
            pe = pj & ~1
            sel = pj & 1
            a.i(f'v_pk_fma_f32 v[{E[k]+2*j}:{E[k]+2*j+1}], v[{pe}:{pe+1}], s[{sC}:{sC+1}], v[{M[k]}:{M[k]+1}] op_sel:[{sel},0,0] op_sel_hi:[{sel},1,1]')
        for j in range(18):
            a.i(f'v_exp_f32 v{E[k]+j}, v{E[k]+j}')
    for k in range(n):
        e = E[k]
        a.i(f'v_pk_add_f32 v[{S[k]}:{S[k]+1}], v[{e}:{e+1}], v[{e+2}:{e+3}]')
        a.i(f'v_pk_add_f32 v[{U[k]}:{U[k]+1}], v[{e+4}:{e+5}], v[{e+6}:{e+7}]')
        a.i(f'v_pk_add_f32 v[{U[k]+2}:{U[k]+3}], v[{e+8}:{e+9}], v[{e+10}:{e+11}]')
        a.i(f'v_pk_add_f32 v[{S[k]}:{S[k]+1}], v[{S[k]}:{S[k]+1}], v[{e+12}:{e+13}]')
        a.i(f'v_pk_add_f32 v[{U[k]}:{U[k]+1}], v[{U[k]}:{U[k]+1}], v[{e+14}:{e+15}]')
        a.i(f'v_pk_add_f32 v[{U[k]+2}:{U[k]+3}], v[{U[k]+2}:{U[k]+3}], v[{e+16}:{e+17}]')
        a.i(f'v_pk_add_f32 v[{S[k]}:{S[k]+1}], v[{S[k]}:{S[k]+1}], v[{U[k]}:{U[k]+1}]')
        a.i(f'v_pk_add_f32 v[{S[k]}:{S[k]+1}], v[{S[k]}:{S[k]+1}], v[{U[k]+2}:{U[k]+3}]')
    for k in range(n): a.i(f'v_permlane32_swap_b32 v{S[k]}, v{S[k]+1}')
    for k in range(n): a.i(f'v_add_f32 v{S[k]}, v{S[k]}, v{S[k]+1}')
    for k in range(n): a.i(f'v_rcp_f32 v{S[k]}, v{S[k]}')
    for k in range(n): a.i(f'v_mov_b32 v{S[k]+1}, v{S[k]}')
    for k in range(n): a.i(f'v_permlane32_swap_b32 v{S[k]}, v{S[k]+1}')
    for k, (p, o) in enumerate(jobs):
        for j in range(9):
            e = E[k] + 2 * j
            a.i(f'v_pk_mul_f32 v[{e}:{e+1}], v[{e}:{e+1}], v[{S[k]}:{S[k]+1}]')
        for j in range(9):
            e = E[k] + 2 * j
            a.i(f'v_cvt_pk_bf16_f32 v{o+j}, v{e}, v{e+1}')

def wphi_dma_addr(a, vD, vl, t0, t1, sOOBr):
    for k in range(3):
        a.i(f'v_add_u32 v{t0}, {64*k}, v{vl}')
        a.i(f'v_mul_u32_u24 v{t1}, 6554, v{t0}')
        a.i(f'v_lshrrev_b32 v{t1}, 16, v{t1}')
        a.i(f'v_mul_u32_u24 v{vD+k}, 10, v{t1}')
        a.i(f'v_sub_u32 v{vD+k}, v{t0}, v{vD+k}')
        a.i(f'v_cmp_eq_u32 vcc, 9, v{vD+k}')
        a.i(f'v_sub_u32 v{t0}, v{t0}, v{t1}')
        a.i(f'v_lshlrev_b32 v{t0}, 2, v{t0}')
        a.i(f'v_mov_b32 v{t1}, s{sOOBr}')
        a.i(f'v_cndmask_b32 v{vD+k}, v{t0}, v{t1}, vcc')
        if k == 2:
            a.i(f'v_cmp_lt_u32 vcc, 51, v{vl}')
            a.i(f'v_cndmask_b32 v{vD+k}, v{vD+k}, v{t1}, vcc')

def wphi_dma(a, vD, sP, sOff, sM, ldsoff):
    for k in range(3):
        a.i(f's_add_u32 m0, s{sM}, {ldsoff + 256*k}')
        tok = a.i(f'buffer_load_dword v{vD+k}, s[{sP}:{sP+3}], s{sOff} offen lds')
    return tok

def chunk_of_lane(a, dst, vl, t0, t1):
    a.i(f'v_bfe_u32 v{t0}, v{vl}, 1, 1')
    a.i(f'v_and_b32 v{t1}, 1, v{vl}')
    a.i(f'v_lshl_add_u32 v{dst}, v{t1}, 1, v{t0}')
    a.i(f'v_and_b32 v{t0}, 16, v{vl}')
    a.i(f'v_cmp_ne_u32 vcc, 0, v{t0}')
    a.i(f'v_cndmask_b32 v{dst}, v{dst}, 4, vcc')

def wphi_rd_addr(a, vA1, vA2, vl, t0, t1):
    chunk_of_lane(a, vA2, vl, t0, t1)
    a.i(f'v_bfe_u32 v{t0}, v{vl}, 2, 2')
    a.i(f'v_mul_u32_u24 v{t0}, 40, v{t0}')
    a.i(f'v_lshl_add_u32 v{vA2}, v{vA2}, 3, v{t0}')
    a.i(f'v_lshrrev_b32 v{t0}, 5, v{vl}')
    a.i(f'v_mul_u32_u24 v{t0}, 320, v{t0}')
    a.i(f'v_add_u32 v{vA1}, v{vA2}, v{t0}')

def wphi_read(a, F1, F2, vA1, vA2, off):
    a.i(f'ds_read_b64_tr_b16 v[{F1}:{F1+1}], v{vA1} offset:{off}')
    a.i(f'ds_read_b64_tr_b16 v[{F1+2}:{F1+3}], v{vA1} offset:{off+160}')
    return a.i(f'ds_read_b64_tr_b16 v[{F2}:{F2+1}], v{vA2} offset:{off+640}')

XB = [0, 16384, 32768]
WB0 = 49152
sX, sW, sO, sP, sG = 16, 20, 24, 28, 32
sWave, sRow, sC_, sHH = 36, 37, 38, 39
sT0, sT1, sT2, sT3 = 40, 41, 42, 43
sSoW, sSoX, sMW, sMX = 44, 45, 46, 47
sK = 48
sOOB = 50

def mainloop(a, NT, gate, RS, nW, vWoff, vXoff, vWb, vXr, vG, ACC, POOL, XF, extra=None, D=7, P=8, PRE1=6, tails=None):
    WBUF = 64 * RS
    NM = NT + (1 if gate else 0)
    def dma_list(st):
        b = st % 3
        L = []
        for n in range(nW): L.append((st, 'W', n, WB0 + b * WBUF + n * 1024))
        for n in range(4): L.append((st, 'X', n, XB[b] + n * 1024))
        return L[nW:nW+2] + L[:nW//2] + L[nW+2:] + L[nW//2:nW]
    last_dma = {}
    cur = [None]
    def dma(item):
        st, k, n, dst = item
        if cur[0] != st:
            a.i(f's_mov_b32 s{sSoW}, {st * 64 * 3456}')
            a.i(f's_mov_b32 s{sSoX}, {st * 128}')
            cur[0] = st
        if k == 'W':
            a.i(f's_add_u32 m0, s{sMW}, {dst}')
            last_dma[st] = a.i(f'buffer_load_dwordx4 v{vWoff+n}, s[{sW}:{sW+3}], s{sSoW} offen lds')
        else:
            a.i(f's_add_u32 m0, s{sMX}, {dst}')
            last_dma[st] = a.i(f'buffer_load_dwordx4 v{vXoff+n}, s[{sX}:{sX+3}], s{sSoX} offen lds')
    for it in dma_list(0): dma(it)
    if extra: extra(0)
    for it in dma_list(1)[:PRE1]: dma(it)
    if extra: extra(1)
    order = []
    for st in range(9):
        if st == 8 and tails: order += [(32 + s, m) for m in range(NM) for s in range(4)]
        else: order += [(4 * st + s, m) for s in range(4) for m in range(NM)]
    total = len(order)
    def xslot(step):
        if not tails: return step & 1
        return 4 if step == 35 else step & 3
    tokW = {}; tokX = {}
    def issue_reads(q):
        if q >= total: return
        step, m = order[q]
        st, s = divmod(step, 4)
        b = st % 3
        if step not in tokX:
            xf = XF + 4 * xslot(step)
            tokX[step] = a.i(f'ds_read_b128 v[{xf}:{xf+3}], v{vXr+s} offset:{XB[b]}')
        f = POOL + 4 * (q % P)
        if m < NT:
            for rd in range(2):
                tokW[q] = a.i(f'ds_read_b64_tr_b16 v[{f+2*rd}:{f+2*rd+1}], v{vWb+b} offset:{(16*s+4*rd)*RS + 32*m}')
        else:
            tokW[q] = a.i(f'ds_read_b128 v[{f}:{f+3}], v{vG} offset:{128*st + 32*s}')
    a.stamp(1)
    a.wait_vm(last_dma[0])
    a.i('s_barrier')
    a.stamp(2)
    for q in range(D): issue_reads(q)
    b1 = 4 * NM - D
    def body(q, queue=None):
        step, m = order[q]
        st = step // 4
        ql = q - st * 4 * NM
        a.wait_lg(max(tokW[q], tokX[step]))
        f = POOL + 4 * (q % P)
        xf = XF + 4 * xslot(step)
        acc = ACC + 16 * m
        c = '0' if step == 0 else f'v[{acc}:{acc+15}]'
        a.i(f'v_mfma_f32_32x32x16_bf16 v[{acc}:{acc+15}], v[{f}:{f+3}], v[{xf}:{xf+3}], {c}')
        L = []
        if st == 0: L = dma_list(1)[PRE1:] + dma_list(2)
        elif st <= 6: L = dma_list(st + 2)
        if ql == b1 and st < 8:
            a.wait_vm(last_dma[st + 1])
            a.i('s_barrier')
        issue_reads(q + D)
        for k, it in enumerate(L):
            if k * (b1 - 1) // len(L) == ql: dma(it)
        if st == 0 and ql == 4 * NM - 1 and extra: extra(2)
        if ql == 4 * NM - 1 and st + 3 <= 8:
            a.i('s_barrier')
        if queue:
            n = 0
            while queue and queue[0][0] <= ql and n < EPI_PER:
                a.i(queue.pop(0)[1]); n += 1
        if ql == 4 * NM - 1: a.stamp(3 + st)
    for q in range(32 * NM if tails else total): body(q)
    if tails:
        for lab, br, qf in tails:
            if br: a.many(br)
        snap = a.snapshot(); sW_ = dict(tokW); sX_ = dict(tokX)
        for k, (lab, br, qf) in enumerate(tails):
            a.restore(snap); tokW.clear(); tokW.update(sW_); tokX.clear(); tokX.update(sX_)
            if lab: a.label(lab)
            queue = qf()
            for q in range(32 * NM, total): body(q, queue)
            for _, ins in queue: a.i(ins)
            a.stamp(12)
            a.stamp_end(0, 14, sWave)
            a.i('s_endpgm')

def gen_k1(name='k1_kernel'):
    a = Asm()
    a.raw(f'.globl {name}\n.p2align 8\n.type {name},@function\n{name}:')
    a.many(f'''
    s_cmp_ge_u32 s2, 256
    s_cbranch_scc1 L_{name}_end''')
    a.stamp_begin()
    a.many(f'''
    s_load_dwordx4 s[4:7], s[0:1], 0
    s_load_dwordx4 s[8:11], s[0:1], 32
    s_load_dwordx2 s[12:13], s[0:1], 56
    s_load_dwordx2 s[14:15], s[0:1], 80
    v_lshrrev_b32 v1, 6, v0
    v_and_b32 v0, 63, v0
    s_and_b32 s{sT0}, s2, 7
    v_readfirstlane_b32 s{sWave}, v1
    s_lshr_b32 s{sT1}, s2, 3
    s_and_b32 s{sHH}, s{sT0}, 1
    s_lshr_b32 s{sT0}, s{sT0}, 1
    s_lshl_b32 s{sT0}, s{sT0}, 2
    s_and_b32 s{sRow}, s{sT1}, 3
    s_add_u32 s{sRow}, s{sRow}, s{sT0}
    s_bfe_u32 s{sC_}, s{sT1}, 0x20002
    s_mov_b32 s{sOOB}, {OOB}
    s_lshl_b32 s{sMX}, s{sWave}, 12
    ''')
    R = RegAlloc(1, 256)
    vXoff = R.get(4); vXr = R.get(4); vWb = R.get(3); vG = R.get(1)
    vWoff = R.get(9)
    t = [R.get(1) for _ in range(6)]
    a.many(f'''
    v_lshrrev_b32 v{t[0]}, 3, v0
    v_lshrrev_b32 v{t[1]}, 4, v0
    v_and_b32 v{t[2]}, 7, v0
    s_lshl_b32 s{sT2}, s{sWave}, 5
    v_add_u32 v{t[0]}, s{sT2}, v{t[0]}
    v_mul_u32_u24 v{t[0]}, 1152, v{t[0]}
    v_xor_b32 v{t[3]}, v{t[2]}, v{t[1]}
    v_lshl_add_u32 v{vXoff}, v{t[3]}, 4, v{t[0]}
    v_xor_b32 v{t[3]}, 4, v{t[3]}
    v_lshl_add_u32 v{vXoff+1}, v{t[3]}, 4, v{t[0]}
    v_add_u32 v{vXoff+1}, {8*1152}, v{vXoff+1}
    v_add_u32 v{vXoff+2}, {16*1152}, v{vXoff}
    v_add_u32 v{vXoff+3}, {16*1152}, v{vXoff+1}
    v_and_b32 v{t[0]}, 31, v0
    v_lshrrev_b32 v{t[1]}, 5, v0
    v_bfe_u32 v{t[2]}, v0, 1, 3
    v_xor_b32 v{t[2]}, v{t[2]}, v{t[1]}
    v_lshlrev_b32 v{t[0]}, 7, v{t[0]}
    v_add_u32 v{t[0]}, s{sMX}, v{t[0]}
    ''')
    for s in range(4):
        if s == 0: a.i(f'v_lshl_add_u32 v{vXr}, v{t[2]}, 4, v{t[0]}')
        else:
            a.i(f'v_xor_b32 v{t[3]}, {2*s}, v{t[2]}')
            a.i(f'v_lshl_add_u32 v{vXr+s}, v{t[3]}, 4, v{t[0]}')
    vKrow, vH, vA8 = t[3], t[4], t[5]
    a.many(f'''
    v_bfe_u32 v{vKrow}, v0, 2, 2
    v_lshl_add_u32 v{vKrow}, v{t[1]}, 3, v{vKrow}
    v_and_b32 v{vH}, 1, v0
    v_bfe_u32 v{vA8}, v0, 4, 1
    v_bfe_u32 v{t[0]}, v0, 1, 1
    v_lshl_add_u32 v{vA8}, v{vA8}, 1, v{t[0]}
    v_lshlrev_b32 v{vA8}, 3, v{vA8}
    v_lshlrev_b32 v{vG}, 4, v{t[1]}
    s_cmp_ge_u32 s{sT1}, 16
    s_cbranch_scc1 L_{name}_V
    ''')
    snap0 = a.snapshot()
    def xsrd():
        a.i('s_waitcnt lgkmcnt(0)')
        a.i(f's_mul_i32 s{sT2}, s{sRow}, {128*1152}')
        add64(a, sX, 4, f's{sT2}')
        srd(a, sX, sX, sX+1, 128*1152)
    mark = R.mark()
    RS = 576
    a.many(f'''
    s_mul_i32 s{sMW}, s{sWave}, {9*1024}
    s_mul_i32 s{sT2}, s{sWave}, {9*64}
    v_add_u32 v{t[0]}, s{sT2}, v0
    s_mov_b32 s{sT3}, 3456
    ''')
    for n in range(9):
        a.many(f'''
        v_add_u32 v{t[1]}, {64*n}, v{t[0]}
        v_mul_u32_u24 v{t[2]}, 1821, v{t[1]}
        v_lshrrev_b32 v{t[2]}, 16, v{t[2]}
        v_mul_u32_u24 v{vWoff+n}, 36, v{t[2]}
        v_sub_u32 v{t[1]}, v{t[1]}, v{vWoff+n}
        v_lshlrev_b32 v{t[1]}, 4, v{t[1]}
        v_mad_u32_u24 v{vWoff+n}, v{t[2]}, s{sT3}, v{t[1]}
        ''')
    xsrd()
    a.many(f'''
    s_mul_i32 s{sT2}, s{sC_}, 1152
    s_cmp_eq_u32 s{sC_}, 3
    s_cselect_b32 s{sT2}, 0, s{sT2}
    s_cselect_b32 s{sW}, s8, s6
    s_cselect_b32 s{sW+1}, s9, s7
    s_mul_i32 s{sT3}, s{sHH}, 576
    s_add_u32 s{sT2}, s{sT2}, s{sT3}
    s_add_u32 s{sW}, s{sW}, s{sT2}
    s_addc_u32 s{sW+1}, s{sW+1}, 0
    s_sub_u32 s{sW+2}, {576*3456}, s{sT2}
    s_mov_b32 s{sW+3}, 0x20000
    ''')
    XF = R.get(20, 4); POOL = R.get(32, 4); ACC = R.get(144, 4)
    vo = [R.get(1) for _ in range(3)]
    def extraR(phase):
        if phase == 0:
            a.many(f'''
            v_mul_u32_u24 v{t[0]}, {RS}, v{vKrow}
            v_mul_u32_u24 v{t[1]}, 288, v{vH}
            v_add3_u32 v{t[0]}, v{t[0]}, v{t[1]}, v{vA8}
            v_add_u32 v{vWb}, {WB0}, v{t[0]}
            v_add_u32 v{vWb+1}, {WB0 + 64*RS}, v{t[0]}
            v_add_u32 v{vWb+2}, {WB0 + 128*RS}, v{t[0]}
            ''')
        if phase != 1: return
        a.many(f'''
        s_mov_b32 s{sT3}, {KV_BLK}
        s_mov_b32 s{sO+2}, {KV_SZ}
        s_mov_b32 s{sT2}, {KA_OFF}
        s_mov_b32 s{sK}, {f2u(QSCALE)}
        s_cmp_eq_u32 s{sC_}, 2
        s_cselect_b32 s{sT2}, {VA_OFF}, s{sT2}
        s_cselect_b32 s{sO+2}, {KV_SZ - QK_BLK}, s{sO+2}
        s_cmp_eq_u32 s{sC_}, 0
        s_cselect_b32 s{sT2}, {QA_OFF}, s{sT2}
        s_cselect_b32 s{sT3}, {QK_BLK}, s{sT3}
        s_cselect_b32 s{sO+2}, {QK_SZ}, s{sO+2}
        s_cmp_eq_u32 s{sC_}, 3
        s_cselect_b32 s{sT2}, {QB_OFF}, s{sT2}
        s_cselect_b32 s{sT3}, {QK_BLK}, s{sT3}
        s_cselect_b32 s{sO+2}, {QK_SZ}, s{sO+2}
        s_add_u32 s{sO}, s14, s{sT2}
        s_addc_u32 s{sO+1}, s15, 0
        s_mov_b32 s{sO+3}, 0x20000
        s_lshl_b32 s{sT0}, s{sHH}, 10
        s_lshl_b32 s{sT1}, s{sRow}, 2
        s_add_u32 s{sT0}, s{sT0}, s{sT1}
        s_add_u32 s{sT0}, s{sT0}, s{sWave}
        s_mul_i32 s51, s{sT0}, s{sT3}
        s_lshl_b32 s52, s{sT3}, 6
        s_lshl_b32 s{sT3}, s{sT3}, 9
        v_lshrrev_b32 v{t[0]}, 5, v0
        v_mul_lo_u32 v{t[0]}, v{t[0]}, s{sT3}
        v_and_b32 v{t[1]}, 31, v0
        v_bfe_u32 v{t[2]}, v0, 2, 1
        v_bfe_u32 v{t[3]}, v0, 3, 1
        v_and_b32 v{t[4]}, 0x13, v0
        v_lshl_add_u32 v{t[4]}, v{t[2]}, 3, v{t[4]}
        v_lshl_add_u32 v{t[4]}, v{t[3]}, 2, v{t[4]}
        s_cmp_eq_u32 s{sC_}, 1
        s_cselect_b64 vcc, -1, 0
        v_cndmask_b32 v{t[4]}, v{t[1]}, v{t[4]}, vcc
        v_lshl_add_u32 v{vo[0]}, v{t[4]}, 4, v{t[0]}
        v_add_u32 v{vo[1]}, 512, v{vo[0]}
        v_lshl_add_u32 v{vo[2]}, v{t[4]}, 2, v{t[0]}
        v_add_u32 v{vo[2]}, 1024, v{vo[2]}
        s_cmp_lg_u32 s{sC_}, 2
        s_cbranch_scc1 L_{name}_nv
        v_xor_b32 v{vo[1]}, 64, v{vo[1]}
        v_xor_b32 v{t[3]}, 1, v{t[3]}
        v_bfe_u32 v{t[2]}, v0, 4, 1
        v_and_b32 v{t[4]}, 7, v0
        v_lshl_add_u32 v{t[4]}, v{t[2]}, 3, v{t[4]}
        v_lshl_add_u32 v{t[4]}, v{t[3]}, 4, v{t[4]}
        v_lshl_add_u32 v{vo[2]}, v{t[4]}, 3, v{t[0]}
        v_add_u32 v{vo[2]}, 1024, v{vo[2]}
        L_{name}_nv:
        ''')
    def epi(isv, scale=False):
        def f():
            Q = []
            for u in range(8):
                b = ACC + 18 * u
                e = 4 * ((18 * u + 17) // 16) + 3 + EPI_LAG
                for j in range(9):
                    if scale:
                        Q.append((e, f'v_mul_f32 v{b+2*j}, s{sK}, v{b+2*j}'))
                        Q.append((e, f'v_mul_f32 v{b+2*j+1}, s{sK}, v{b+2*j+1}'))
                for j in range(9): Q.append((e, f'v_cvt_pk_bf16_f32 v{b+j}, v{b+2*j}, v{b+2*j+1}'))
                if isv: Q.append((e, f'v_mov_b32 v{b+9}, 0x3f80'))
                Q.append((e, f'buffer_store_dwordx4 v[{b}:{b+3}], v{vo[0]}, s[{sO}:{sO+3}], s51 offen {ST}'))
                Q.append((e, f'buffer_store_dwordx4 v[{b+4}:{b+7}], v{vo[1]}, s[{sO}:{sO+3}], s51 offen {ST}'))
                if isv: Q.append((e, f'buffer_store_dwordx2 v[{b+8}:{b+9}], v{vo[2]}, s[{sO}:{sO+3}], s51 offen {ST}'))
                else: Q.append((e, f'buffer_store_dword v{b+8}, v{vo[2]}, s[{sO}:{sO+3}], s51 offen {ST}'))
                if u < 7: Q.append((e, f's_add_u32 s51, s51, s52'))
            return Q
        return f
    mainloop(a, 9, False, RS, 9, vWoff, vXoff, vWb, vXr, vG, ACC, POOL, XF, extraR, PRE1=PRE1R,
             tails=[(None, f's_cmp_eq_u32 s{sC_}, 2\ns_cbranch_scc1 L_{name}_stv', epi(0)),
                    (f'L_{name}_stv', f's_cmp_eq_u32 s{sC_}, 0\ns_cbranch_scc1 L_{name}_stq', epi(1)),
                    (f'L_{name}_stq', None, epi(0, True))])
    hiR = R.hi
    a.label(f'L_{name}_V')
    a.restore(snap0)
    R.release(mark)
    RS = 320
    GOFS = WB0 + 3 * 64 * RS
    a.many(f'''
    s_lshl_b32 s{sT0}, s{sHH}, 2
    s_add_u32 s{sC_}, s{sC_}, s{sT0}
    s_mul_i32 s{sMW}, s{sWave}, {5*1024}
    s_mul_i32 s{sT2}, s{sWave}, {16*3456}
    s_mov_b32 s{sT3}, 3456
    v_mov_b32 v{vWoff+8}, s{sOOB}
    ''')
    for n in range(5):
        a.many(f'''
        v_add_u32 v{t[1]}, {64*n}, v0
        v_mul_u32_u24 v{t[2]}, 3277, v{t[1]}
        v_lshrrev_b32 v{t[2]}, 16, v{t[2]}
        v_mul_u32_u24 v{t[0]}, 20, v{t[2]}
        v_sub_u32 v{t[1]}, v{t[1]}, v{t[0]}
        v_mul_u32_u24 v{t[2]}, s{sT3}, v{t[2]}
        v_lshl_add_u32 v{t[2]}, v{t[1]}, 4, v{t[2]}
        v_add_u32 v{t[2]}, s{sT2}, v{t[2]}
        v_add_u32 v{t[0]}, {1152-160}, v{t[2]}
        v_cmp_lt_u32 vcc, 9, v{t[1]}
        v_cndmask_b32 v{t[2]}, v{t[2]}, v{t[0]}, vcc
        v_cmp_eq_u32 vcc, 9, v{t[1]}
        v_cndmask_b32 v{t[2]}, v{t[2]}, v{vWoff+8}, vcc
        v_cmp_eq_u32 vcc, 19, v{t[1]}
        v_cndmask_b32 v{vWoff+n}, v{t[2]}, v{vWoff+8}, vcc
        ''')
    a.many(f'''
    v_mul_u32_u24 v{t[0]}, {RS}, v{vKrow}
    v_mul_u32_u24 v{t[1]}, 160, v{vH}
    v_add3_u32 v{t[0]}, v{t[0]}, v{t[1]}, v{vA8}
    v_add_u32 v{vWb}, {WB0}, v{t[0]}
    v_add_u32 v{vWb+1}, {WB0 + 64*RS}, v{t[0]}
    v_add_u32 v{vWb+2}, {WB0 + 128*RS}, v{t[0]}
    v_add_u32 v{vG}, {GOFS}, v{vG}
    ''')
    xsrd()
    a.many(f'''
    s_mul_i32 s{sT2}, s{sC_}, 144
    s_add_u32 s{sT2}, s{sT2}, 1152
    s_add_u32 s{sW}, s8, s{sT2}
    s_addc_u32 s{sW+1}, s9, 0
    s_sub_u32 s{sW+2}, {576*3456}, s{sT2}
    s_mov_b32 s{sW+3}, 0x20000
    ''')
    srd(a, sG, 12, 13, 1152)
    srd(a, sP, 10, 11, 32*648)
    XF = R.get(8, 4); POOL = R.get(32, 4); ACC = R.get(96, 4)
    T = R.get(52, 4); F1 = T; F2 = T + 16
    vP = R.get(1); vP2 = R.get(1)
    WPH = GOFS + 4096
    def extraV(phase):
        if phase == 0:
            a.i(f'v_lshlrev_b32 v{t[0]}, 4, v0')
            a.i(f's_lshl_b32 s{sT0}, s{sWave}, 10')
            a.i(f's_add_u32 m0, s{sT0}, {GOFS}')
            extraV.gtok = a.i(f'buffer_load_dwordx4 v{t[0]}, s[{sG}:{sG+3}], s{sT0} offen lds')
            return
        if phase == 1:
            wphi_dma_addr(a, T, 0, t[0], t[1], sOOB)
            a.i(f's_lshl_b32 s{sT0}, s{sC_}, 2')
            a.i(f's_add_u32 s{sT0}, s{sT0}, s{sWave}')
            a.i(f's_mul_i32 s{sT0}, s{sT0}, 648')
            a.i(f's_mul_i32 s{sT1}, s{sWave}, 768')
            wphi_dma(a, T, sP, sT0, sT1, WPH)
            wphi_rd_addr(a, vP, vP2, 0, t[0], t[1])
            a.i(f'v_add_u32 v{vP}, {WPH}, v{vP}')
            a.i(f'v_add_u32 v{vP2}, {WPH}, v{vP2}')
            a.i('s_mov_b32 s52, 0'); a.i('s_mov_b32 s53, -1')
            a.wait_vm(extraV.gtok)
    mainloop(a, 5, True, RS, 5, vWoff, vXoff, vWb, vXr, vG, ACC, POOL, XF, extraV, PRE1=PRE1V)
    a.i(f's_mov_b32 s{sK}, {f2u(LOG2E)}')
    a.i(f's_mov_b32 s{sK+1}, {f2u(-LOG2E)}')
    for H in range(4): ptok = wphi_read(a, F1+4*H, F2+4*H, vP, vP2, 768*H)
    a.i('s_barrier')
    for H in range(4):
        b = ACC + 18 * H
        for j in range(9): a.i(f'v_cvt_pk_bf16_f32 v{b+j}, v{b+2*j}, v{b+2*j+1}')
        a.i(f'v_mov_b32 v{b+9}, 0x3f80')
        a.i(f'v_mov_b32 v{b+10}, 0')
        a.i(f'v_mov_b32 v{b+11}, 0')
    for H in range(4):
        b = ACC + 18 * H
        for j in range(4): a.i(f'v_permlane32_swap_b32 v{b+j}, v{b+4+j}')
    a.wait_lg(ptok)
    for H in range(4):
        a.i(f'v_cndmask_b32 v{F2+4*H}, v{F2+4*H}, 0, s[52:53]')
        for z in range(1, 4): a.i(f'v_mov_b32 v{F2+4*H+z}, 0')
    gl = t[5]
    a.i(f'v_mul_f32 v{gl}, s{sK+1}, v{ACC+80}')
    Dr = [XF, XF + 16, ACC + 80, R.get(16, 4)]
    for H in range(4):
        b = ACC + 18 * H
        a.i(f'v_mfma_f32_32x32x16_bf16 v[{Dr[H]}:{Dr[H]+15}], v[{F1+4*H}:{F1+4*H+3}], v[{b}:{b+3}], 0')
    for H in range(4):
        b = ACC + 18 * H
        a.i(f'v_mfma_f32_32x32x16_bf16 v[{Dr[H]}:{Dr[H]+15}], v[{F2+4*H}:{F2+4*H+3}], v[{b+8}:{b+11}], v[{Dr[H]}:{Dr[H]+15}]')
    vL = R.get(1); vLV = R.get(1)
    a.many(f'''
    v_exp_f32 v{gl}, v{gl}
    s_lshl_b32 s{sT0}, s{sRow}, 7
    s_lshl_b32 s{sT1}, s{sWave}, 5
    s_add_u32 s{sT0}, s{sT0}, s{sT1}
    s_lshl_b32 s{sT0}, s{sT0}, 2
    s_add_u32 s{sO}, s14, {G_OFF}
    s_addc_u32 s{sO+1}, s15, 0
    s_mov_b32 s{sO+2}, 8192
    s_mov_b32 s{sO+3}, 0x20000
    v_add_f32 v{gl}, 1.0, v{gl}
    v_rcp_f32 v{gl}, v{gl}
    v_and_b32 v{t[0]}, 31, v0
    v_lshlrev_b32 v{t[1]}, 2, v{t[0]}
    buffer_store_dword v{gl}, v{t[1]}, s[{sO}:{sO+3}], s{sT0} offen {ST}
    s_lshl_b32 s{sT1}, s{sWave}, 5
    v_add_u32 v{t[0]}, s{sT1}, v{t[0]}
    v_mul_u32_u24 v{t[0]}, 120, v{t[0]}
    v_lshrrev_b32 v{t[1]}, 5, v0
    v_mad_u32_u24 v{vL}, v{t[1]}, 40, v{t[0]}
    v_lshl_add_u32 v{vLV}, v{t[1]}, 4, v{t[0]}
    ''')
    for H in range(4):
        b = ACC + 18 * H
        o = H * 128 * 120 + 80
        a.i(f'ds_write_b64 v{vLV}, v[{b+4}:{b+5}] offset:{o}')
        a.i(f'ds_write_b64 v{vLV}, v[{b+6}:{b+7}] offset:{o+8}')
    a.i('s_mov_b64 exec, 0xffffffff00000000' if False else 's_mov_b32 exec_lo, 0')
    for H in range(4):
        b = ACC + 18 * H
        a.i(f'ds_write_b64 v{vLV}, v[{b+8}:{b+9}] offset:{H*128*120 + 80 + 16}')
    a.i('s_mov_b32 exec_lo, -1')
    for pair in range(2):
        jobs = [(Dr[2*pair+k], ACC + 18 * (2*pair+k)) for k in range(2)]
        hedgehog(a, jobs, sK, T, 52)
        for k in range(2):
            H = 2 * pair + k
            o = ACC + 18 * H
            for j in range(5):
                a.i(f'ds_write_b64 v{vL}, v[{o+2*j}:{o+2*j+1}] offset:{H*128*120 + 8*j}')
    a.many(f'''
    v_bfe_u32 v{t[0]}, v0, 4, 1
    v_bfe_u32 v{t[1]}, v0, 2, 2
    v_lshl_add_u32 v{t[0]}, v{t[0]}, 2, v{t[1]}
    v_lshrrev_b32 v{t[1]}, 5, v0
    v_lshlrev_b32 v{t[1]}, 1, v{t[1]}
    v_lshl_add_u32 v{t[0]}, v{t[0]}, 2, v{t[1]}
    s_lshl_b32 s{sT0}, s{sWave}, 7
    v_add_u32 v{t[0]}, s{sT0}, v{t[0]}
    v_mul_u32_u24 v{t[0]}, 120, v{t[0]}
    v_and_b32 v{t[1]}, 3, v0
    v_lshl_add_u32 v{t[0]}, v{t[1]}, 3, v{t[0]}
    s_lshl_b32 s{sT0}, s{sC_}, 2
    s_add_u32 s{sT0}, s{sT0}, s{sWave}
    s_lshl_b32 s{sT0}, s{sT0}, 4
    s_add_u32 s{sT0}, s{sT0}, s{sRow}
    s_mul_i32 s{sT0}, s{sT0}, {KVP_BLK}
    s_add_u32 s{sT0}, s{sT0}, {KVP_OFF}
    s_add_u32 s{sO}, s14, s{sT0}
    s_addc_u32 s{sO+1}, s15, 0
    s_mov_b32 s{sO+2}, {KVP_BLK}
    v_and_b32 v{t[1]}, 15, v0
    v_mul_u32_u24 v{t[1]}, 160, v{t[1]}
    v_lshrrev_b32 v{t[2]}, 4, v0
    v_lshl_add_u32 v{t[1]}, v{t[2]}, 4, v{t[1]}
    v_mov_b32 v{t[2]}, s{sOOB}
    v_cmp_gt_u32 vcc, 32, v0
    v_cndmask_b32 v{t[2]}, v{t[2]}, v{t[1]}, vcc
    s_waitcnt lgkmcnt(0)
    s_barrier
    ''')
    FR = T
    KV = XF
    toks = {}
    def rd_step(ts):
        fb = FR + 20 * (ts & 1)
        for k in range(5):
            co = 32 * k if k < 3 else 80 + 32 * (k - 3)
            for rd in range(2):
                toks[ts] = a.i(f'ds_read_b64_tr_b16 v[{fb+4*k+2*rd}:{fb+4*k+2*rd+1}], v{t[0]} offset:{(32*ts+rd)*120 + co}')
    rd_step(0); rd_step(1)
    for ts in range(4):
        a.wait_lg(toks[ts])
        fb = FR + 20 * (ts & 1)
        for ft in range(3):
            for dt in range(2):
                d = KV + 4 * (2 * ft + dt)
                c = '0' if ts == 0 else f'v[{d}:{d+3}]'
                a.i(f'v_mfma_f32_16x16x32_bf16 v[{d}:{d+3}], v[{fb+4*ft}:{fb+4*ft+3}], v[{fb+12+4*dt}:{fb+15+4*dt}], {c}')
        if ts + 2 < 4: rd_step(ts + 2)
    for ft in range(3):
        for dt in range(2):
            d = KV + 4 * (2 * ft + dt)
            va = t[2] if ft == 2 else t[1]
            a.i(f'buffer_store_dwordx4 v[{d}:{d+3}], v{va}, s[{sO}:{sO+3}], 0 offen offset:{dt*2560 + ft*64} {ST}')
    a.stamp(12)
    a.stamp_end(0, 14, sWave)
    a.label(f'L_{name}_end')
    a.i('s_endpgm')
    hi = max(hiR, R.hi)
    return a.text() + kd(name, hi), 159744, hi

if __name__ == '__main__':
    for x in range(2304): assert (x * 1821) >> 16 == x // 36
    for x in range(320): assert (x * 3277) >> 16 == x // 20
    for x in range(192): assert (x * 6554) >> 16 == x // 10
    txt, lds, hi = gen_k1()
    print(len(txt.split('\n')), 'lines; vgprs', hi)
```

```python
from asmlib import *
from layout import *
import k1
from k1 import srd, add64, hedgehog, wphi_dma_addr, wphi_dma, wphi_rd_addr, wphi_read, chunk_of_lane

KB, KVL = 0, 40960
WPH = 43008
K2_LDS = 43008 + 4 * 768
NEG = f2u(-1e30)
FORCE_FALLBACK = False
PREFETCH_WO = True

def gen_k2(name='k2_kernel'):
    ST = k1.ST
    a = Asm()
    a.raw(f'.globl {name}\n.p2align 8\n.type {name},@function\n{name}:')
    sQA, sQB, sKA, sKV, sP, sGt, sO16, sO2, sWo = 16, 20, 24, 28, 32, 36, 40, 44, 48
    sWave, sHead, sT8, sT0, sT1, sT2, sOOB, sVF, sTile, sT3 = 52, 53, 54, 55, 56, 57, 58, 59, 60, 61
    sK = 62
    sSO = 16
    a.many(f'''
    s_cmp_ge_u32 s2, 256
    s_cbranch_scc1 L_{name}_end''')
    a.stamp_begin()
    a.many(f'''
    s_load_dwordx2 s[14:15], s[0:1], 80
    s_load_dwordx4 s[8:11], s[0:1], 40
    s_load_dwordx2 s[12:13], s[0:1], 16
    v_lshrrev_b32 v1, 6, v0
    s_and_b32 s{sT0}, s2, 7
    s_lshr_b32 s{sT1}, s2, 3
    v_readfirstlane_b32 s{sWave}, v1
    s_and_b32 s{sHead}, s{sT0}, 1
    s_lshl_b32 s{sHead}, s{sHead}, 4
    s_lshr_b32 s{sT2}, s{sT1}, 1
    s_add_u32 s{sHead}, s{sHead}, s{sT2}
    s_and_b32 s{sT8}, s{sT0}, 6
    s_and_b32 s{sT1}, s{sT1}, 1
    s_add_u32 s{sT8}, s{sT8}, s{sT1}
    s_mov_b32 s{sOOB}, {OOB}
    s_cmp_eq_u32 s{sT8}, 0
    s_cselect_b32 s{sVF}, 8, 0
    s_lshl_b32 s{sTile}, s{sT8}, 3
    s_lshl_b32 s{sT0}, s{sWave}, 1
    s_add_u32 s{sTile}, s{sTile}, s{sT0}
    s_mov_b32 s{sK}, {f2u(LOG2E)}
    s_mov_b32 s{sK+1}, {f2u(-LOG2E)}
    ''')
    R = RegAlloc(1, 256)
    vT = R.get(1)
    vL16 = R.get(1); vL4 = R.get(1); vL4m = R.get(1)
    t = [R.get(1) for _ in range(6)]
    vK = R.get(1); vK2 = R.get(1); vV = R.get(4); vKV = R.get(1); vo2 = R.get(1)
    G = R.get(2)
    QA = R.get(16, 4)
    MD = R.get(16, 4); ME = R.get(16, 4)
    KF = R.get(16, 4); VF = R.get(16, 4)
    BIG = R.get(152, 4)
    Sb = [BIG, BIG + 16]; O = [BIG + 32, BIG + 48]; PART = BIG + 64; PH = [BIG + 128, BIG + 140]
    QB = KF; F1 = VF; F2 = VF + 4; vD = VF + 8; vP = VF + 11; vP2 = VF + 12; vQt = VF + 13; QT = VF + 14
    D = Sb; T = BIG + 32
    sHi = 6
    a.many(f'''
    v_mov_b32 v{vT}, v0
    v_and_b32 v0, 63, v0
    v_lshlrev_b32 v{vL16}, 4, v0
    v_and_b32 v{t[0]}, 31, v0
    v_lshlrev_b32 v{vL4}, 2, v{t[0]}
    v_lshrrev_b32 v{t[0]}, 5, v0
    v_mul_u32_u24 v{t[0]}, {QK_BLK}, v{t[0]}
    v_add_u32 v{vQt}, v{t[0]}, v{vL4}
    s_mov_b32 s{sHi}, 0
    s_mov_b32 s{sHi+1}, -1
    ''')
    wphi_dma_addr(a, vD, 0, t[0], t[1], sOOB)
    a.many(f'''
    s_mul_i32 s{sT0}, s{sHead}, {64*QK_BLK}
    s_mul_i32 s{sT1}, s{sTile}, {QK_BLK}
    s_add_u32 s{sT2}, s{sT1}, {QK_BLK}
    s_mul_i32 s{sT3}, s{sHead}, 648
    s_mul_i32 s4, s{sWave}, 768
    s_waitcnt lgkmcnt(0)
    ''')
    a.stamp(1)
    srd(a, sP, 8, 9, 32*648)
    wphi_dma(a, vD, sP, sT3, 4, WPH)
    a.i(f's_add_u32 s{sQB}, s14, s{sT0}'); a.i(f's_addc_u32 s{sQB+1}, s15, 0')
    a.i(f's_add_u32 s{sQA}, s{sQB}, {QA_OFF}'); a.i(f's_addc_u32 s{sQA+1}, s{sQB+1}, 0')
    a.i(f's_add_u32 s{sQB}, s{sQB}, {QB_OFF}'); a.i(f's_addc_u32 s{sQB+1}, s{sQB+1}, 0')
    srd(a, sQB, sQB, sQB+1, 64*QK_BLK)
    def loadQ(sR, Q, qt):
        for x in range(2):
            so = sT1 if x == 0 else sT2
            a.i(f'buffer_load_dwordx4 v[{Q+8*x}:{Q+8*x+3}], v{vL16}, s[{sR}:{sR+3}], s{so} offen')
        return a.i(f'buffer_load_dword v{qt}, v{vQt}, s[{sR}:{sR+3}], s{sT1} offen offset:1024')
    tokB = loadQ(sQB, QB, QT)
    srd(a, sQA, sQA, sQA+1, 64*QK_BLK)
    tokA = loadQ(sQA, QA, QT + 1)
    a.i(f's_mul_i32 s{sT1}, s{sHead}, {64*KV_BLK}')
    a.i(f's_add_u32 s{sT1}, s{sT1}, {KA_OFF}')
    add64(a, sKA, 14, f's{sT1}'); srd(a, sKA, sKA, sKA+1, 64*KV_BLK)
    a.many(f'''
    s_lshl_b32 s{sT1}, s{sT8}, 3
    s_sub_u32 s{sT1}, s{sT1}, 8
    s_mul_i32 s{sT1}, s{sT1}, {KV_BLK}
    s_lshl_b32 s{sT2}, s{sWave}, 10
    s_add_u32 s{sT1}, s{sT1}, s{sT2}
    ''')
    for k in range(10):
        a.i(f's_cmp_lt_i32 s{sT1}, 0')
        a.i(f's_cselect_b32 s{sT3}, s{sOOB}, s{sT1}')
        a.i(f'v_add_u32 v{t[k%6]}, s{sT3}, v{vL16}')
        a.i(f's_add_u32 m0, s{sT2}, {KB + 4096*k}')
        tokK = a.i(f'buffer_load_dwordx4 v{t[k%6]}, s[{sKA}:{sKA+3}], 0 offen lds')
        if k < 9: a.i(f's_add_u32 s{sT1}, s{sT1}, 4096')
    a.i(f's_add_u32 s{sGt}, s14, {G_OFF}'); a.i(f's_addc_u32 s{sGt+1}, s15, 0'); srd(a, sGt, sGt, sGt+1, 8192)
    a.i(f's_lshl_b32 s{sT1}, s{sTile}, 7')
    a.i(f'v_lshlrev_b32 v{G+1}, 2, v0')
    tokG = a.i(f'buffer_load_dword v{G}, v{G+1}, s[{sGt}:{sGt+3}], s{sT1} offen')
    a.stamp(2)
    wphi_rd_addr(a, vP, vP2, 0, t[0], t[1])
    a.i(f's_add_u32 s4, s4, {WPH}')
    a.i(f'v_add_u32 v{vP}, s4, v{vP}')
    a.i(f'v_add_u32 v{vP2}, s4, v{vP2}')
    for x in range(2):
        for z in range(5, 8):
            a.i(f'v_mov_b32 v{QA+8*x+z}, 0'); a.i(f'v_mov_b32 v{QB+8*x+z}, 0')
    a.many(f'''
    v_mov_b32 v{t[1]}, s{sOOB}
    v_cndmask_b32 v{vL4m}, v{vL4}, v{t[1]}, s[{sHi}:{sHi+1}]
    s_lshl_b32 s{sT0}, s{sHead}, 6
    s_add_u32 s{sT0}, s{sT0}, s{sTile}
    s_lshl_b32 s{sSO}, s{sT0}, 10
    s_add_u32 s{sSO+1}, s{sSO}, 1024
    s_add_u32 s{sSO+2}, s{sSO}, {2048*1024}
    s_add_u32 s{sSO+3}, s{sSO}, {2049*1024}
    s_lshl_b32 s{sT1}, s{sTile}, 3
    s_lshr_b32 s{sT2}, s{sHead}, 2
    s_add_u32 s{sT1}, s{sT1}, s{sT2}
    s_lshl_b32 s{sSO+4}, s{sT1}, 9
    s_add_u32 s{sSO+5}, s{sSO+4}, 4096
    s_add_u32 s{sSO+6}, s{sSO+4}, {64*4096}
    s_add_u32 s{sSO+7}, s{sSO+4}, {65*4096}
    ''')
    a.i(f's_mul_i32 s{sT1}, s{sHead}, {16*KVP_BLK}')
    a.i(f's_add_u32 s{sT1}, s{sT1}, {KVP_OFF}')
    add64(a, sKV, 14, f's{sT1}'); srd(a, sKV, sKV, sKV+1, 16*KVP_BLK)
    a.i(f's_add_u32 s{sO16}, s14, {O16_OFF}'); a.i(f's_addc_u32 s{sO16+1}, s15, 0'); srd(a, sO16, sO16, sO16+1, O16_SZ)
    a.i(f's_add_u32 s{sO2}, s14, {O2_OFF}'); a.i(f's_addc_u32 s{sO2+1}, s15, 0'); srd(a, sO2, sO2, sO2+1, O2_SZ)
    a.many(f'''
    s_mul_i32 s{sT1}, s{sWave}, {2*KV_BLK}
    v_add_u32 v{vK}, s{sT1}, v{vL16}
    v_add_u32 v{vK2}, s{sT1}, v{vL4}
    v_add_u32 v{vK2}, {KB+1024}, v{vK2}
    s_add_u32 s{sT1}, s{sT1}, {KB+QK_BLK}
    v_lshrrev_b32 v{t[1]}, 5, v0
    v_bfe_u32 v{t[2]}, v0, 2, 2
    v_and_b32 v{t[3]}, 1, v0
    v_bfe_u32 v{t[4]}, v0, 1, 1
    v_bfe_u32 v{t[5]}, v0, 4, 1
    v_cmp_eq_u32 vcc, 1, v{t[5]}
    ''')
    tmpA, tmpB = MD, MD + 1
    for s in range(2):
        for rd in range(2):
            d = vV + 2 * s + rd
            a.many(f'''
            v_lshl_add_u32 v{tmpA}, v{t[1]}, 3, v{t[2]}
            v_add_u32 v{tmpA}, {16*s+4*rd}, v{tmpA}
            v_lshlrev_b32 v{tmpB}, 2, v{t[3]}
            v_xor_b32 v{tmpA}, v{tmpA}, v{tmpB}
            v_lshlrev_b32 v{tmpA}, 4, v{tmpA}
            v_lshl_add_u32 v{tmpA}, v{t[3]}, 9, v{tmpA}
            v_lshl_add_u32 v{tmpA}, v{t[4]}, 3, v{tmpA}
            v_xor_b32 v{tmpB}, 1, v{t[1]}
            v_lshl_add_u32 v{tmpB}, v{tmpB}, 4, v{t[2]}
            v_add_u32 v{tmpB}, {128 + 8*s + 4*rd}, v{tmpB}
            v_lshlrev_b32 v{tmpB}, 3, v{tmpB}
            v_cndmask_b32 v{d}, v{tmpA}, v{tmpB}, vcc
            v_add_u32 v{d}, s{sT1}, v{d}
            ''')
    a.many(f'''
    v_bfe_u32 v{t[2]}, v0, 3, 2
    v_bfe_u32 v{t[3]}, v0, 2, 1
    v_lshl_add_u32 v{t[3]}, v{t[3]}, 1, v{t[2]}
    v_cmp_lt_u32 vcc, 1, v{t[2]}
    v_cndmask_b32 v{t[3]}, v{t[3]}, 4, vcc
    v_and_b32 v{t[2]}, 3, v0
    v_lshl_add_u32 v{t[3]}, v{t[3]}, 2, v{t[2]}
    v_mul_u32_u24 v{t[3]}, 80, v{t[3]}
    v_mad_u32_u24 v{vKV}, v{t[1]}, 40, v{t[3]}
    v_add_u32 v{vKV}, {KVL}, v{vKV}
    s_and_b32 s{sT0}, s{sHead}, 3
    s_lshl_b32 s{sT0}, s{sT0}, 2
    v_lshlrev_b32 v{vo2}, 2, v{vL4m}
    v_cmp_gt_u32 vcc, 32, v0
    v_cndmask_b32 v{vo2}, v{vL4m}, v{vo2}, vcc
    v_add_u32 v{vo2}, s{sT0}, v{vo2}
    v_and_b32 v{t[2]}, 31, v0
    v_lshlrev_b32 v{t[3]}, 3, v{t[1]}
    v_sub_u32 v{t[2]}, v{t[2]}, v{t[3]}
    v_mov_b32 v{t[3]}, {NEG}
    ''')
    for r in range(16):
        aa, e = r >> 2, r & 3
        kc = 16 * (aa >> 1) + 4 * (aa & 1) + e
        sp = 64 + 2 * (r & 3) if not Asm.prof else 48 + 2 * (r & 1)
        a.i(f'v_cmp_le_i32 s[{sp}:{sp+1}], {kc}, v{t[2]}')
        if r & 1:
            for rr in (r - 1, r):
                sq = 64 + 2 * (rr & 3) if not Asm.prof else 48 + 2 * (rr & 1)
                a.i(f'v_cndmask_b32 v{MD+rr}, v{t[3]}, 0, s[{sq}:{sq+1}]')
                a.i(f'v_cndmask_b32 v{ME+rr}, 0, v{t[3]}, s[{sq}:{sq+1}]')
    a.wait_vm(tokB)
    a.stamp(3)
    ptk = wphi_read(a, F1, F2, vP, vP2, 0)
    a.i(f'v_cndmask_b32 v{QB+4}, v{QT}, 0, s[{sHi}:{sHi+1}]')
    a.i(f'v_cndmask_b32 v{QB+12}, 0, v{QT}, s[{sHi}:{sHi+1}]')
    for x in range(2):
        for z in range(9, 12): a.i(f'v_mov_b32 v{PH[x]+z}, 0')
    a.i(f'v_mov_b32 v{F2+2}, 0'); a.i(f'v_mov_b32 v{F2+3}, 0')
    a.wait_lg(ptk)
    a.i(f'v_mov_b32 v{F2+1}, 0')
    for x in range(2):
        a.i(f'v_mfma_f32_32x32x16_bf16 v[{D[x]}:{D[x]+15}], v[{F1}:{F1+3}], v[{QB+8*x}:{QB+8*x+3}], 0')
    for x in range(2):
        a.i(f'v_mfma_f32_32x32x16_bf16 v[{D[x]}:{D[x]+15}], v[{F2}:{F2+3}], v[{QB+8*x+4}:{QB+8*x+7}], v[{D[x]}:{D[x]+15}]')
    vPt, vPf = t[4], t[5]
    a.many(f'''
    v_lshlrev_b32 v{vPt}, 4, v{vT}
    v_mov_b32 v{t[1]}, s{sOOB}
    v_cmp_gt_u32 vcc, 200, v{vT}
    v_cndmask_b32 v{vPt}, v{t[1]}, v{vPt}, vcc
    s_lshr_b32 s{sT1}, s2, 3
    s_lshl_b32 s{sT1}, s{sT1}, 15
    v_lshlrev_b32 v{vPf}, 7, v{vT}
    v_add_u32 v{vPf}, s{sT1}, v{vPf}
    ''')
    srd(a, sWo, 12, 13, 576*1152)
    srd(a, sP, 10, 11, 576*1152)
    a.wait_vm(tokA)
    a.i(f'v_cndmask_b32 v{QA+4}, v{QT+1}, 0, s[{sHi}:{sHi+1}]')
    a.i(f'v_cndmask_b32 v{QA+12}, 0, v{QT+1}, s[{sHi}:{sHi+1}]')
    hedgehog(a, [(D[0], PH[0]), (D[1], PH[1])], sK, T, sHi)
    a.stamp(4)
    a.wait_vm(tokG)
    a.i('s_barrier')
    a.stamp(5)
    a.i(f'v_mov_b32 v{G+1}, v{G}')
    a.i(f's_mov_b32 s{sT1}, 0')
    side_loads = []
    for p in range(16):
        side_loads.append([f'buffer_load_dwordx4 v[{PART+4*p}:{PART+4*p+3}], v{vPt}, s[{sKV}:{sKV+3}], s{sT1} offen',
                           f's_add_u32 s{sT1}, s{sT1}, {KVP_BLK}'])
    if PREFETCH_WO:
        pf = [f'buffer_load_dword v{t[2]}, v{vPf}, s[{sWo}:{sWo+3}], 0 offen', f'buffer_load_dword v{t[3]}, v{vPf}, s[{sP}:{sP+3}], 0 offen']
        side_loads = [pf] + side_loads
    units = [(0, 0)] + [(x, n) for n in range(1, 9) for x in range(2)] + [(1, 9)]
    kt = {}; vt = {}
    def rdK(n):
        if n > 9 or n in kt: return
        f = KF + 8 * (n & 1)
        a.i(f'ds_read_b128 v[{f}:{f+3}], v{vK} offset:{n*KV_BLK}')
        kt[n] = a.i(f'ds_read_b32 v{f+4}, v{vK2} offset:{n*KV_BLK}')
    def rdV(n):
        if n > 9 or n in vt: return
        f = VF + 8 * (n & 1)
        for s in range(2):
            for rd in range(2):
                vt[n] = a.i(f'ds_read_b64_tr_b16 v[{f+4*s+2*rd}:{f+4*s+2*rd+1}], v{vV+2*s+rd} offset:{n*KV_BLK}')
    def mS(u, part):
        if u >= 18: return
        x, n = units[u]; f = KF + 8 * (n & 1); sn = Sb[u & 1]
        if part == 0:
            a.wait_lg(kt[n])
            c = f'v[{ME}:{ME+15}]' if n - x == 0 else (f'v[{MD}:{MD+15}]' if n - x == 8 else '0')
            a.i(f'v_mfma_f32_32x32x16_bf16 v[{sn}:{sn+15}], v[{f}:{f+3}], v[{QA+8*x}:{QA+8*x+3}], {c}')
        else:
            a.i(f'v_mfma_f32_32x32x16_bf16 v[{sn}:{sn+15}], v[{f+4}:{f+7}], v[{QA+8*x+4}:{QA+8*x+7}], v[{sn}:{sn+15}]')
    first = {0: True, 1: True}
    PB = [t[0], None]
    def mPV(u, part, P):
        x, n = units[u]; f = VF + 8 * (n & 1)
        a.wait_lg(vt[n])
        c = '0' if first[x] else f'v[{O[x]}:{O[x]+15}]'
        first[x] = False
        a.i(f'v_mfma_f32_32x32x16_bf16 v[{O[x]}:{O[x]+15}], v[{f+4*part}:{f+4*part+3}], v[{P}:{P+3}], {c}')
    rdK(0); rdK(1); rdV(0); rdV(1)
    a.i(f'v_permlane32_swap_b32 v{G}, v{G+1}')
    mS(0, 0); mS(0, 1)
    pend = None
    for u in range(18):
        x, n = units[u]; sn = Sb[u & 1]
        E = lambda r: a.i(f'v_exp_f32 v{sn+r}, v{sn+r}')
        C = lambda r: a.i(f'v_cvt_pk_bf16_f32 v{sn + (r if r < 4 else r + 4)}, v{sn+2*r}, v{sn+2*r+1}')
        E(0); E(1)
        if pend: mPV(*pend); pend = None
        E(2); E(3); E(4)
        mS(u + 1, 0)
        if u + 1 < 18 and units[u + 1][0] == 1 or u == 0: rdK(units[min(u + 1, 17)][1] + 1)
        E(5); C(0); C(1); E(6); E(7)
        mS(u + 1, 1)
        E(8); C(2); C(3); E(9); E(10)
        mPV(u, 0, sn)
        if side_loads:
            for ins in side_loads.pop(0): a.i(ins)
        ptok = a.last_vm()
        E(11); E(12); E(13); C(4); C(5); E(14); E(15)
        if x == 0 and u > 0: rdV(n + 1)
        C(6); C(7)
        pend = (u, 1, sn + 8)
    mPV(*pend)
    a.stamp(6)
    a.wait_vm(ptok)
    for lvl in (8, 4, 2, 1):
        for p in range(lvl):
            for h in (0, 2):
                x = PART + 4 * p + h; y = PART + 4 * (p + lvl) + h
                a.i(f'v_pk_add_f32 v[{x}:{x+1}], v[{x}:{x+1}], v[{y}:{y+1}]')
    a.i(f'v_cvt_pk_bf16_f32 v{PART}, v{PART}, v{PART+1}')
    a.i(f'v_cvt_pk_bf16_f32 v{PART+1}, v{PART+2}, v{PART+3}')
    a.i(f'v_lshlrev_b32 v{t[0]}, 3, v{vT}')
    a.i(f'ds_write_b64 v{t[0]}, v[{PART}:{PART+1}] offset:{KVL}')
    def store_o(Oreg, side, x, scale):
        for j in range(5):
            a.i(f'v_pk_mul_f32 v[{Oreg+2*j}:{Oreg+2*j+1}], v[{Oreg+2*j}:{Oreg+2*j+1}], v[{scale}:{scale+1}] op_sel_hi:[1,0]')
        for j in range(5):
            a.i(f'v_cvt_pk_bf16_f32 v{Oreg+j}, v{Oreg+2*j}, v{Oreg+2*j+1}')
        a.i(f'buffer_store_dwordx4 v[{Oreg}:{Oreg+3}], v{vL16}, s[{sO16}:{sO16+3}], s{sSO+2*side+x} offen {ST}')
        a.i(f'buffer_store_dword v{Oreg+4}, v{vo2}, s[{sO2}:{sO2+3}], s{sSO+4+2*side+x} offen {ST}')
    lo, hi = (f2u(2.0 ** -30), f2u(2.0 ** 30)) if not FORCE_FALLBACK else (f2u(2.0 ** 30), f2u(2.0 ** 31))
    a.many(f'''
    v_min_f32 v{t[1]}, v{O[0]+10}, v{O[1]+10}
    v_max_f32 v{t[2]}, v{O[0]+10}, v{O[1]+10}
    v_add_f32 v{t[3]}, v{O[0]+10}, v{O[1]+10}
    v_cmp_nle_f32 vcc, {lo}, v{t[1]}
    s_mov_b64 s[4:5], vcc
    v_cmp_nge_f32 vcc, {hi}, v{t[2]}
    s_or_b64 s[4:5], s[4:5], vcc
    v_cmp_u_f32 vcc, v{t[3]}, v{t[3]}
    s_or_b64 s[4:5], s[4:5], vcc
    s_cbranch_scc1 L_{name}_skipA
    ''')
    snap = a.snapshot()
    for x in range(2):
        sc = PART + 8 + 2 * x
        a.i(f'v_rcp_f32 v{sc}, v{O[x]+10}')
        a.i(f'v_mul_f32 v{sc}, v{sc}, v{G+x}')
        store_o(O[x], 0, x, sc)
    a.label(f'L_{name}_skipA')
    a.i('s_waitcnt lgkmcnt(0)')
    a.i('s_barrier')
    KVF = KF
    for s in range(2):
        a.i(f'ds_read_b64 v[{KVF+4*s}:{KVF+4*s+1}], v{vKV} offset:{16*s}')
        a.i(f'ds_read_b64 v[{KVF+4*s+2}:{KVF+4*s+3}], v{vKV} offset:{16*s+8}')
    ktok = a.i(f'ds_read_b32 v{KVF+8}, v{vKV} offset:32')
    for z in range(9, 12): a.i(f'v_mov_b32 v{KVF+z}, 0')
    a.wait_lg(ktok)
    for s in range(3):
        for x in range(2):
            c = '0' if s == 0 else f'v[{D[x]}:{D[x]+15}]'
            a.i(f'v_mfma_f32_32x32x16_bf16 v[{D[x]}:{D[x]+15}], v[{KVF+4*s}:{KVF+4*s+3}], v[{PH[x]+4*s}:{PH[x]+4*s+3}], {c}')
    for x in range(2):
        sc = PART + 12 + 2 * x
        a.i(f'v_add_f32 v{sc}, {f2u(1e-6)}, v{D[x]+10}')
        a.i(f'v_rcp_f32 v{sc}, v{sc}')
        a.i(f'v_sub_f32 v{sc+1}, 1.0, v{G+x}')
        a.i(f'v_mul_f32 v{sc}, v{sc}, v{sc+1}')
        store_o(D[x], 1, x, sc)
    a.stamp(7)
    a.i('s_cmp_eq_u64 s[4:5], 0')
    a.i(f's_cbranch_scc1 L_{name}_done')
    a.i('s_nop 7')
    S = BIG; OE = MD
    OE = VF
    for z in (5, 6, 7, 13, 14, 15): a.i(f'v_mov_b32 v{KF+z}, 0')
    for x in range(2):
        kt = {}
        def rdK2(n):
            f = KF + 8 * (n & 1)
            a.i(f'ds_read_b128 v[{f}:{f+3}], v{vK} offset:{(x+n)*KV_BLK}')
            kt[n] = a.i(f'ds_read_b32 v{f+4}, v{vK2} offset:{(x+n)*KV_BLK}')
        if x == 1:
            for z in (5, 6, 7): a.i(f'v_mov_b32 v{KF+z}, 0')
        rdK2(0); rdK2(1)
        for n in range(9):
            a.wait_lg(kt[n])
            f = KF + 8 * (n & 1); sn = S + 16 * n
            c = f'v[{ME}:{ME+15}]' if n == 0 else (f'v[{MD}:{MD+15}]' if n == 8 else '0')
            a.i(f'v_mfma_f32_32x32x16_bf16 v[{sn}:{sn+15}], v[{f}:{f+3}], v[{QA+8*x}:{QA+8*x+3}], {c}')
            a.i(f'v_mfma_f32_32x32x16_bf16 v[{sn}:{sn+15}], v[{f+4}:{f+7}], v[{QA+8*x+4}:{QA+8*x+7}], v[{sn}:{sn+15}]')
            if n + 2 < 9: rdK2(n + 2)
        a.flush_hazards()
        a.i(f's_lshl_b32 s{sT0}, s{sWave}, 1')
        for n in range(8):
            a.i(f's_add_u32 s{sT1}, s{sT0}, {x+n}')
            a.i(f's_cmp_ge_u32 s{sT1}, s{sVF}')
            a.i(f's_cbranch_scc1 L_{name}_v{x}')
            for r in range(16): a.i(f'v_mov_b32 v{S+16*n+r}, {NEG}')
        a.label(f'L_{name}_v{x}')
        m = t[0:4]
        for k in range(4):
            b = S + 36 * k
            a.i(f'v_max3_f32 v{m[k]}, v{b}, v{b+1}, v{b+2}')
        for j in range(3, 35, 2):
            for k in range(4):
                b = S + 36 * k
                a.i(f'v_max3_f32 v{m[k]}, v{m[k]}, v{b+j}, v{b+j+1}')
        for k in range(4): a.i(f'v_max_f32 v{m[k]}, v{m[k]}, v{S+36*k+35}')
        a.i(f'v_max3_f32 v{m[0]}, v{m[0]}, v{m[1]}, v{m[2]}')
        a.i(f'v_max_f32 v{m[0]}, v{m[0]}, v{m[3]}')
        a.i(f'v_mov_b32 v{m[1]}, v{m[0]}')
        a.i(f'v_permlane32_swap_b32 v{m[0]}, v{m[1]}')
        a.i(f'v_max_f32 v{m[0]}, v{m[0]}, v{m[1]}')
        for n in range(9):
            sn = S + 16 * n
            for s in range(2):
                for rd in range(2):
                    vtk = a.i(f'ds_read_b64_tr_b16 v[{KF+4*s+2*rd}:{KF+4*s+2*rd+1}], v{vV+2*s+rd} offset:{(x+n)*KV_BLK}')
            for r in range(16): a.i(f'v_sub_f32 v{sn+r}, v{sn+r}, v{m[0]}')
            for r in range(16): a.i(f'v_exp_f32 v{sn+r}, v{sn+r}')
            for r in range(8): a.i(f'v_cvt_pk_bf16_f32 v{sn+r}, v{sn+2*r}, v{sn+2*r+1}')
            a.wait_lg(vtk)
            c = '0' if n == 0 else f'v[{OE}:{OE+15}]'
            a.i(f'v_mfma_f32_32x32x16_bf16 v[{OE}:{OE+15}], v[{KF}:{KF+3}], v[{sn}:{sn+3}], {c}')
            a.i(f'v_mfma_f32_32x32x16_bf16 v[{OE}:{OE+15}], v[{KF+4}:{KF+7}], v[{sn+4}:{sn+7}], v[{OE}:{OE+15}]')
        sc = S
        a.i(f'v_rcp_f32 v{sc}, v{OE+10}')
        a.i(f'v_mul_f32 v{sc}, v{sc}, v{G+x}')
        store_o(OE, 0, x, sc)
    a.label(f'L_{name}_done')
    a.stamp_end(1, 14, sWave)
    a.label(f'L_{name}_end')
    a.i('s_endpgm')
    return a.text() + kd(name, R.hi), K2_LDS, R.hi

if __name__ == '__main__':
    txt, lds, hi = gen_k2()
    print(len(txt.split('\n')), 'lines; vgprs', hi)
    L = txt.split('\n')
    i = [k for k, l in enumerate(L) if 's_barrier' in l][0]
    print('\n'.join(L[i:i+150]))
```

```python
from asmlib import *
from layout import *
from k1 import srd, add64

K3_LDS = 1152 * 128
K3_GRID = 200
LEAD = 3
NO = 16

def gen_k3(name='k3_kernel'):
    a = Asm()
    a.raw(f'.globl {name}\n.p2align 8\n.type {name},@function\n{name}:')
    sWo = [16, 20]; sO16, sO2, sOut = 24, 28, 32
    sWave, sRow, sCol, sT0, sT1, sT2 = 36, 37, 38, 39, 40, 41
    a.many(f'''
    s_and_b32 s{sT0}, s2, 7
    s_lshr_b32 s{sT1}, s2, 3
    s_mul_i32 s{sT0}, s{sT0}, 25
    s_add_u32 s{sT0}, s{sT0}, s{sT1}
    s_cmp_ge_u32 s2, 200
    s_cbranch_scc1 L_{name}_end
    s_cmp_ge_u32 s{sT0}, 198
    s_cbranch_scc1 L_{name}_end''')
    a.stamp_begin()
    a.many(f'''
    s_load_dwordx2 s[4:5], s[0:1], 16
    s_load_dwordx2 s[6:7], s[0:1], 48
    s_load_dwordx2 s[8:9], s[0:1], 64
    s_load_dwordx2 s[14:15], s[0:1], 80
    v_lshrrev_b32 v1, 6, v0
    v_and_b32 v0, 63, v0
    s_mul_i32 s{sRow}, s{sT0}, 7282
    v_readfirstlane_b32 s{sWave}, v1
    s_lshr_b32 s{sRow}, s{sRow}, 16
    s_mul_i32 s{sT1}, s{sRow}, 9
    s_sub_u32 s{sCol}, s{sT0}, s{sT1}
    s_lshl_b32 s{sT0}, s{sCol}, 7
    s_cmp_eq_u32 s{sWave}, 3
    s_cbranch_scc1 L_{name}_ld
    ''')
    snap0 = a.snapshot()
    R = RegAlloc(1, 256)
    t = [R.get(1) for _ in range(6)]
    vL16 = R.get(1); vOut = R.get(1)
    vA = R.get(6)
    OF = R.get(4 * NO, 4)
    P = 8
    POOL = R.get(4 * P, 4)
    ACC = R.get(32, 4)
    NST = 18
    a.many(f'''
    v_lshlrev_b32 v{vL16}, 4, v0
    s_mul_i32 s{sT1}, s{sRow}, 3
    s_add_u32 s{sT1}, s{sT1}, s{sWave}
    s_cmp_ge_u32 s{sT1}, 64
    s_cselect_b32 s42, 0, {O16_SZ - 63*1024}
    s_cselect_b32 s43, 0, {O2_SZ - 63*4096}
    s_min_u32 s{sT1}, s{sT1}, 63
    s_waitcnt lgkmcnt(0)
    ''')
    a.stamp(1)
    a.i(f's_lshl_b32 s{sT2}, s{sT1}, 10'); a.i(f's_add_u32 s{sT2}, s{sT2}, {O16_OFF}')
    add64(a, sO16, 14, f's{sT2}'); srd(a, sO16, sO16, sO16+1, 's42')
    a.i(f's_lshl_b32 s{sT2}, s{sT1}, 12'); a.i(f's_add_u32 s{sT2}, s{sT2}, {O2_OFF}')
    add64(a, sO2, 14, f's{sT2}'); srd(a, sO2, sO2, sO2+1, 's43')
    otok = {}
    def loadO(step):
        if step >= 72: return
        side, ls = divmod(step, 36)
        f = OF + 4 * (step % NO)
        if ls < 32:
            a.i(f's_mov_b32 s{sT2}, {(side*32 + ls)*65536}')
            otok[step] = a.i(f'buffer_load_dwordx4 v[{f}:{f+3}], v{vL16}, s[{sO16}:{sO16+3}], s{sT2} offen')
        else:
            a.i(f's_mov_b32 s{sT2}, {side*64*4096 + (ls-32)*1024}')
            otok[step] = a.i(f'buffer_load_dwordx4 v[{f}:{f+3}], v{vL16}, s[{sO2}:{sO2+3}], s{sT2} offen')
    for s in range(NO): loadO(s)
    a.i(f's_mul_i32 s{sT2}, s{sT1}, {32*1152}'); a.i(f's_add_u32 s{sT2}, s{sT2}, s{sT0}')
    add64(a, sOut, 8, f's{sT2}')
    a.i(f's_sub_u32 s{sOut+2}, {2048*1152}, s{sT2}'); a.i(f's_mov_b32 s{sOut+3}, 0x20000')
    a.i('s_cmp_eq_u32 s42, 0'); a.i(f's_cselect_b32 s{sOut+2}, 0, s{sOut+2}')
    a.many(f'''
    v_lshrrev_b32 v{t[0]}, 5, v0
    v_bfe_u32 v{t[1]}, v0, 2, 2
    v_lshl_add_u32 v{t[2]}, v{t[0]}, 3, v{t[1]}
    v_lshlrev_b32 v{t[2]}, 7, v{t[2]}
    v_and_b32 v{t[3]}, 1, v0
    v_lshlrev_b32 v{t[3]}, 2, v{t[3]}
    v_bfe_u32 v{t[4]}, v0, 4, 1
    v_add_u32 v{t[3]}, v{t[3]}, v{t[4]}
    v_and_b32 v{t[1]}, 2, v{t[1]}
    v_xor_b32 v{t[3]}, v{t[3]}, v{t[1]}
    v_bfe_u32 v{t[4]}, v0, 1, 1
    v_lshl_add_u32 v{t[2]}, v{t[4]}, 3, v{t[2]}
    v_lshl_add_u32 v{vA}, v{t[3]}, 4, v{t[2]}
    v_xor_b32 v{t[3]}, 2, v{t[3]}
    v_lshl_add_u32 v{vA+1}, v{t[3]}, 4, v{t[2]}
    v_add_u32 v{vA+2}, 49152, v{vA}
    v_add_u32 v{vA+3}, 49152, v{vA+1}
    v_add_u32 v{vA+4}, 98304, v{vA}
    v_add_u32 v{vA+5}, 98304, v{vA+1}
    v_and_b32 v{t[1]}, 31, v0
    v_mul_u32_u24 v{vOut}, 1152, v{t[1]}
    v_lshl_add_u32 v{vOut}, v{t[0]}, 6, v{vOut}
    ''')
    D = 6
    ftok = {}
    def rd(q):
        if q >= 144: return
        step, m = divmod(q, 2)
        row = 16 * step
        third = (row * 128) // 49152
        f = POOL + 4 * (q % P)
        for r in range(2):
            ftok[q] = a.i(f'ds_read_b64_tr_b16 v[{f+2*r}:{f+2*r+1}], v{vA+2*third+m} offset:{(row+4*r)*128 - third*49152}')
    a.i('s_barrier')
    a.stamp(2)
    for q in range(D): rd(q)
    for q in range(144):
        step, m = divmod(q, 2)
        a.wait_vm(otok[step]); a.wait_lg(ftok[q])
        f = POOL + 4 * (q % P); o = OF + 4 * (step % NO); acc = ACC + 16 * m
        c = '0' if step == 0 else f'v[{acc}:{acc+15}]'
        a.i(f'v_mfma_f32_32x32x16_bf16 v[{acc}:{acc+15}], v[{f}:{f+3}], v[{o}:{o+3}], {c}')
        if (q + D) % 8 == 0 and (q + D) // 8 < NST:
            a.i('s_barrier')
        rd(q + D)
        if m == 1:
            loadO(step + NO)
            if step % 8 == 7: a.stamp(3 + step // 8)
    for j in range(16):
        a.i(f'v_cvt_pk_bf16_f32 v{ACC+j}, v{ACC+2*j}, v{ACC+2*j+1}')
    for j in range(4):
        a.i(f'buffer_store_dwordx4 v[{ACC+4*j}:{ACC+4*j+3}], v{vOut}, s[{sOut}:{sOut+3}], 0 offen offset:{16*j}')
    a.stamp(12)
    a.stamp_end(2, 14, sWave)
    a.i('s_endpgm')
    a.label(f'L_{name}_ld')
    a.restore(snap0)
    vWh, vWt = t[4], t[5]
    a.many(f'''
    v_lshrrev_b32 v{t[0]}, 3, v0
    v_and_b32 v{t[1]}, 7, v0
    v_bfe_u32 v{t[2]}, v0, 4, 1
    v_lshlrev_b32 v{t[2]}, 1, v{t[2]}
    v_xor_b32 v{t[1]}, v{t[1]}, v{t[2]}
    v_lshlrev_b32 v{t[1]}, 4, v{t[1]}
    v_mul_u32_u24 v{vWh}, 1152, v{t[0]}
    v_add_u32 v{vWh}, v{vWh}, v{t[1]}
    v_lshrrev_b32 v{t[2]}, 1, v{t[0]}
    v_mul_u32_u24 v{t[2]}, 18, v{t[2]}
    v_and_b32 v{t[3]}, 1, v{t[0]}
    v_add3_u32 v{t[2]}, v{t[2]}, v{t[3]}, 16
    v_mul_u32_u24 v{vWt}, 1152, v{t[2]}
    v_add_u32 v{vWt}, v{vWt}, v{t[1]}
    s_waitcnt lgkmcnt(0)
    ''')
    for side in range(2):
        add64(a, sWo[side], 4 + 2 * side, f's{sT0}')
        a.i(f's_sub_u32 s{sWo[side]+2}, {576*1152}, s{sT0}')
        a.i(f's_mov_b32 s{sWo[side]+3}, 0x20000')
    wtok = {}
    def dmaW(st):
        if st >= NST: return
        side, ls = divmod(st, 9)
        for j in range(8):
            if ls < 8:
                a.i(f's_mov_b32 s{sT2}, {((4*ls + j//2)*18 + 8*(j&1))*1152}'); va = vWh
            else:
                a.i(f's_mov_b32 s{sT2}, {j*4*18*1152}'); va = vWt
            a.i(f's_mov_b32 m0, {st*8192 + j*1024}')
            wtok[st] = a.i(f'buffer_load_dwordx4 v{va}, s[{sWo[side]}:{sWo[side]+3}], s{sT2} offen lds')
    for st in range(LEAD): dmaW(st)
    for st in range(NST):
        a.wait_vm(wtok[st]); a.i('s_barrier')
        dmaW(st + LEAD)
    a.stamp_end(2, 14, sWave)
    a.label(f'L_{name}_end')
    a.i('s_endpgm')
    return a.text() + kd(name, R.hi), K3_LDS, R.hi

if __name__ == '__main__':
    for x in range(198): assert (x * 7282) >> 16 == x // 9
    txt, lds, hi = gen_k3()
    print(len(txt.split('\n')), 'lines; vgprs', hi)
```

```python
QK_BLK = 1152
V_BLK = 1280
KV_BLK = QK_BLK + V_BLK
QA_OFF = 0
QB_OFF = 2359296
QK_SZ = 2359296
KA_OFF = 2 * 2359296
VA_OFF = KA_OFF + QK_BLK
KV_SZ = 32 * 64 * KV_BLK
KVP_OFF = KA_OFF + KV_SZ
KVP_BLK = 3200
KVP_SZ = 32 * 16 * KVP_BLK
G_OFF = KVP_OFF + KVP_SZ
O16_OFF = G_OFF + 8192
O16_SZ = 2 * 32 * 64 * 1024
O2_OFF = O16_OFF + O16_SZ
O2_SZ = 2 * 64 * 8 * 512
WS_USED = O2_OFF + O2_SZ
LOG2E = 1.4426950408889634
QSCALE = 18 ** -0.5 * LOG2E
OOB = 0x40000000
import struct
def f2u(x): return struct.unpack('<I', struct.pack('<f', x))[0]
```

```python
import sys
import k1, k2, k3
def build(**opt):
    k1.ST = opt.get('st', '').replace('+', ' ')
    import asmlib
    asmlib.Asm.prof = bool(int(opt.get('prof', 0)))
    for k, v in opt.items():
        for m in (k1, k2, k3):
            if hasattr(m, k) and k.isupper(): setattr(m, k, int(v))
    t1, l1, _ = k1.gen_k1()
    t2, l2, _ = k2.gen_k2()
    t3, l3, _ = k3.gen_k3()
    hdr = open('gated_mix__sliding_block__linear_kernel_hedgehog__prompt.s.ref').read().split('; Override')[0]
    hdr += f'; @launch kernel=k1_kernel grid=(256,1,1) block=(256,1,1) lds={l1}\n'
    hdr += f'; @launch kernel=k2_kernel grid=(256,1,1) block=(256,1,1) lds={l2}\n'
    hdr += f'; @launch kernel=k3_kernel grid=({k3.K3_GRID},1,1) block=(256,1,1) lds={l3}\n'
    hdr += '.amdgcn_target "amdgcn-amd-amdhsa--gfx950"\n.text\n'
    return hdr + t1 + t2 + t3
if __name__ == '__main__':
    out = sys.argv[1] if len(sys.argv) > 1 else 'gated_mix__sliding_block__linear_kernel_hedgehog__prompt.s'
    opt = dict(x.split('=') for x in sys.argv[2:])
    open(out, 'w').write(build(**opt))
```

```python
import re

TRANS = ('v_exp_f32', 'v_log_f32', 'v_rcp_f32', 'v_rsq_f32', 'v_sqrt_f32', 'v_sin_f32', 'v_cos_f32')

def regs_of(tok):
    tok = tok.strip()
    tok = tok.lstrip('-')
    if tok.startswith('abs(') or tok.startswith('|'):
        tok = tok.replace('abs(', '').replace(')', '').replace('|', '')
    m = re.fullmatch(r'([vas])(\d+)', tok)
    if m: return [(m.group(1), int(m.group(2)))]
    m = re.fullmatch(r'([vas])\[(\d+):(\d+)\]', tok)
    if m: return [(m.group(1), i) for i in range(int(m.group(2)), int(m.group(3)) + 1)]
    if tok == 'vcc': return [('s', 'vcc')]
    if tok == 'exec': return [('s', 'exec')]
    if tok == 'm0': return [('s', 'm0')]
    return []

def split_ops(s):
    out = []; depth = 0; cur = ''
    for ch in s:
        if ch == '[': depth += 1
        if ch == ']': depth -= 1
        if ch == ',' and depth == 0:
            out.append(cur.strip()); cur = ''
        else: cur += ch
    if cur.strip(): out.append(cur.strip())
    return out

class Asm:
    def __init__(self):
        self.lines = []
        self.reset_state()
        self.nops_inserted = 0
    def reset_state(self):
        self.t = 0
        self.w_valu = {}
        self.w_trans = {}
        self.w_mfma = {}
        self.r_mfmaC = {}
        self.w_sgpr_valu = {}
        self.w_m0 = -100
        self.st_data = {}
        self.w_exec_valu = -100
        self.lg_issued = 0; self.lg_done = 0
        self.vm_issued = 0; self.vm_done = 0
    _ST = ('t', 'w_valu', 'w_trans', 'w_mfma', 'r_mfmaC', 'w_sgpr_valu', 'w_m0', 'st_data', 'w_exec_valu',
           'lg_issued', 'lg_done', 'vm_issued', 'vm_done')
    def snapshot(self):
        import copy
        return {k: copy.copy(getattr(self, k)) for k in Asm._ST}
    def restore(self, snap):
        import copy
        for k, v in snap.items(): setattr(self, k, copy.copy(v))
    def raw(self, s): self.lines.append(s)
    def comment(self, s): self.lines.append('; ' + s)
    def label(self, name, flush=True):
        self.lines.append(name + ':')
    def flush_hazards(self):
        need = 0
        for r, (t, p, _f) in self.w_mfma.items(): need = max(need, t + {2:5,4:8,8:12,16:20}[p] + 1 - self.t)
        for r, t in self.w_valu.items(): need = max(need, t + 2 + 1 - self.t)
        for r, t in self.w_sgpr_valu.items(): need = max(need, t + 5 + 1 - self.t)
        self._nop(need)
    def _nop(self, n):
        while n > 0:
            k = min(n, 16)
            self.lines.append(f's_nop {k-1}')
            self.t += k; n -= k; self.nops_inserted += k
    def pc_after(self, lab): return not any(l.rstrip().endswith(lab + ':') for l in self.lines)
    def text(self): return '\n'.join(self.lines) + '\n'
    def wait_lg(self, tok):
        if tok is None or tok < self.lg_done: return
        n = self.lg_issued - tok - 1
        n = min(n, 15)
        self.i(f's_waitcnt lgkmcnt({n})')
    def wait_vm(self, tok):
        if tok is None or tok < self.vm_done: return
        n = self.vm_issued - tok - 1
        n = min(n, 63)
        self.i(f's_waitcnt vmcnt({n})')
    def last_vm(self): return self.vm_issued - 1
    def last_lg(self): return self.lg_issued - 1
    def i(self, s):
        s = s.strip()
        body = s.split(';')[0].strip()
        parts = body.split(None, 1)
        op = parts[0]
        rest = parts[1] if len(parts) > 1 else ''
        if op == 's_nop':
            self.lines.append(s); self.t += int(rest) + 1; return None
        if op == 's_waitcnt':
            m = re.search(r'lgkmcnt\((\d+)\)', rest)
            if m: self.lg_done = max(self.lg_done, self.lg_issued - int(m.group(1)))
            m = re.search(r'vmcnt\((\d+)\)', rest)
            if m: self.vm_done = max(self.vm_done, self.vm_issued - int(m.group(1)))
            self.lines.append(s); self.t += 1; return None
        ops = split_ops(rest)
        toks = []
        for o in ops:
            w = o.split()
            toks.append(w[0] if w else '')
        is_mfma = op.startswith('v_mfma')
        is_valu = op.startswith('v_') and not is_mfma
        is_ds = op.startswith('ds_')
        is_vmem = op.startswith('buffer_') or op.startswith('global_')
        is_lds_dma = is_vmem and (re.search(r'\blds\b', rest) is not None or 'load_lds' in op)
        is_store = is_vmem and ('store' in op or ('atomic' in op))
        dst = []; src = []
        if is_mfma:
            dst = regs_of(toks[0]); A = regs_of(toks[1]); B = regs_of(toks[2]); C = regs_of(toks[3])
            src = A + B + C
        elif is_valu:
            if op.startswith('v_permlane32_swap') or op.startswith('v_permlane16_swap'):
                dst = regs_of(toks[0]) + regs_of(toks[1]); src = list(dst)
            elif op.startswith('v_cmp'):
                dst = regs_of(toks[0]); src = sum((regs_of(x) for x in toks[1:]), [])
                if op.startswith('v_cmpx'): dst += [('s', 'exec')]
            else:
                dst = regs_of(toks[0]); k = 1
                if op.startswith(('v_add_co', 'v_sub_co', 'v_addc_co', 'v_subb_co', 'v_mad_u64', 'v_div_scale')):
                    dst += regs_of(toks[1]); k = 2
                src = sum((regs_of(x) for x in toks[k:]), [])
                if op.startswith(('v_fmac', 'v_dot2c', 'v_pk_fmac')) or 'dst_unused:UNUSED_PRESERVE' in rest: src += regs_of(toks[0])
        elif is_ds:
            if op.startswith(('ds_read', 'ds_bpermute', 'ds_permute', 'ds_swizzle')):
                dst = regs_of(toks[0]); src = sum((regs_of(x) for x in toks[1:]), [])
            else:
                src = sum((regs_of(x) for x in toks), [])
        elif is_vmem:
            if is_lds_dma or is_store:
                src = sum((regs_of(x) for x in toks), [])
                if 'atomic' in op and re.search(r'\bsc0\b', rest): dst = regs_of(toks[0])
            else:
                dst = regs_of(toks[0]); src = sum((regs_of(x) for x in toks[1:]), [])
                if 'd16' in op: src += dst
        else:
            if op.startswith(('s_cmp', 's_cbranch', 's_branch', 's_barrier', 's_endpgm', 's_setprio', 's_sleep')):
                src = sum((regs_of(x) for x in toks), [])
            else:
                dst = regs_of(toks[0]) if toks else []
                src = sum((regs_of(x) for x in toks[1:]), [])
                if 'saveexec' in op: dst += [('s', 'exec')]
        need = 0
        def req(t0, ws):
            nonlocal need
            need = max(need, t0 + ws + 1 - self.t)
        vsrc = [r for r in src if r[0] in 'va']
        vdst = [r for r in dst if r[0] in 'va']
        ssrc = [r for r in src if r[0] == 's']
        W = {2:5, 4:8, 8:12, 16:20}
        if is_mfma:
            passes = 8 if '32x32' in op else 4
            for r in src:
                if r in self.w_valu: req(self.w_valu[r], 2)
            for r in A + B:
                if r in self.w_mfma: req(self.w_mfma[r][0], W[self.w_mfma[r][1]])
            for r in C:
                if r in self.w_mfma:
                    t0, p, full = self.w_mfma[r][0], self.w_mfma[r][1], self.w_mfma[r][2]
                    if not (full == tuple(C) and p == passes): req(t0, {2:4,4:6,8:10,16:18}[p])
            for r in dst:
                if r in self.w_mfma and r not in C:
                    t0, p, full = self.w_mfma[r]
                    if full != tuple(dst): req(t0, {2:4,4:6,8:10,16:18}[p])
            req(self.w_exec_valu, 4)
        else:
            if is_valu or is_ds or is_vmem:
                for r in vsrc + vdst:
                    if r in self.w_mfma: req(self.w_mfma[r][0], W[self.w_mfma[r][1]])
            if is_valu:
                for r in vdst:
                    if r in self.r_mfmaC: req(self.r_mfmaC[r][0], {2:1,4:3,8:7,16:15}[self.r_mfmaC[r][1]])
                    if r in self.st_data: req(self.st_data[r], 2)
                if op not in TRANS:
                    for r in vsrc:
                        if r in self.w_trans: req(self.w_trans[r], 1)
                if op.startswith('v_permlane'):
                    for r in vsrc:
                        if r in self.w_valu: req(self.w_valu[r], 2)
                    req(self.w_exec_valu, 4)
                if op.startswith(('v_readfirstlane', 'v_readlane')):
                    for r in vsrc:
                        if r in self.w_valu: req(self.w_valu[r], 1)
                    req(self.w_exec_valu, 4)
                if 'dpp' in rest or 'row_' in rest or 'quad_perm' in rest:
                    for r in vsrc:
                        if r in self.w_valu: req(self.w_valu[r], 2)
                for r in ssrc:
                    if r in self.w_sgpr_valu: req(self.w_sgpr_valu[r], 2)
            if is_ds or is_vmem:
                for r in vdst:
                    if r in self.st_data: req(self.st_data[r], 1)
                for r in vsrc:
                    if r in self.w_trans: req(self.w_trans[r], 1)
            if is_vmem:
                for r in ssrc:
                    if r in self.w_sgpr_valu: req(self.w_sgpr_valu[r], 5)
                if is_lds_dma: req(self.w_m0, 1)
            if not (is_valu or is_ds or is_vmem):
                for r in ssrc:
                    if r in self.w_sgpr_valu: req(self.w_sgpr_valu[r], 1)
        self._nop(need)
        self.lines.append(s)
        t = self.t
        if is_mfma:
            for r in dst:
                self.w_mfma[r] = (t, passes, tuple(dst)); self.w_valu.pop(r, None); self.w_trans.pop(r, None)
            for r in C: self.r_mfmaC[r] = (t, passes)
        elif is_valu:
            for r in dst:
                if r[0] in 'va':
                    self.w_valu[r] = t; self.w_mfma.pop(r, None)
                    if op in TRANS: self.w_trans[r] = t
                    else: self.w_trans.pop(r, None)
                else:
                    self.w_sgpr_valu[r] = t
                    if r == ('s', 'exec'): self.w_exec_valu = t
        else:
            for r in dst:
                if r == ('s', 'm0'): self.w_m0 = t
                if r[0] == 's': self.w_sgpr_valu.pop(r, None)
                if r[0] in 'va':
                    self.w_valu.pop(r, None); self.w_mfma.pop(r, None); self.w_trans.pop(r, None)
            if is_store and re.search(r'x[34]', op):
                for r in regs_of(toks[0] if op.startswith('buffer') else toks[1]): self.st_data[r] = t
        self.t += 1
        tok = None
        if is_ds:
            tok = self.lg_issued; self.lg_issued += 1
        elif is_vmem:
            tok = self.vm_issued; self.vm_issued += 1
        elif op.startswith(('s_load', 's_memtime', 's_memrealtime', 's_buffer_load')):
            self.lg_issued += 2
        return tok
    prof = False
    smap = None
    clk = 's_memtime'
    def stamp(self, k):
        if not Asm.prof: return
        if self.smap is not None and k != 0:
            k = self.smap.get(k)
            if k is None: return
        self.lines.append(f'{Asm.clk} s[{64+2*k}:{65+2*k}]')
        self.lg_issued += 2; self.t += 1
        self.nstamp = max(getattr(self, 'nstamp', 0), k + 1)
    def stamp_begin(self):
        if not Asm.prof: return
        self.lines.append('s_memrealtime s[92:93]')
        self.stamp(0)
    def stamp_end(self, kid, ws_lo, wave):
        if not Asm.prof: return
        self.lines.append('s_waitcnt vmcnt(0)')
        self.lines.append(f'{Asm.clk} s[90:91]')
        self.lines.append('s_memrealtime s[94:95]')
        self.lines.append('s_waitcnt lgkmcnt(0)')
        L = self.lines
        L.append(f's_add_u32 s4, s{ws_lo}, {(64 << 20) + kid * (1 << 20)}')
        L.append(f's_addc_u32 s5, s{ws_lo+1}, 0')
        L.append('s_mov_b32 s6, 0x100000'); L.append('s_mov_b32 s7, 0x20000')
        L.append(f's_lshl_b32 s8, s2, 3'); L.append(f's_add_u32 s8, s8, s{wave}'); L.append('s_lshl_b32 s8, s8, 6')
        L.append('v_mov_b32 v1, 0')
        for k in range(1, 14):
            L.append(f's_sub_u32 s9, s{64+2*k}, s64'); L.append('v_mov_b32 v2, s9')
            L.append(f'buffer_store_dword v2, v1, s[4:7], s8 offen offset:{4*k}')
        L.append('v_mov_b32 v2, s92'); L.append('buffer_store_dword v2, v1, s[4:7], s8 offen offset:56')
        L.append('v_mov_b32 v2, s94'); L.append('buffer_store_dword v2, v1, s[4:7], s8 offen offset:60')
    def many(self, txt):
        for l in txt.strip().split('\n'):
            l = l.strip()
            if not l or l.startswith(';'): continue
            if l.endswith(':'): self.label(l[:-1])
            else: self.i(l)

def vr(b, n=1):
    return f'v{b}' if n == 1 else f'v[{b}:{b+n-1}]'
def ar(b, n=1):
    return f'a{b}' if n == 1 else f'a[{b}:{b+n-1}]'
def sr(b, n=1):
    return f's{b}' if n == 1 else f's[{b}:{b+n-1}]'

class RegAlloc:
    def __init__(self, start, limit):
        self.n = start; self.limit = limit; self.hi = start
    def get(self, cnt=1, align=1):
        self.n = (self.n + align - 1) // align * align
        b = self.n; self.n += cnt
        assert self.n <= self.limit, f'out of registers {self.n} > {self.limit}'
        self.hi = max(self.hi, self.n)
        return b
    def mark(self): return self.n
    def release(self, m): self.n = m

def kd(name, vgpr, sgpr=96, accum=None):
    if accum is None: accum = min(256, (vgpr + 3) // 4 * 4)
    return f'''.section .rodata,"a"
.p2align 6
.amdhsa_kernel {name}
  .amdhsa_next_free_vgpr {vgpr}
  .amdhsa_next_free_sgpr {sgpr}
  .amdhsa_accum_offset {accum}
  .amdhsa_group_segment_fixed_size 0
  .amdhsa_kernarg_size 88
  .amdhsa_user_sgpr_count 2
  .amdhsa_user_sgpr_kernarg_segment_ptr 1
  .amdhsa_system_sgpr_workgroup_id_x 1
.end_amdhsa_kernel
.text
'''
```

```python
from asmlib import *
from layout import *
from k1 import srd, add64, hedgehog, wphi_dma_addr, wphi_dma, wphi_rd_addr, wphi_read

NAME = 'gated_mix__sliding_block__linear_kernel_hedgehog__prompt_kernel'
ST = 'sc1'; LD = 'sc1'
HCUT = 6; EPI_PER = 3; PF_CODE = 1; PF_WO = 0; PF_O = 1
SLEEP = 0; WWIN = 5
FORCE_FALLBACK = 0; UB = 14; SPIN = 1 << 14; NO = 16; NFIRST = 4; NSECOND = 12
DR, PR = 3, 4
DV, PV = 6, 8
NEG = f2u(-1e30)
class Ring:
    def __init__(s, n, wbuf): s.n = n; s.XB = [16384 * i for i in range(n)]; s.WB0 = 16384 * n; s.WBUF = wbuf; s.end = s.WB0 + n * wbuf
RINGR = Ring(3, 36864); RINGV = Ring(4, 20480)
GOFS = RINGV.end; WPH = GOFS + 4096
KB, KVL, GL, WO0 = 0, 40960, 43008, 47104
CNT = 161792; WP2 = 162048
LDS_BYTES = 163840
def wo_off(st): return WO0 + 8192 * st if st < 14 else 8192 * (st - 14)
sX, sW, sO, sP, sG = 16, 20, 24, 28, 32
sRow, sC, sHH = 37, 38, 39
sT0, sT1, sT2, sT3 = 40, 41, 42, 43
sSoW, sSoX, sMW, sMX = 44, 45, 46, 47
sFl = 48; sWv = 52; sOOB = 58; sK = 62; sHi = 60
sTag, sCnt = 98, 99

def p2_ids(a, sHead, sT8):
    a.many(f'''
    s_and_b32 s{sT0}, s2, 7
    s_lshr_b32 s{sT1}, s2, 3
    s_and_b32 s{sHead}, s{sT0}, 1
    s_lshl_b32 s{sHead}, s{sHead}, 4
    s_lshr_b32 s{sT2}, s{sT1}, 1
    s_add_u32 s{sHead}, s{sHead}, s{sT2}
    s_and_b32 s{sT8}, s{sT0}, 6
    s_and_b32 s{sT1}, s{sT1}, 1
    s_add_u32 s{sT8}, s{sT8}, s{sT1}
    ''')
def p3_ids(a, sR3, sC3, sHas):
    a.many(f'''
    s_and_b32 s{sT0}, s2, 7
    s_lshr_b32 s{sT1}, s2, 3
    s_mul_i32 s{sT0}, s{sT0}, 25
    s_add_u32 s{sT0}, s{sT0}, s{sT1}
    s_cmp_lt_u32 s{sT1}, 25
    s_cselect_b32 s{sT0}, s{sT0}, 255
    s_cmp_lt_u32 s{sT0}, 198
    s_cselect_b32 s{sHas}, 1, 0
    s_cselect_b32 s{sT0}, s{sT0}, 0
    s_mul_i32 s{sR3}, s{sT0}, 7282
    s_lshr_b32 s{sR3}, s{sR3}, 16
    s_mul_i32 s{sT1}, s{sR3}, 9
    s_sub_u32 s{sC3}, s{sT0}, s{sT1}
    ''')
def flag_srd(a):
    a.many(f'''
    s_add_u32 s{sFl}, s14, {FLG_OFF}
    s_addc_u32 s{sFl+1}, s15, 0
    s_mov_b32 s{sFl+2}, {FLG_SZ}
    s_mov_b32 s{sFl+3}, 0x20000
    ''')
def f1_index(a, dst):
    a.many(f'''
    s_and_b32 s{sT0}, s2, 7
    s_lshr_b32 s{sT1}, s2, 3
    s_and_b32 s{sT2}, s{sT0}, 1
    s_lshl_b32 s{sT2}, s{sT2}, 7
    s_lshr_b32 s{sT0}, s{sT0}, 1
    s_lshl_b32 s{sT0}, s{sT0}, 5
    s_add_u32 s{sT2}, s{sT2}, s{sT0}
    s_and_b32 s{sT0}, s{sT1}, 3
    s_lshl_b32 s{sT0}, s{sT0}, 3
    s_add_u32 s{sT2}, s{sT2}, s{sT0}
    s_lshr_b32 s{sT1}, s{sT1}, 2
    s_add_u32 s{sT2}, s{sT2}, s{sT1}
    s_lshl_b32 s{dst}, s{sT2}, 2
    s_add_u32 s{dst}, s{dst}, {F1_OFF}
    ''')
def tag_load(a, vz, vt):
    a.i(f'v_mov_b32 v{vz}, 0')
    a.i(f'global_load_dword v{vt}, v{vz}, s[96:97] sc1')
def signal(a, lab, vz, vt, vc, cnt_off, last, sIdx, have_tag=False):
    if not have_tag:
        a.many(f'''
        s_mov_b32 s{sCnt}, {SPIN}
        L_{lab}_t:
        s_waitcnt vmcnt(0)
        v_readfirstlane_b32 s{sTag}, v{vt}
        s_cmp_lg_u32 s{sTag}, 0
        s_cbranch_scc1 L_{lab}_k
        global_load_dword v{vt}, v{vz}, s[96:97] sc1
        s_sub_u32 s{sCnt}, s{sCnt}, 1
        s_cbranch_scc0 L_{lab}_t
        L_{lab}_k:
        ''')
    else: a.i('s_waitcnt vmcnt(0)')
    a.many(f'''
    v_mov_b32 v{vt}, 1
    v_mov_b32 v{vc}, {cnt_off}
    s_mov_b64 exec, 1
    ds_add_rtn_u32 v{vc}, v{vc}, v{vt}
    v_mov_b32 v{vt}, s{sTag}
    s_waitcnt lgkmcnt(0)
    v_readfirstlane_b32 s{sCnt}, v{vc}
    s_cmp_lg_u32 s{sCnt}, {last}
    s_cbranch_scc1 L_{lab}_n
    buffer_store_dword v{vt}, v{vz}, s[{sFl}:{sFl+3}], s{sIdx} offen sc1
    L_{lab}_n:
    s_mov_b64 exec, -1
    ''')
    a.vm_done = a.vm_issued
def poll(a, lab, vAddr, vF, first_loaded=False):
    a.i(f's_mov_b32 s{sCnt}, {SPIN}')
    if first_loaded: a.i(f's_branch L_{lab}_c')
    a.many(f'''
    L_{lab}:
    buffer_load_dword v{vF}, v{vAddr}, s[{sFl}:{sFl+3}], 0 offen sc1
    s_waitcnt vmcnt(0)
    L_{lab}_c:
    v_cmp_ne_u32 vcc, s{sTag}, v{vF}
    s_cmp_eq_u64 vcc, 0
    s_cbranch_scc1 L_{lab}_ok
    {'s_sleep %d' % SLEEP if SLEEP else ''}
    s_sub_u32 s{sCnt}, s{sCnt}, 1
    s_cbranch_scc0 L_{lab}
    L_{lab}_ok:
    ''')
def quad_transpose(a, Rg, Tm, sM):
    q1 = 'quad_perm:[1,0,3,2] row_mask:0xf bank_mask:0xf'; q2 = 'quad_perm:[2,3,0,1] row_mask:0xf bank_mask:0xf'
    L = []
    L.append('s_mov_b64 vcc, s[10:11]')
    L.append(f'v_cndmask_b32_dpp v{Tm[0]}, v{Rg[1]}, v{Rg[0]}, vcc {q1}')
    L.append(f'v_cndmask_b32_dpp v{Tm[2]}, v{Rg[3]}, v{Rg[2]}, vcc {q1}')
    L.append('s_not_b64 vcc, vcc')
    L.append(f'v_cndmask_b32_dpp v{Tm[1]}, v{Rg[0]}, v{Rg[1]}, vcc {q1}')
    L.append(f'v_cndmask_b32_dpp v{Tm[3]}, v{Rg[2]}, v{Rg[3]}, vcc {q1}')
    L.append('s_mov_b64 vcc, s[100:101]')
    L.append(f'v_cndmask_b32_dpp v{Rg[0]}, v{Tm[2]}, v{Tm[0]}, vcc {q2}')
    L.append(f'v_cndmask_b32_dpp v{Rg[1]}, v{Tm[3]}, v{Tm[1]}, vcc {q2}')
    L.append('s_not_b64 vcc, vcc')
    L.append(f'v_cndmask_b32_dpp v{Rg[2]}, v{Tm[0]}, v{Tm[2]}, vcc {q2}')
    L.append(f'v_cndmask_b32_dpp v{Rg[3]}, v{Tm[1]}, v{Tm[3]}, vcc {q2}')
    return L
def quad_masks(a, sM):
    for r, m in ((10, 0x55555555), (100, 0x33333333)):
        a.i(f's_mov_b32 s{r}, {m}'); a.i(f's_mov_b32 s{r+1}, {m}')

def gemm_consumer(a, G, NN, wread, xread, ACCS, ACC, POOL, XF, D, P, tails=None):
    groups = [(s, m) for s in range(16) for m in range(9)]
    groups += [(s, m) for m in range(9) for s in (16, 17)] if tails else [(s, m) for s in (16, 17) for m in range(9)]
    total = len(groups)
    xpos = {}
    first = {}
    for q, (s, m) in enumerate(groups): first.setdefault(s, q)
    tokW = {}; tokX = {}
    def xreg(s, n): return XF + 4 * (NN * (s & 1) + n) if not (tails and s == 17) else XF + 4 * (2 * NN + n)
    def reads(q):
        if q >= total: return []
        s, m = groups[q]
        L = []
        if first[s] == q:
            if s < 2: L.append(('bar',))
            L += [('x', s, n) for n in range(NN)]
        L += [('w', q, 0), ('w', q, 1)]
        return L
    def emit(r):
        if r[0] == 'bar': a.i('s_barrier')
        elif r[0] == 'x': tokX[r[1]] = xread(xreg(r[1], r[2]), r[1], r[2])
        else:
            s, m = groups[r[1]]
            tokW[r[1]] = wread(POOL + 4 * (r[1] % P) + 2 * r[2], s, m, r[2])
    a.stamp(1)
    for q in range(D):
        for r in reads(q): emit(r)
        if q == 0: a.stamp(2)
    def body(q, queue=None):
        s, m = groups[q]
        nxt = reads(q + D)
        newstage = q + D < total and (q + D) % 18 == 0
        for n in range(NN):
            if n == 0: a.wait_lg(max(tokW[q], tokX[s]))
            f = POOL + 4 * (q % P); xf = xreg(s, n); acc = ACC + ACCS * n + 4 * m
            c = '0' if s == 0 else f'v[{acc}:{acc+3}]'
            a.i(f'v_mfma_f32_16x16x32_bf16 v[{acc}:{acc+3}], v[{f}:{f+3}], v[{xf}:{xf+3}], {c}')
            if n == 0 and newstage: a.i('s_barrier')
            k = -(-len(nxt) // (NN - n))
            for r in nxt[:k]: emit(r)
            nxt = nxt[k:]
            if queue:
                j = 0
                while queue and queue[0][0] <= 4 * (q - 144) + n and j < EPI_PER:
                    a.i(queue.pop(0)[1]); j += 1
        if G.n == 3 and q % 18 == 17 and q // 18 + 3 <= 8: a.i('s_barrier')
    for q in range(144 if tails else total): body(q)
    if tails:
        for lab, br, qf in tails:
            if br: a.many(br)
        snap = a.snapshot(); sW_ = dict(tokW); sX_ = dict(tokX)
        for lab, br, qf in tails:
            a.restore(snap); tokW.clear(); tokW.update(sW_); tokX.clear(); tokX.update(sX_)
            if lab: a.label(lab)
            queue = qf()
            for q in range(144, total): body(q, queue)
            a.stamp(3)
            for _, ins in queue: a.i(ins)
            a.stamp(4)
            a.i('s_branch L_p2C')

def gemm_producer(a, G, nW, need0, vWoff, vXoff, extra0=None, early=None, after=None):
    tok = {}
    def dma(st, k, n):
        b = st % G.n
        if k == 'W':
            a.i(f's_add_u32 m0, s{sMW}, {G.WB0 + b * G.WBUF + n * 4096}')
            tok[st, k, n] = a.i(f'buffer_load_dwordx4 v{vWoff+n}, s[{sW}:{sW+3}], s{sSoW} offen lds')
        else:
            a.i(f's_add_u32 m0, s{sMX}, {G.XB[b] + n * 1024}')
            tok[st, k, n] = a.i(f'buffer_load_dwordx4 v{vXoff+n}, s[{sX}:{sX+3}], s{sSoX} offen lds')
    def setup(st):
        a.i(f's_mov_b32 s{sSoW}, {st * 64 * 3456}'); a.i(f's_mov_b32 s{sSoX}, {st * 128}')
    def stage(st, lo=0, hi=99):
        for k, n in ([('X', n) for n in range(4)] + [('W', n) for n in range(nW)])[lo:hi]: dma(st, k, n)
    setup(0)
    dma(0, 'W', 0)
    for n in range(4): dma(0, 'X', n)
    for n in range(1, min(need0 + 2, nW)): dma(0, 'W', n)
    a.wait_vm(tok[0, 'W', need0]); a.i('s_waitcnt lgkmcnt(0)'); a.i('s_barrier')
    for n in range(need0 + 2, nW): dma(0, 'W', n)
    if early: early()
    setup(1); stage(1, 0, 4)
    a.wait_vm(tok[0, 'W', nW - 1]); a.i('s_barrier')
    stage(1, 4)
    if extra0: extra0()
    cut = (nW + 4) * HCUT // 8
    if G.n == 4:
        setup(2); stage(2, 0, cut)
        for st in range(8):
            a.wait_vm(tok[st + 1, 'W', nW - 1]); a.i('s_barrier')
            if st == 0: stage(2, cut)
            if st + 3 <= 8: setup(st + 3); stage(st + 3)
            if after:
                if st == 0: after(0)
                after(st + 1)
        return
    for st in range(8):
        if st + 2 <= 8: setup(st + 2); stage(st + 2, 0, cut)
        a.wait_vm(tok[st + 1, 'W', nW - 1]); a.i('s_barrier')
        if st + 2 <= 8: stage(st + 2, cut)
        if st + 3 <= 8: a.i('s_barrier')

def gen():
    a = Asm()
    name = NAME
    a.raw(f'.globl {name}\n.p2align 8\n.type {name},@function\n{name}:')
    a.many(f'''
    s_cmp_ge_u32 s2, 256
    s_cbranch_scc1 L_end''')
    a.stamp_begin()
    a.smap = {k: k for k in range(1, 14)}
    a.many(f'''
    s_load_dwordx4 s[4:7], s[0:1], 0
    s_load_dwordx4 s[8:11], s[0:1], 32
    s_load_dwordx2 s[12:13], s[0:1], 56
    s_load_dwordx2 s[14:15], s[0:1], 80
    s_load_dwordx2 s[96:97], s[0:1], 72
    v_lshrrev_b32 v1, 6, v0
    v_and_b32 v0, 63, v0
    s_and_b32 s{sT0}, s2, 7
    v_readfirstlane_b32 s3, v1
    s_lshr_b32 s{sT1}, s2, 3
    s_and_b32 s{sHH}, s{sT0}, 1
    s_lshr_b32 s{sT0}, s{sT0}, 1
    s_lshl_b32 s{sT0}, s{sT0}, 2
    s_and_b32 s{sRow}, s{sT1}, 3
    s_add_u32 s{sRow}, s{sRow}, s{sT0}
    s_bfe_u32 s{sC}, s{sT1}, 0x20002
    s_mov_b32 s{sOOB}, {OOB}
    s_and_b32 s{sWv}, s3, 3
    s_cmp_ge_u32 s3, 4
    s_cbranch_scc1 L_H
    ''')
    snapE = a.snapshot()
    R = RegAlloc(1, 256)
    vXr = R.get(2); vWb = R.get(6); t = [R.get(1) for _ in range(6)]
    vI, vGk = t[4], t[5]
    a.many(f'''
    v_and_b32 v{vI}, 15, v0
    v_lshrrev_b32 v{vGk}, 4, v0
    v_lshrrev_b32 v{t[0]}, 1, v{vI}
    v_xor_b32 v{t[0]}, v{t[0]}, v{vGk}
    v_lshlrev_b32 v{t[1]}, 7, v{vI}
    v_lshl_add_u32 v{vXr}, v{t[0]}, 4, v{t[1]}
    v_bfe_u32 v{t[2]}, v0, 2, 2
    v_and_b32 v{t[3]}, 3, v0
    s_cmp_ge_u32 s{sT1}, 16
    s_cbranch_scc1 L_V
    ''')
    snap0 = a.snapshot(); mark = R.mark()
    XF = R.get(48, 4); POOL = R.get(4 * PR, 4); ACC = R.get(144, 4); TL = R.get(16, 4); vo = R.get(2)
    sTg, sCh = 53, 54
    a.many(f'''
    s_and_b32 s{sTg}, s{sWv}, 1
    s_lshr_b32 s{sCh}, s{sWv}, 1
    s_lshl_b32 s{sT2}, s{sTg}, 13
    v_add_u32 v{vXr}, s{sT2}, v{vXr}
    v_xor_b32 v{vXr+1}, 64, v{vXr}
    v_lshl_add_u32 v{t[0]}, v{vGk}, 3, v{t[2]}
    v_mul_u32_u24 v{t[0]}, 576, v{t[0]}
    v_mul_u32_u24 v{t[1]}, 72, v{t[3]}
    v_and_b32 v{t[2]}, 1, v{vGk}
    v_lshl_add_u32 v{t[1]}, v{t[2]}, 5, v{t[1]}
    s_mul_i32 s{sT2}, s{sCh}, 288
    v_add_u32 v{t[1]}, s{sT2}, v{t[1]}
    v_add_u32 v{t[0]}, v{t[0]}, v{t[1]}
    v_add_u32 v{t[2]}, {-576 & 0xffffffff}, v{t[0]}
    v_cmp_eq_u32 vcc, {288+216+32}, v{t[1]}
    v_cndmask_b32 v{t[1]}, v{t[0]}, v{t[2]}, vcc
    ''')
    for b in range(3):
        a.i(f'v_add_u32 v{vWb+2*b}, {RINGR.WB0 + b*RINGR.WBUF}, v{t[0]}')
        a.i(f'v_add_u32 v{vWb+2*b+1}, {RINGR.WB0 + b*RINGR.WBUF}, v{t[1]}')
    a.i('s_waitcnt lgkmcnt(0)')
    a.many(f'''
    s_or_b32 s{sT2}, s2, s3
    s_cmp_lg_u32 s{sT2}, 0
    s_cbranch_scc1 L_notag
    s_add_u32 s56, s14, {FLG_OFF}
    s_addc_u32 s57, s15, 0
    s_load_dword s{sT2}, s[56:57], 0
    v_mov_b32 v{t[1]}, 0
    s_waitcnt lgkmcnt(0)
    s_add_u32 s{sT2}, s{sT2}, 1
    s_max_u32 s{sT2}, s{sT2}, 1
    v_mov_b32 v{t[0]}, s{sT2}
    global_store_dword v{t[1]}, v{t[0]}, s[96:97] sc1
    global_store_dword v{t[1]}, v{t[0]}, s[56:57] sc1
    L_notag:
    s_mov_b32 s{sT3}, {KV_BLK}
    s_mov_b32 s{sO+2}, {KV_SZ}
    s_mov_b32 s{sT2}, {KA_OFF}
    s_mov_b32 s{sK}, {f2u(QSCALE)}
    s_cmp_eq_u32 s{sC}, 2
    s_cselect_b32 s{sT2}, {VA_OFF}, s{sT2}
    s_cselect_b32 s{sO+2}, {KV_SZ - QK_BLK}, s{sO+2}
    s_cmp_eq_u32 s{sC}, 0
    s_cselect_b32 s{sT2}, {QA_OFF}, s{sT2}
    s_cselect_b32 s{sT3}, {QK_BLK}, s{sT3}
    s_cselect_b32 s{sO+2}, {QK_SZ}, s{sO+2}
    s_cmp_eq_u32 s{sC}, 3
    s_cselect_b32 s{sT2}, {QB_OFF}, s{sT2}
    s_cselect_b32 s{sT3}, {QK_BLK}, s{sT3}
    s_cselect_b32 s{sO+2}, {QK_SZ}, s{sO+2}
    s_add_u32 s{sO}, s14, s{sT2}
    s_addc_u32 s{sO+1}, s15, 0
    s_mov_b32 s{sO+3}, 0x20000
    s_lshl_b32 s{sT0}, s{sHH}, 10
    s_lshl_b32 s{sT1}, s{sCh}, 9
    s_add_u32 s{sT0}, s{sT0}, s{sT1}
    s_lshl_b32 s{sT1}, s{sRow}, 2
    s_add_u32 s{sT0}, s{sT0}, s{sT1}
    s_lshl_b32 s{sT1}, s{sTg}, 1
    s_add_u32 s{sT0}, s{sT0}, s{sT1}
    s_mul_i32 s56, s{sT0}, s{sT3}
    s_lshl_b32 s{sT0}, s{sT3}, 6
    s_add_u32 s57, s56, s{sT0}
    v_lshlrev_b32 v{t[0]}, 7, v{vGk}
    v_lshrrev_b32 v{t[1]}, 3, v{vI}
    v_add_u32 v{t[0]}, v{t[0]}, v{t[1]}
    v_mul_lo_u32 v{t[0]}, v{t[0]}, s{sT3}
    v_and_b32 v{t[1]}, 7, v0
    v_lshl_add_u32 v{vo}, v{t[1]}, 4, v{t[0]}
    v_xor_b32 v{vo+1}, 64, v{vo}
    ''')
    a.vm_issued -= 2
    for z in (1, 3, 5, 7, 9, 11, 13, 15): a.i(f'v_mov_b32 v{TL+z}, 0x3f80')
    def epi(isv, scale=False):
        def f():
            Q = []
            def part(v0, nv, dsts, ready):
                e = 8 * ready + 7 + 3
                for n in range(4):
                    b = ACC + 36 * n + v0
                    for j in range(0, nv, 2):
                        if scale:
                            Q.append((e, f'v_mul_f32 v{b+j}, s{sK}, v{b+j}')); Q.append((e, f'v_mul_f32 v{b+j+1}, s{sK}, v{b+j+1}'))
                        Q.append((e, f'v_cvt_pk_bf16_f32 v{dsts(n) + j//2}, v{b+j}, v{b+j+1}'))
                    if nv == 8:
                        pl = ((v0 % 18) // 8)
                        va = vo + 1 if (isv and pl) else vo
                        Q.append((e, f'buffer_store_dwordx4 v[{b}:{b+3}], v{va}, s[{sO}:{sO+3}], s{56 + v0//18} offen offset:{128*n + 512*pl} {ST}'))
                if nv == 2:
                    hs = v0 // 18; tl = TL + 8 * hs
                    if isv:
                        Q.append((e, f'buffer_store_dwordx4 v[{tl}:{tl+3}], v{vo}, s[{sO}:{sO+3}], s{56+hs} offen offset:{1024+128} {ST}'))
                        Q.append((e, f'buffer_store_dwordx4 v[{tl+4}:{tl+7}], v{vo}, s[{sO}:{sO+3}], s{56+hs} offen offset:1024 {ST}'))
                    else:
                        Q.append((e, f'buffer_store_dwordx4 v[{tl}:{tl+3}], v{vo}, s[{sO}:{sO+3}], s{56+hs} offen offset:1024 {ST}'))
            for hs in range(2):
                v = 18 * hs
                td = (lambda n, hs=hs: TL + 8 * hs + (4 * (n & 1) + 2 * (n >> 1) if isv else n))
                part(v, 8, lambda n, v=v: ACC + 36 * n + v, (v + 7) // 4)
                part(v + 8, 8, lambda n, v=v: ACC + 36 * n + v + 8, (v + 15) // 4)
                part(v + 16, 2, td, (v + 17) // 4)
            return Q
        return f
    def wreadR(f, s, m, rd):
        b = (s // 2) % 3
        return a.i(f'ds_read_b64_tr_b16 v[{f}:{f+1}], v{vWb + 2*b + (m >= 5)} offset:{(32*(s&1) + 4*rd)*576 + 8*m}')
    def xreadR(f, s, n):
        return a.i(f'ds_read_b128 v[{f}:{f+3}], v{vXr + (s&1)} offset:{RINGR.XB[(s//2)%3] + 2048*n}')
    gemm_consumer(a, RINGR, 4, wreadR, xreadR, 36, ACC, POOL, XF, DR, PR,
                  tails=[(None, f's_cmp_eq_u32 s{sC}, 2\ns_cbranch_scc1 L_stv', epi(0)),
                         ('L_stv', f's_cmp_eq_u32 s{sC}, 0\ns_cbranch_scc1 L_stq', epi(1)),
                         ('L_stq', None, epi(0, True))])
    a.label('L_V')
    a.restore(snap0); R.release(mark)
    XF = R.get(16, 4); POOL = R.get(4 * PV, 4); ACC = R.get(72, 4)
    T = R.get(52, 4); F1 = T; F2 = T + 16
    Z = R.get(32, 4); Y = R.get(6, 4); vP = R.get(1); vP2 = R.get(1); vL = R.get(1); vLV = R.get(1); vLT = R.get(1); vONE = R.get(1)
    a.many(f'''
    s_lshl_b32 s{sT0}, s{sHH}, 2
    s_add_u32 s{sC}, s{sC}, s{sT0}
    s_lshl_b32 s{sT2}, s{sWv}, 12
    v_add_u32 v{vXr}, s{sT2}, v{vXr}
    v_xor_b32 v{vXr+1}, 64, v{vXr}
    v_lshrrev_b32 v{t[0]}, 1, v{vGk}
    v_and_b32 v{t[1]}, 1, v{vGk}
    v_lshl_add_u32 v{t[0]}, v{t[0]}, 2, v{t[1]}
    v_lshl_add_u32 v{t[0]}, v{t[0]}, 2, v{t[2]}
    v_mul_u32_u24 v{t[0]}, 288, v{t[0]}
    v_mul_u32_u24 v{t[1]}, 72, v{t[3]}
    v_add_u32 v{t[0]}, v{t[0]}, v{t[1]}
    ''')
    for b in range(4): a.i(f'v_add_u32 v{vWb+b}, {RINGV.WB0 + b*RINGV.WBUF}, v{t[0]}')
    wphi_rd_addr(a, vP, vP2, 0, t[0], t[1])
    a.many(f'''
    v_add_u32 v{vP}, {WPH}, v{vP}
    v_add_u32 v{vP2}, {WPH}, v{vP2}
    s_mov_b32 s{sHi}, 0
    s_mov_b32 s{sHi+1}, -1
    s_mov_b32 s{sK}, {f2u(LOG2E)}
    s_mov_b32 s{sK+1}, {f2u(-LOG2E)}
    v_and_b32 v{t[0]}, 31, v0
    s_lshl_b32 s{sT1}, s{sWv}, 5
    v_add_u32 v{t[0]}, s{sT1}, v{t[0]}
    v_mul_u32_u24 v{t[0]}, 120, v{t[0]}
    v_lshrrev_b32 v{t[1]}, 5, v0
    v_mad_u32_u24 v{vL}, v{t[1]}, 40, v{t[0]}
    v_lshl_add_u32 v{vLV}, v{t[1]}, 4, v{t[0]}
    v_mul_u32_u24 v{t[1]}, 15360, v{t[1]}
    v_add3_u32 v{vLT}, v{t[1]}, v{t[0]}, 64
    v_add_u32 v{vLT}, 48, v{vLT}
    v_mov_b32 v{vONE}, 0x3f80
    v_mov_b32 v{Y+4}, 0
    v_mov_b32 v{Y+5}, 0
    s_waitcnt lgkmcnt(0)
    ''')
    def wreadV(f, s, m, rd):
        return a.i(f'ds_read_b64_tr_b16 v[{f}:{f+1}], v{vWb + (s//2)%4} offset:{(32*(s&1) + 8*rd)*288 + 8*m}')
    def xreadV(f, s, n):
        return a.i(f'ds_read_b128 v[{f}:{f+3}], v{vXr + (s&1)} offset:{RINGV.XB[(s//2)%4] + 2048*n}')
    gemm_consumer(a, RINGV, 2, wreadV, xreadV, 36, ACC, POOL, XF, DV, PV)
    a.stamp(3)
    for H in range(4): ptok = wphi_read(a, F1+4*H, F2+4*H, vP, vP2, 768*H)
    a.i('s_barrier')
    ypos = [0, 2, 1, 3]
    for hs in range(2):
        for kh in range(2):
            for n in range(2):
                for j in range(4):
                    b = ACC + 36 * n + 18 * hs + 8 * kh + 2 * j
                    a.i(f'v_cvt_pk_bf16_f32 v{Z + 16*hs + 4*(2*kh+n) + j}, v{b}, v{b+1}')
        for n in range(2):
            b = ACC + 36 * n + 18 * hs + 16
            a.i(f'v_cvt_pk_bf16_f32 v{Y + ypos[2*hs+n]}, v{b}, v{b+1}')
    sets = [[Z + 16 * hs + 4 * k + j for k in range(4)] for hs in range(2) for j in range(4)] + [[Y + ypos[k] for k in range(4)]]
    for S_ in sets:
        a.i(f'v_permlane32_swap_b32 v{S_[0]}, v{S_[2]}'); a.i(f'v_permlane32_swap_b32 v{S_[1]}, v{S_[3]}')
    for S_ in sets:
        a.i(f'v_permlane16_swap_b32 v{S_[0]}, v{S_[1]}'); a.i(f'v_permlane16_swap_b32 v{S_[2]}, v{S_[3]}')
    a.wait_lg(ptok)
    for H in range(4):
        if H & 1: a.i(f'v_cndmask_b32 v{F2+4*H}, 0, v{F2+4*H}, s[{sHi}:{sHi+1}]')
        else: a.i(f'v_cndmask_b32 v{F2+4*H}, v{F2+4*H}, 0, s[{sHi}:{sHi+1}]')
        for z in range(1, 4): a.i(f'v_mov_b32 v{F2+4*H+z}, 0')
    Dr = [ACC + 16 * H for H in range(4)]
    for H in range(4):
        kf = Z + 16 * (H & 1) + 4 * (H >> 1)
        a.i(f'v_mfma_f32_32x32x16_bf16 v[{Dr[H]}:{Dr[H]+15}], v[{F1+4*H}:{F1+4*H+3}], v[{kf}:{kf+3}], 0')
    for H in range(4):
        y = Y + 2 * (H >> 1)
        a.i(f'v_mfma_f32_32x32x16_bf16 v[{Dr[H]}:{Dr[H]+15}], v[{F2+4*H}:{F2+4*H+3}], v[{y}:{y+3}], v[{Dr[H]}:{Dr[H]+15}]')
    for H in range(4):
        vf = Z + 16 * (H & 1) + 4 * (2 + (H >> 1)); o = H * 15360 + 80
        a.i(f'ds_write_b64 v{vLV}, v[{vf}:{vf+1}] offset:{o}')
        a.i(f'ds_write_b64 v{vLV}, v[{vf+2}:{vf+3}] offset:{o+8}')
    a.i(f'ds_write2_b32 v{vLT}, v{Y+1}, v{vONE} offset0:0 offset1:1')
    a.i(f'v_add_u32 v{vLT}, {2*15360}, v{vLT}')
    a.i(f'ds_write2_b32 v{vLT}, v{Y+3}, v{vONE} offset0:0 offset1:1')
    PHo = [XF, XF + 10, XF + 20, XF + 30]
    for H in range(4): a.i(f'v_mov_b32 v{PHo[H]+9}, 0')
    for pair in range(2):
        hedgehog(a, [(Dr[2*pair+k], PHo[2*pair+k]) for k in range(2)], sK, T, sHi)
        for k in range(2):
            H = 2 * pair + k
            for j in range(5): a.i(f'ds_write_b64 v{vL}, v[{PHo[H]+2*j}:{PHo[H]+2*j+1}] offset:{H*15360 + 8*j}')
    a.many(f'''
    v_bfe_u32 v{t[0]}, v0, 4, 1
    v_bfe_u32 v{t[1]}, v0, 2, 2
    v_lshl_add_u32 v{t[0]}, v{t[0]}, 2, v{t[1]}
    v_lshrrev_b32 v{t[1]}, 5, v0
    v_lshlrev_b32 v{t[1]}, 1, v{t[1]}
    v_lshl_add_u32 v{t[0]}, v{t[0]}, 2, v{t[1]}
    s_lshl_b32 s{sT0}, s{sWv}, 7
    v_add_u32 v{t[0]}, s{sT0}, v{t[0]}
    v_mul_u32_u24 v{t[0]}, 120, v{t[0]}
    v_and_b32 v{t[1]}, 3, v0
    v_lshl_add_u32 v{t[0]}, v{t[1]}, 3, v{t[0]}
    s_lshl_b32 s{sT0}, s{sC}, 2
    s_add_u32 s{sT0}, s{sT0}, s{sWv}
    s_lshl_b32 s{sT0}, s{sT0}, 4
    s_add_u32 s{sT0}, s{sT0}, s{sRow}
    s_mul_i32 s{sT0}, s{sT0}, {KVP_BLK}
    s_add_u32 s{sT0}, s{sT0}, {KVP_OFF}
    s_add_u32 s{sO}, s14, s{sT0}
    s_addc_u32 s{sO+1}, s15, 0
    s_mov_b32 s{sO+2}, {KVP_BLK}
    s_mov_b32 s{sO+3}, 0x20000
    v_lshlrev_b32 v{t[1]}, 4, v0
    v_mov_b32 v{t[3]}, s{sOOB}
    v_cndmask_b32 v{t[2]}, v{t[1]}, v{t[3]}, s[{sHi}:{sHi+1}]
    v_lshl_add_u32 v{vP}, v{vGk}, 2, v{vI}
    v_lshlrev_b32 v{vP}, 4, v{vP}
    v_cmp_gt_u32 vcc, 4, v{vI}
    v_cndmask_b32 v{vP}, v{t[3]}, v{vP}, vcc
    s_waitcnt lgkmcnt(0)
    s_barrier
    ''')
    FR = T; KV = ACC
    toks = {}
    def rd_step(ts):
        fb = FR + 20 * (ts & 1)
        for k in range(5):
            co = 32 * k if k < 3 else 80 + 32 * (k - 3)
            for rd in range(2):
                toks[ts] = a.i(f'ds_read_b64_tr_b16 v[{fb+4*k+2*rd}:{fb+4*k+2*rd+1}], v{t[0]} offset:{(32*ts+rd)*120 + co}')
    rd_step(0); rd_step(1)
    for ts in range(4):
        a.wait_lg(toks[ts])
        fb = FR + 20 * (ts & 1)
        for ft in range(3):
            for dt in range(2):
                d = KV + 4 * (2 * ft + dt)
                c = '0' if ts == 0 else f'v[{d}:{d+3}]'
                a.i(f'v_mfma_f32_16x16x32_bf16 v[{d}:{d+3}], v[{fb+4*ft}:{fb+4*ft+3}], v[{fb+12+4*dt}:{fb+15+4*dt}], {c}')
        if ts + 2 < 4: rd_step(ts + 2)
    for dt in range(2):
        for ft in range(3):
            d = KV + 4 * (2 * ft + dt)
            va = vP if dt else (t[2] if ft == 2 else t[1])
            off = 2560 + 256 * ft if dt else 1024 * ft
            a.i(f'buffer_store_dwordx4 v[{d}:{d+3}], v{va}, s[{sO}:{sO+3}], 0 offen offset:{off} {ST}')
    a.stamp(4)
    a.label('L_p2C')
    a.reset_state(); a.vm_issued = 1
    sQA, sQB, sO16, sO2 = 16, 20, 28, 32
    sHead, sT8, sVF, sTile, sIdx = 53, 54, 55, 56, 57
    sSO = 4; sM = None
    R = RegAlloc(1, 256)
    vL16 = R.get(1); vTau = R.get(1); vZ = R.get(1); vTag = R.get(1)
    t = [R.get(1) for _ in range(6)]
    vK = R.get(1); vK2 = R.get(1); vV = R.get(4); vKV = R.get(1); vo2 = R.get(1); vGL = R.get(1)
    G = R.get(2)
    QA = R.get(16, 4)
    MD = R.get(16, 4); ME = R.get(16, 4)
    KF = R.get(16, 4); VF = R.get(16, 4)
    BIG = R.get(144, 4); XT = R.get(8, 4)
    Sb = [BIG, BIG + 16]; O = [BIG + 32, BIG + 48]; PH = [BIG + 120, BIG + 132]
    QB = KF; F1 = VF; F2 = VF + 4; vP = VF + 11; vP2 = VF + 12; vQt = VF + 13; QT = VF + 14
    D = Sb; T = BIG + 32
    a.i('s_nop 1')
    wphi_rd_addr(a, vP, vP2, 0, t[0], t[1])
    a.i(f'v_add_u32 v{vP}, {WP2}, v{vP}'); a.i(f'v_add_u32 v{vP2}, {WP2}, v{vP2}')
    ptk = wphi_read(a, F1, F2, vP, vP2, 0)
    p2_ids(a, sHead, sT8)
    a.many(f'''
    s_cmp_eq_u32 s{sT8}, 0
    s_cselect_b32 s{sVF}, 8, 0
    s_lshl_b32 s{sTile}, s{sT8}, 3
    s_lshl_b32 s{sT0}, s{sWv}, 1
    s_add_u32 s{sTile}, s{sTile}, s{sT0}
    s_mov_b32 s{sK}, {f2u(LOG2E)}
    s_mov_b32 s{sK+1}, {f2u(-LOG2E)}
    s_mov_b32 s{sHi}, 0
    s_mov_b32 s{sHi+1}, -1
    v_lshlrev_b32 v{vL16}, 4, v0
    v_and_b32 v{t[0]}, 7, v0
    v_bfe_u32 v{t[1]}, v0, 3, 2
    v_lshl_add_u32 v{vTau}, v{t[0]}, 2, v{t[1]}
    v_lshl_add_u32 v{vGL}, v{t[1]}, 4, v{t[0]}
    s_lshl_b32 s{sT2}, s{sWv}, 8
    s_add_u32 s{sT2}, s{sT2}, {GL}
    v_lshl_add_u32 v{vGL}, v{vGL}, 2, s{sT2}
    v_lshrrev_b32 v{t[1]}, 5, v0
    v_mul_u32_u24 v{t[0]}, {QK_BLK}, v{t[1]}
    v_lshl_add_u32 v{vQt}, v{vTau}, 2, v{t[0]}
    s_mul_i32 s{sT0}, s{sHead}, {64*QK_BLK}
    s_add_u32 s{sQB}, s14, s{sT0}
    s_addc_u32 s{sQB+1}, s15, 0
    s_add_u32 s{sQA}, s{sQB}, {QA_OFF}
    s_addc_u32 s{sQA+1}, s{sQB+1}, 0
    s_add_u32 s{sQB}, s{sQB}, {QB_OFF}
    s_addc_u32 s{sQB+1}, s{sQB+1}, 0
    s_lshl_b32 s{sT0}, s{sHead}, 6
    s_add_u32 s{sT0}, s{sT0}, s{sTile}
    s_lshl_b32 s{sSO}, s{sT0}, 10
    s_add_u32 s{sSO+1}, s{sSO}, 1024
    s_add_u32 s{sSO+2}, s{sSO}, {2048*1024}
    s_add_u32 s{sSO+3}, s{sSO}, {2049*1024}
    s_lshl_b32 s{sSO+4}, s{sT0}, 7
    v_bfe_u32 v{t[2]}, v0, 2, 3
    v_and_b32 v{t[3]}, 1, v0
    v_lshl_add_u32 v{t[2]}, v{t[3]}, 3, v{t[2]}
    v_bfe_u32 v{t[3]}, v0, 1, 1
    v_lshlrev_b32 v{t[3]}, 14, v{t[3]}
    v_add_u32 v{t[2]}, v{t[2]}, v{t[3]}
    v_lshlrev_b32 v{t[2]}, 4, v{t[2]}
    v_mov_b32 v{t[3]}, s{sOOB}
    v_cndmask_b32 v{vo2}, v{t[2]}, v{t[3]}, s[{sHi}:{sHi+1}]
    ''')
    srd(a, sQB, sQB, sQB+1, 64*QK_BLK); srd(a, sQA, sQA, sQA+1, 64*QK_BLK)
    a.i(f's_add_u32 s{sO16}, s14, {O16_OFF}'); a.i(f's_addc_u32 s{sO16+1}, s15, 0'); srd(a, sO16, sO16, sO16+1, O16_SZ)
    a.i(f's_add_u32 s{sO2}, s14, {O2_OFF}'); a.i(f's_addc_u32 s{sO2+1}, s15, 0'); srd(a, sO2, sO2, sO2+1, O2_SZ)
    quad_masks(a, sM)
    a.wait_lg(ptk)
    for z in range(1, 4): a.i(f'v_mov_b32 v{F2+z}, 0')
    for x in range(2):
        for z in range(5, 8):
            a.i(f'v_mov_b32 v{QA+8*x+z}, 0'); a.i(f'v_mov_b32 v{QB+8*x+z}, 0')
        for z in range(9, 12): a.i(f'v_mov_b32 v{PH[x]+z}, 0')
    tmpA, tmpB = MD, MD + 1
    a.many(f'''
    s_mul_i32 s{sT1}, s{sWv}, {2*KV_BLK}
    v_add_u32 v{vK}, s{sT1}, v{vL16}
    s_add_u32 s{sT2}, s{sT1}, {KB+1024}
    v_lshl_add_u32 v{vK2}, v{vTau}, 2, s{sT2}
    s_add_u32 s{sT1}, s{sT1}, {KB+QK_BLK}
    v_bfe_u32 v{t[2]}, v0, 2, 2
    v_and_b32 v{t[3]}, 1, v0
    v_bfe_u32 v{t[4]}, v0, 1, 1
    v_bfe_u32 v{t[5]}, v0, 4, 1
    v_cmp_eq_u32 vcc, 1, v{t[5]}
    v_xor_b32 v{tmpA}, v{t[1]}, v{t[3]}
    v_lshl_add_u32 v{tmpA}, v{tmpA}, 2, v{t[2]}
    v_lshlrev_b32 v{tmpA}, 4, v{tmpA}
    v_lshl_add_u32 v{tmpA}, v{t[3]}, 9, v{tmpA}
    v_lshl_add_u32 v{tmpA}, v{t[4]}, 3, v{tmpA}
    v_add_u32 v{tmpA}, s{sT1}, v{tmpA}
    v_lshl_add_u32 v{tmpB}, v{t[1]}, 2, v{t[2]}
    v_lshlrev_b32 v{tmpB}, 4, v{tmpB}
    v_add_u32 v{tmpB}, s{sT1}, v{tmpB}
    ''')
    for s in range(2):
        for rd in range(2):
            d = vV + 2 * s + rd
            a.i(f'v_add_u32 v{t[3]}, {256*s + 128*rd}, v{tmpA}')
            a.i(f'v_add_u32 v{t[4]}, {1024 + 128*(1-rd) + 8*s}, v{tmpB}')
            a.i(f'v_cndmask_b32 v{d}, v{t[3]}, v{t[4]}, vcc')
    a.many(f'''
    v_bfe_u32 v{t[2]}, v0, 3, 2
    v_bfe_u32 v{t[3]}, v0, 2, 1
    v_lshl_add_u32 v{t[3]}, v{t[3]}, 1, v{t[2]}
    v_cmp_lt_u32 vcc, 1, v{t[2]}
    v_cndmask_b32 v{t[3]}, v{t[3]}, 4, vcc
    v_and_b32 v{t[2]}, 3, v0
    v_lshl_add_u32 v{t[3]}, v{t[3]}, 2, v{t[2]}
    v_mul_u32_u24 v{t[3]}, 80, v{t[3]}
    v_mad_u32_u24 v{vKV}, v{t[1]}, 40, v{t[3]}
    v_add_u32 v{vKV}, {KVL}, v{vKV}
    v_lshlrev_b32 v{t[3]}, 4, v{t[1]}
    v_sub_u32 v{t[2]}, v{vTau}, v{t[3]}
    v_mov_b32 v{t[3]}, {NEG}
    ''')
    for r in range(16):
        kc = 4 * (r & 3) + (r >> 2)
        sp = 40 + 2 * (r & 3)
        a.i(f'v_cmp_le_i32 s[{sp}:{sp+1}], {kc}, v{t[2]}')
        if r & 3 == 3:
            for rr in range(r - 3, r + 1):
                sq = 40 + 2 * (rr & 3)
                a.i(f'v_cndmask_b32 v{MD+rr}, v{t[3]}, 0, s[{sq}:{sq+1}]')
                a.i(f'v_cndmask_b32 v{ME+rr}, 0, v{t[3]}, s[{sq}:{sq+1}]')
    a.stamp(5)
    a.i('s_waitcnt vmcnt(0)')
    a.i(f's_mul_i32 s{sT1}, s{sTile}, {QK_BLK}')
    a.i(f's_add_u32 s{sT2}, s{sT1}, {QK_BLK}')
    a.stamp(6)
    a.i('s_barrier')
    a.i('s_barrier')
    a.stamp(7)
    def loadQ(sR, Q, qt):
        for x in range(2):
            so = sT1 if x == 0 else sT2
            a.i(f'buffer_load_dwordx4 v[{Q+8*x}:{Q+8*x+3}], v{vL16}, s[{sR}:{sR+3}], s{so} offen {LD}')
        return a.i(f'buffer_load_dword v{qt}, v{vQt}, s[{sR}:{sR+3}], s{sT1} offen offset:1024 {LD}')
    tokB = loadQ(sQB, QB, QT)
    tokA = loadQ(sQA, QA, QT + 1)
    a.wait_vm(tokB)
    a.i(f'v_cndmask_b32 v{QB+4}, v{QT}, 0, s[{sHi}:{sHi+1}]')
    a.i(f'v_cndmask_b32 v{QB+12}, 0, v{QT}, s[{sHi}:{sHi+1}]')
    for x in range(2):
        a.i(f'v_mfma_f32_32x32x16_bf16 v[{D[x]}:{D[x]+15}], v[{F1}:{F1+3}], v[{QB+8*x}:{QB+8*x+3}], 0')
    for x in range(2):
        a.i(f'v_mfma_f32_32x32x16_bf16 v[{D[x]}:{D[x]+15}], v[{F2}:{F2+3}], v[{QB+8*x+4}:{QB+8*x+7}], v[{D[x]}:{D[x]+15}]')
    hedgehog(a, [(D[0], PH[0]), (D[1], PH[1])], sK, T, sHi)
    a.wait_vm(tokA)
    a.i(f'v_cndmask_b32 v{QA+4}, v{QT+1}, 0, s[{sHi}:{sHi+1}]')
    a.i(f'v_cndmask_b32 v{QA+12}, 0, v{QT+1}, s[{sHi}:{sHi+1}]')
    a.stamp(8)
    a.i('s_barrier')
    a.stamp(9)
    units = [(0, 0)] + [(x, n) for n in range(1, 9) for x in range(2)] + [(1, 9)]
    kt = {}; vt = {}
    def rdK(n):
        if n > 9 or n in kt: return
        f = KF + 8 * (n & 1)
        a.i(f'ds_read_b128 v[{f}:{f+3}], v{vK} offset:{n*KV_BLK}')
        kt[n] = a.i(f'ds_read_b32 v{f+4}, v{vK2} offset:{n*KV_BLK}')
    def rdV(n):
        if n > 9 or n in vt: return
        f = VF + 8 * (n & 1)
        for s in range(2):
            for rd in range(2):
                vt[n] = a.i(f'ds_read_b64_tr_b16 v[{f+4*s+2*rd}:{f+4*s+2*rd+1}], v{vV+2*s+rd} offset:{n*KV_BLK}')
    def mS(u, part):
        if u >= 18: return
        x, n = units[u]; f = KF + 8 * (n & 1); sn = Sb[u & 1]
        if part == 0:
            a.wait_lg(kt[n])
            c = f'v[{ME}:{ME+15}]' if n - x == 0 else (f'v[{MD}:{MD+15}]' if n - x == 8 else '0')
            a.i(f'v_mfma_f32_32x32x16_bf16 v[{sn}:{sn+15}], v[{f}:{f+3}], v[{QA+8*x}:{QA+8*x+3}], {c}')
        else:
            a.i(f'v_mfma_f32_32x32x16_bf16 v[{sn}:{sn+15}], v[{f+4}:{f+7}], v[{QA+8*x+4}:{QA+8*x+7}], v[{sn}:{sn+15}]')
    first = {0: True, 1: True}
    def mPV(u, part, P):
        x, n = units[u]; f = VF + 8 * (n & 1)
        a.wait_lg(vt[n])
        c = '0' if first[x] else f'v[{O[x]}:{O[x]+15}]'
        first[x] = False
        a.i(f'v_mfma_f32_32x32x16_bf16 v[{O[x]}:{O[x]+15}], v[{f+4*part}:{f+4*part+3}], v[{P}:{P+3}], {c}')
    KVF = BIG + 96; DB = [BIG + 64, BIG + 80]; SC = BIG + 108
    rdK(0); rdK(1); rdV(0); rdV(1)
    for z in range(9, 12): a.i(f'v_mov_b32 v{KVF+z}, 0')
    mS(0, 0); mS(0, 1)
    pend = None
    for u in range(18):
        x, n = units[u]; sn = Sb[u & 1]
        E = lambda r: a.i(f'v_exp_f32 v{sn+r}, v{sn+r}')
        C = lambda r: a.i(f'v_cvt_pk_bf16_f32 v{sn + (r if r < 4 else r + 4)}, v{sn+2*r}, v{sn+2*r+1}')
        E(0); E(1)
        if pend: mPV(*pend); pend = None
        E(2); E(3); E(4)
        mS(u + 1, 0)
        if u + 1 < 18 and units[u + 1][0] == 1 or u == 0: rdK(units[min(u + 1, 17)][1] + 1)
        E(5); C(0); C(1); E(6); E(7)
        mS(u + 1, 1)
        E(8); C(2); C(3); E(9); E(10)
        mPV(u, 0, sn)
        if u == UB:
            a.i('s_barrier')
            for s_ in range(2):
                a.i(f'ds_read_b64 v[{KVF+4*s_}:{KVF+4*s_+1}], v{vKV} offset:{16*s_}')
                a.i(f'ds_read_b64 v[{KVF+4*s_+2}:{KVF+4*s_+3}], v{vKV} offset:{16*s_+8}')
            a.i(f'ds_read_b32 v{KVF+8}, v{vKV} offset:32')
            a.i(f'ds_read_b32 v{G}, v{vGL}')
            ktok = a.i(f'ds_read_b32 v{G+1}, v{vGL} offset:32')
        if u in (UB + 1, UB + 2, UB + 3):
            a.wait_lg(ktok)
            s_ = u - UB - 1
            for x_ in range(2):
                c = '0' if s_ == 0 else f'v[{DB[x_]}:{DB[x_]+15}]'
                a.i(f'v_mfma_f32_32x32x16_bf16 v[{DB[x_]}:{DB[x_]+15}], v[{KVF+4*s_}:{KVF+4*s_+3}], v[{PH[x_]+4*s_}:{PH[x_]+4*s_+3}], {c}')
                if x_ == 0: E(11); E(12)
        else: E(11); E(12)
        E(13); C(4); C(5); E(14); E(15)
        if x == 0 and u > 0: rdV(n + 1)
        C(6); C(7)
        pend = (u, 1, sn + 8)
    mPV(*pend)
    a.stamp(10)
    def store_o(Oreg, side, x, scale):
        for j in range(5):
            a.i(f'v_pk_mul_f32 v[{Oreg+2*j}:{Oreg+2*j+1}], v[{Oreg+2*j}:{Oreg+2*j+1}], v[{scale}:{scale+1}] op_sel_hi:[1,0]')
        for j in range(4):
            a.i(f'v_cvt_pk_bf16_f32 v{Oreg+j}, v{Oreg+2*j}, v{Oreg+2*j+1}')
        a.i(f'buffer_store_dwordx4 v[{Oreg}:{Oreg+3}], v{vL16}, s[{sO16}:{sO16+3}], s{sSO+2*side+x} offen {ST}')
        a.i(f'v_cvt_pk_bf16_f32 v{XT+2*side+x}, v{Oreg+8}, v{Oreg+9}')
    for x in range(2):
        sc = SC + 2 * x
        a.i(f'v_add_f32 v{sc}, {f2u(1e-6)}, v{DB[x]+10}')
        a.i(f'v_rcp_f32 v{sc}, v{sc}')
        a.i(f'v_sub_f32 v{sc+1}, 1.0, v{G+x}')
        a.i(f'v_mul_f32 v{sc}, v{sc}, v{sc+1}')
        store_o(DB[x], 1, x, sc)
    lo, hi = (f2u(2.0 ** -30), f2u(2.0 ** 30)) if not FORCE_FALLBACK else (f2u(2.0 ** 30), f2u(2.0 ** 31))
    a.many(f'''
    v_min_f32 v{t[1]}, v{O[0]+10}, v{O[1]+10}
    v_max_f32 v{t[2]}, v{O[0]+10}, v{O[1]+10}
    v_add_f32 v{t[3]}, v{O[0]+10}, v{O[1]+10}
    v_rcp_f32 v{SC+4}, v{O[0]+10}
    v_rcp_f32 v{SC+6}, v{O[1]+10}
    v_cmp_nle_f32 vcc, {lo}, v{t[1]}
    s_mov_b64 s[24:25], vcc
    v_cmp_nge_f32 vcc, {hi}, v{t[2]}
    s_or_b64 s[24:25], s[24:25], vcc
    v_cmp_u_f32 vcc, v{t[3]}, v{t[3]}
    s_or_b64 s[24:25], s[24:25], vcc
    s_cbranch_scc1 L_exact
    ''')
    snapX = a.snapshot()
    for x in range(2):
        sc = SC + 4 + 2 * x
        a.i(f'v_mul_f32 v{sc}, v{sc}, v{G+x}')
        store_o(O[x], 0, x, sc)
    a.label('L_p3C')
    a.i('s_barrier')
    for ins in quad_transpose(a, [XT + k for k in range(4)], [XT + 4 + k for k in range(4)], sM): a.i(ins)
    a.i(f'buffer_store_dwordx4 v[{XT}:{XT+3}], v{vo2}, s[{sO2}:{sO2+3}], s{sSO+4} offen {ST}')
    sR3, sC3, sHas, sOut = 16, 17, 18, 24
    R3 = RegAlloc(24, 240)
    u = t
    vOut = R3.get(1); vA = R3.get(6); vOt = R3.get(1)
    TT = R3.get(4, 4)
    OF = R3.get(4 * NO, 4); P = 8; POOL = R3.get(4 * P, 4); ACC = R3.get(32, 4)
    a.i('s_load_dwordx2 s[12:13], s[0:1], 64')
    p3_ids(a, sR3, sC3, sHas)
    a.many(f'''
    s_mul_i32 s{sT1}, s{sR3}, 3
    s_add_u32 s{sT1}, s{sT1}, s{sWv}
    s_cmp_ge_u32 s{sT1}, 64
    s_cselect_b32 s19, 0, s{sHas}
    s_cmp_eq_u32 s{sWv}, 3
    s_cselect_b32 s19, 0, s19
    s_lshl_b32 s{sT2}, s{sT1}, 10
    s_add_u32 s20, s{sO16}, s{sT2}
    s_addc_u32 s21, s{sO16+1}, 0
    s_mov_b32 s22, {O16_SZ - 63*1024}
    s_mov_b32 s23, 0x20000
    s_lshl_b32 s{sT2}, s{sT1}, 7
    s_add_u32 s36, s{sO2}, s{sT2}
    s_addc_u32 s37, s{sO2+1}, 0
    s_mov_b32 s38, {O2_SZ - 63*128}
    s_mov_b32 s39, 0x20000
    s_mul_i32 s{sT3}, s{sT1}, {32*1152}
    s_lshl_b32 s{sT0}, s{sC3}, 7
    s_add_u32 s{sT3}, s{sT3}, s{sT0}
    v_lshrrev_b32 v{u[0]}, 5, v0
    v_bfe_u32 v{u[1]}, v0, 2, 2
    v_lshl_add_u32 v{u[2]}, v{u[0]}, 3, v{u[1]}
    v_lshlrev_b32 v{u[2]}, 7, v{u[2]}
    v_and_b32 v{u[3]}, 1, v0
    v_lshlrev_b32 v{u[3]}, 2, v{u[3]}
    v_bfe_u32 v{u[4]}, v0, 4, 1
    v_add_u32 v{u[3]}, v{u[3]}, v{u[4]}
    v_and_b32 v{u[1]}, 2, v{u[1]}
    v_xor_b32 v{u[3]}, v{u[3]}, v{u[1]}
    v_bfe_u32 v{u[4]}, v0, 1, 1
    v_lshl_add_u32 v{u[2]}, v{u[4]}, 3, v{u[2]}
    v_lshl_add_u32 v{vA+4}, v{u[3]}, 4, v{u[2]}
    v_xor_b32 v{u[3]}, 2, v{u[3]}
    v_lshl_add_u32 v{vA+5}, v{u[3]}, 4, v{u[2]}
    v_add_u32 v{vA}, {WO0}, v{vA+4}
    v_add_u32 v{vA+1}, {WO0}, v{vA+5}
    v_add_u32 v{vA+2}, {WO0+65536}, v{vA+4}
    v_add_u32 v{vA+3}, {WO0+65536}, v{vA+5}
    v_mul_u32_u24 v{vOut}, 1152, v{vTau}
    v_lshl_add_u32 v{vOut}, v{u[0]}, 6, v{vOut}
    v_and_b32 v{u[1]}, 3, v0
    v_lshl_add_u32 v{u[1]}, v{u[0]}, 2, v{u[1]}
    v_lshlrev_b32 v{u[1]}, 13, v{u[1]}
    v_bfe_u32 v{u[2]}, v0, 2, 3
    v_lshl_add_u32 v{vOt}, v{u[2]}, 4, v{u[1]}
    s_waitcnt lgkmcnt(0)
    ''')
    add64(a, sOut, 12, f's{sT3}')
    a.i(f's_sub_u32 s{sOut+2}, {2048*1152}, s{sT3}'); a.i(f's_mov_b32 s{sOut+3}, 0x20000')
    a.i('s_waitcnt vmcnt(0)')
    a.stamp(11)
    a.i('s_barrier')
    a.i('s_cmp_eq_u32 s19, 0')
    a.i('s_cbranch_scc1 L_fin')
    otok = {}; ftok = {}
    def loadO(step):
        if step >= 72: return
        side, ls = divmod(step, 36)
        f = OF + 4 * (step % NO)
        if ls < 32:
            a.i(f's_mov_b32 s{sT2}, {(side*32 + ls)*65536}')
            otok[step] = a.i(f'buffer_load_dwordx4 v[{f}:{f+3}], v{vL16}, s[20:23], s{sT2} offen {LD}')
        else:
            a.i(f's_mov_b32 s{sT2}, {(side*32 + 8*(ls-32))*8192}')
            otok[step] = a.i(f'buffer_load_dwordx4 v[{f}:{f+3}], v{vOt}, s[36:39], s{sT2} offen {LD}')
    def rd(q):
        if q >= 144: return
        step, m = divmod(q, 2)
        st = step // 4
        base, bi = (WO0, 0) if st < 8 else ((WO0 + 65536, 1) if st < 14 else (0, 2))
        f = POOL + 4 * (q % P)
        for r in range(2):
            ftok[q] = a.i(f'ds_read_b64_tr_b16 v[{f+2*r}:{f+2*r+1}], v{vA+2*bi+m} offset:{wo_off(st) - base + (16*(step%4)+4*r)*128}')
    a.i('s_barrier')
    a.stamp(12)
    for s in range(NO): loadO(s)
    Dd = 6
    for q in range(Dd): rd(q)
    for q in range(144):
        step, m = divmod(q, 2)
        a.wait_vm(otok[step]); a.wait_lg(ftok[q])
        f = POOL + 4 * (q % P); o = OF + 4 * (step % NO); acc = ACC + 16 * m
        c = '0' if step == 0 else f'v[{acc}:{acc+15}]'
        a.i(f'v_mfma_f32_32x32x16_bf16 v[{acc}:{acc+15}], v[{f}:{f+3}], v[{o}:{o+3}], {c}')
        rd(q + Dd)
        if m == 0 and step + 1 < 72 and (step + 1) % 36 >= 32:
            a.wait_vm(otok[step + 1])
            o2 = OF + 4 * ((step + 1) % NO)
            for ins in quad_transpose(a, [o2 + k for k in range(4)], [TT + k for k in range(4)], sM): a.i(ins)
        if m == 1: loadO(step + NO)
    for j in range(16):
        a.i(f'v_cvt_pk_bf16_f32 v{ACC+j}, v{ACC+2*j}, v{ACC+2*j+1}')
    for j in range(4):
        a.i(f'buffer_store_dwordx4 v[{ACC+4*j}:{ACC+4*j+3}], v{vOut}, s[{sOut}:{sOut+3}], 0 offen offset:{16*j}')
    a.label('L_fin')
    a.stamp_end(0, 14, 3)
    a.i('s_endpgm')
    a.label('L_exact')
    a.restore(snapX)
    a.i('s_nop 7')
    S = BIG; OE = VF
    for z in (13, 14, 15): a.i(f'v_mov_b32 v{KF+z}, 0')
    for x in range(2):
        kt = {}
        def rdK2(n):
            f = KF + 8 * (n & 1)
            a.i(f'ds_read_b128 v[{f}:{f+3}], v{vK} offset:{(x+n)*KV_BLK}')
            kt[n] = a.i(f'ds_read_b32 v{f+4}, v{vK2} offset:{(x+n)*KV_BLK}')
        for z in (5, 6, 7): a.i(f'v_mov_b32 v{KF+z}, 0')
        rdK2(0); rdK2(1)
        for n in range(9):
            a.wait_lg(kt[n])
            f = KF + 8 * (n & 1); sn = S + 16 * n
            c = f'v[{ME}:{ME+15}]' if n == 0 else (f'v[{MD}:{MD+15}]' if n == 8 else '0')
            a.i(f'v_mfma_f32_32x32x16_bf16 v[{sn}:{sn+15}], v[{f}:{f+3}], v[{QA+8*x}:{QA+8*x+3}], {c}')
            a.i(f'v_mfma_f32_32x32x16_bf16 v[{sn}:{sn+15}], v[{f+4}:{f+7}], v[{QA+8*x+4}:{QA+8*x+7}], v[{sn}:{sn+15}]')
            if n + 2 < 9: rdK2(n + 2)
        a.flush_hazards()
        a.i(f's_lshl_b32 s{sT0}, s{sWv}, 1')
        for n in range(8):
            a.i(f's_add_u32 s{sT1}, s{sT0}, {x+n}')
            a.i(f's_cmp_ge_u32 s{sT1}, s{sVF}')
            a.i(f's_cbranch_scc1 L_valid{x}')
            for r in range(16): a.i(f'v_mov_b32 v{S+16*n+r}, {NEG}')
        a.label(f'L_valid{x}')
        m = t[0:4]
        for k in range(4):
            b = S + 36 * k
            a.i(f'v_max3_f32 v{m[k]}, v{b}, v{b+1}, v{b+2}')
        for j in range(3, 35, 2):
            for k in range(4):
                b = S + 36 * k
                a.i(f'v_max3_f32 v{m[k]}, v{m[k]}, v{b+j}, v{b+j+1}')
        for k in range(4): a.i(f'v_max_f32 v{m[k]}, v{m[k]}, v{S+36*k+35}')
        a.i(f'v_max3_f32 v{m[0]}, v{m[0]}, v{m[1]}, v{m[2]}')
        a.i(f'v_max_f32 v{m[0]}, v{m[0]}, v{m[3]}')
        a.i(f'v_mov_b32 v{m[1]}, v{m[0]}')
        a.i(f'v_permlane32_swap_b32 v{m[0]}, v{m[1]}')
        a.i(f'v_max_f32 v{m[0]}, v{m[0]}, v{m[1]}')
        for n in range(9):
            sn = S + 16 * n
            for s in range(2):
                for rd_ in range(2):
                    vtk = a.i(f'ds_read_b64_tr_b16 v[{KF+4*s+2*rd_}:{KF+4*s+2*rd_+1}], v{vV+2*s+rd_} offset:{(x+n)*KV_BLK}')
            for r in range(16): a.i(f'v_sub_f32 v{sn+r}, v{sn+r}, v{m[0]}')
            for r in range(16): a.i(f'v_exp_f32 v{sn+r}, v{sn+r}')
            for r in range(8): a.i(f'v_cvt_pk_bf16_f32 v{sn+r}, v{sn+2*r}, v{sn+2*r+1}')
            a.wait_lg(vtk)
            c = '0' if n == 0 else f'v[{OE}:{OE+15}]'
            a.i(f'v_mfma_f32_32x32x16_bf16 v[{OE}:{OE+15}], v[{KF}:{KF+3}], v[{sn}:{sn+3}], {c}')
            a.i(f'v_mfma_f32_32x32x16_bf16 v[{OE}:{OE+15}], v[{KF+4}:{KF+7}], v[{sn+4}:{sn+7}], v[{OE}:{OE+15}]')
        sc = S
        a.i(f'v_rcp_f32 v{sc}, v{OE+10}')
        a.i(f'v_mul_f32 v{sc}, v{sc}, v{G+x}')
        store_o(OE, 0, x, sc)
    a.i('s_nop 1')
    a.i('s_branch L_p3C')
    a.label('L_H')
    a.restore(snapE)
    vXoff, vWoff, h = 1, 5, [14 + k for k in range(8)]
    if PF_CODE:
        a.many(f'''
        s_getpc_b64 s[54:55]
        L_pc:
        s_sub_u32 s54, s54, L_pc-{name}
        s_subb_u32 s55, s55, 0
        s_lshl_b32 s56, s{sT1}, 2
        s_add_u32 s56, s56, s{sWv}
        s_lshl_b32 s56, s56, 7
        v_lshl_add_u32 v{h[4]}, v0, 14, s56
        v_min_u32 v{h[4]}, L_code_end-{name}-4, v{h[4]}
        global_load_dword v{h[5]}, v{h[4]}, s[54:55]
        ''')
    a.many(f'''
    s_lshl_b32 s{sMX}, s{sWv}, 12
    s_lshl_b32 s{sMW}, s{sWv}, 10
    s_lshr_b32 s{sT2}, s{sWv}, 1
    s_lshl_b32 s{sT2}, s{sT2}, 5
    s_and_b32 s{sT3}, s{sWv}, 1
    s_add_u32 s{sT2}, s{sT2}, s{sT3}
    s_mul_i32 s{sT2}, s{sT2}, {2*1152}
    v_lshrrev_b32 v{h[0]}, 3, v0
    v_lshrrev_b32 v{h[1]}, 4, v0
    v_and_b32 v{h[2]}, 7, v0
    v_mul_u32_u24 v{h[0]}, {4*1152}, v{h[0]}
    v_add_u32 v{h[0]}, s{sT2}, v{h[0]}
    v_xor_b32 v{h[3]}, v{h[2]}, v{h[1]}
    v_lshl_add_u32 v{vXoff}, v{h[3]}, 4, v{h[0]}
    v_xor_b32 v{h[3]}, 4, v{h[3]}
    v_lshl_add_u32 v{vXoff+1}, v{h[3]}, 4, v{h[0]}
    v_add_u32 v{vXoff+1}, {32*1152}, v{vXoff+1}
    v_add_u32 v{vXoff+2}, 1152, v{vXoff}
    v_add_u32 v{vXoff+3}, 1152, v{vXoff+1}
    s_lshl_b32 s{sT2}, s{sWv}, 6
    v_add_u32 v{h[0]}, s{sT2}, v0
    s_mov_b32 s{sT3}, 3456
    s_cmp_ge_u32 s{sT1}, 16
    s_cbranch_scc1 L_HV
    ''')
    snapH = a.snapshot()
    def xsrd():
        a.i('s_waitcnt lgkmcnt(0)')
        a.i(f's_mul_i32 s{sT2}, s{sRow}, {128*1152}')
        add64(a, sX, 4, f's{sT2}')
        srd(a, sX, sX, sX+1, 128*1152)
    def wp2():
        srd(a, sP, 10, 11, 32*648)
        wphi_dma_addr(a, 24, 0, h[0], h[1], sOOB)
        p2_ids(a, 53, 54)
        a.i(f's_mul_i32 s{sT0}, s53, 648')
        a.i(f's_mov_b32 s{sT1}, 0')
        a.i(f's_cmp_eq_u32 s{sWv}, 0')
        a.i(f's_cselect_b32 s{sT1}, {WP2}, {WP2+768}' if False else f's_cselect_b32 s{sT1}, 0, 768')
        wphi_dma(a, 24, sP, sT0, sT1, WP2)
    for n in range(9):
        a.many(f'''
        v_add_u32 v{h[1]}, {256*n}, v{h[0]}
        v_mul_u32_u24 v{h[2]}, 1821, v{h[1]}
        v_lshrrev_b32 v{h[2]}, 16, v{h[2]}
        v_mul_u32_u24 v{h[3]}, 36, v{h[2]}
        v_sub_u32 v{h[1]}, v{h[1]}, v{h[3]}
        v_bfe_u32 v{h[3]}, v{h[2]}, 3, 1
        v_lshlrev_b32 v{h[3]}, 1, v{h[3]}
        v_sub_u32 v{h[1]}, v{h[1]}, v{h[3]}
        v_add_u32 v{h[3]}, 36, v{h[1]}
        v_min_u32 v{h[1]}, v{h[1]}, v{h[3]}
        v_lshlrev_b32 v{h[1]}, 4, v{h[1]}
        v_mad_u32_u24 v{vWoff+n}, v{h[2]}, s{sT3}, v{h[1]}
        ''')
    xsrd()
    a.many(f'''
    s_mul_i32 s{sT2}, s{sC}, 1152
    s_cmp_eq_u32 s{sC}, 3
    s_cselect_b32 s{sT2}, 0, s{sT2}
    s_cselect_b32 s{sW}, s8, s6
    s_cselect_b32 s{sW+1}, s9, s7
    s_mul_i32 s{sT3}, s{sHH}, 576
    s_add_u32 s{sT2}, s{sT2}, s{sT3}
    s_add_u32 s{sW}, s{sW}, s{sT2}
    s_addc_u32 s{sW+1}, s{sW+1}, 0
    s_sub_u32 s{sW+2}, {576*3456}, s{sT2}
    s_mov_b32 s{sW+3}, 0x20000
    ''')
    gemm_producer(a, RINGR, 9, 4, vWoff, vXoff, wp2)
    a.i('s_branch L_p2H')
    a.label('L_HV')
    a.restore(snapH)
    a.many(f'''
    s_mov_b32 s55, s{sC}
    s_lshl_b32 s{sT0}, s{sHH}, 2
    s_add_u32 s{sC}, s{sC}, s{sT0}
    v_mov_b32 v{h[7]}, s{sOOB}
    ''')
    for n in range(5):
        a.many(f'''
        v_add_u32 v{h[1]}, {256*n}, v{h[0]}
        v_mul_u32_u24 v{h[2]}, 3641, v{h[1]}
        v_lshrrev_b32 v{h[2]}, 16, v{h[2]}
        v_mul_u32_u24 v{h[3]}, 18, v{h[2]}
        v_sub_u32 v{h[1]}, v{h[1]}, v{h[3]}
        v_and_b32 v{h[3]}, 0x73, v{h[2]}
        v_bfe_u32 v{h[4]}, v{h[2]}, 2, 1
        v_lshl_add_u32 v{h[3]}, v{h[4]}, 3, v{h[3]}
        v_bfe_u32 v{h[4]}, v{h[2]}, 3, 1
        v_lshl_add_u32 v{h[3]}, v{h[4]}, 2, v{h[3]}
        v_mul_u32_u24 v{h[3]}, s{sT3}, v{h[3]}
        v_lshl_add_u32 v{h[3]}, v{h[1]}, 4, v{h[3]}
        v_add_u32 v{h[4]}, {1152-144}, v{h[3]}
        v_cmp_lt_u32 vcc, 8, v{h[1]}
        v_cndmask_b32 v{vWoff+n}, v{h[3]}, v{h[4]}, vcc
        ''')
        if n == 4:
            a.i(f'v_cmp_lt_u32 vcc, 63, v{h[2]}')
            a.i(f'v_cndmask_b32 v{vWoff+n}, v{vWoff+n}, v{h[7]}, vcc')
    xsrd()
    a.many(f'''
    s_mul_i32 s{sT2}, s{sC}, 144
    s_add_u32 s{sT2}, s{sT2}, 1152
    s_add_u32 s{sW}, s8, s{sT2}
    s_addc_u32 s{sW+1}, s9, 0
    s_sub_u32 s{sW+2}, {576*3456}, s{sT2}
    s_mov_b32 s{sW+3}, 0x20000
    ''')
    gX, gG, gA, vgx, vgg = 32, 48, 64, 28, 27
    def exV():
        wp2()
        a.i(f's_lshl_b32 s{sT0}, s{sC}, 2')
        a.i(f's_add_u32 s{sT0}, s{sT0}, s{sWv}')
        a.i(f's_mul_i32 s{sT0}, s{sT0}, 648')
        a.i(f's_mul_i32 s{sT1}, s{sWv}, 768')
        wphi_dma(a, 24, sP, sT0, sT1, WPH)
        a.many(f'''
        v_and_b32 v{h[0]}, 31, v0
        v_lshrrev_b32 v{h[1]}, 5, v0
        v_bfe_u32 v{h[2]}, v0, 1, 3
        v_lshlrev_b32 v{h[3]}, 2, v{h[1]}
        v_xor_b32 v{h[2]}, v{h[2]}, v{h[3]}
        v_lshlrev_b32 v{h[0]}, 7, v{h[0]}
        v_add_u32 v{h[0]}, s{sMX}, v{h[0]}
        v_lshlrev_b32 v{vgg}, 6, v{h[1]}
        v_add_u32 v{vgg}, {GOFS}, v{vgg}
        ''')
        for j in range(4):
            a.i(f'v_xor_b32 v{h[3]}, {j}, v{h[2]}')
            a.i(f'v_lshl_add_u32 v{vgx+j}, v{h[3]}, 4, v{h[0]}')
            a.i(f'v_mov_b32 v{gA+j}, 0')
    def earlyV():
        srd(a, sG, 12, 13, 1152)
        a.i(f'v_lshlrev_b32 v{h[0]}, 4, v0')
        a.i(f's_add_u32 m0, s{sMW}, {GOFS}')
        a.i(f'buffer_load_dwordx4 v{h[0]}, s[{sG}:{sG+3}], s{sMW} offen lds')
    def gate_stage(st):
        a.i('s_cmp_lg_u32 s55, 0')
        a.i(f's_cbranch_scc1 L_ng{st}')
        for j in range(4):
            a.i(f'ds_read_b128 v[{gX+4*j}:{gX+4*j+3}], v{vgx+j} offset:{RINGV.XB[st%4]}')
            a.i(f'ds_read_b128 v[{gG+4*j}:{gG+4*j+3}], v{vgg} offset:{128*st + 16*j}')
        a.i('s_waitcnt lgkmcnt(0)')
        for k in range(4):
            for j in range(4): a.i(f'v_dot2_f32_bf16 v{gA+j}, v{gX+4*j+k}, v{gG+4*j+k}, v{gA+j}')
            if k < 3: a.i('s_nop 1')
        a.label(f'L_ng{st}')
    gemm_producer(a, RINGV, 5, 2, vWoff, vXoff, exV, earlyV, after=gate_stage)
    a.i('s_barrier')
    a.many(f'''
    s_cmp_lg_u32 s55, 0
    s_cbranch_scc1 L_ngs
    s_nop 3
    v_add_f32 v{gA}, v{gA}, v{gA+1}
    v_add_f32 v{gA+2}, v{gA+2}, v{gA+3}
    v_add_f32 v{gA}, v{gA}, v{gA+2}
    v_mov_b32 v{gA+1}, v{gA}
    v_permlane32_swap_b32 v{gA}, v{gA+1}
    v_add_f32 v{gA}, v{gA}, v{gA+1}
    v_mul_f32 v{gA}, {f2u(-LOG2E)}, v{gA}
    v_exp_f32 v{gA}, v{gA}
    s_add_u32 s{sG}, s14, {G_OFF}
    s_addc_u32 s{sG+1}, s15, 0
    s_mov_b32 s{sG+2}, 8192
    v_add_f32 v{gA}, 1.0, v{gA}
    v_rcp_f32 v{gA}, v{gA}
    s_lshl_b32 s{sT0}, s{sRow}, 9
    s_lshl_b32 s{sT1}, s{sWv}, 7
    s_add_u32 s{sT0}, s{sT0}, s{sT1}
    v_lshlrev_b32 v{h[0]}, 2, v0
    v_and_b32 v{h[1]}, 35, v0
    v_cmp_eq_u32 vcc, 0, v{h[1]}
    v_cndmask_b32 v{h[0]}, v{h[7]}, v{h[0]}, vcc
    v_mov_b32_dpp v{gA+1}, v{gA} quad_perm:[1,1,1,1] row_mask:0xf bank_mask:0xf
    v_mov_b32_dpp v{gA+2}, v{gA} quad_perm:[2,2,2,2] row_mask:0xf bank_mask:0xf
    v_mov_b32_dpp v{gA+3}, v{gA} quad_perm:[3,3,3,3] row_mask:0xf bank_mask:0xf
    buffer_store_dwordx4 v[{gA}:{gA+3}], v{h[0]}, s[{sG}:{sG+3}], s{sT0} offen {ST}
    L_ngs:
    ''')
    a.i('s_mov_b32 s59, 1')
    a.i('s_branch L_p2H2')
    a.label('L_p2H')
    a.i('s_mov_b32 s59, 0')
    a.label('L_p2H2')
    a.reset_state(); a.vm_issued = 1
    a.stamp(1)
    sWo = [16, 20]; sKA, sKV, sGt, sPf = 24, 28, 32, 8
    sWh, sWt, sM3 = 36, 37, 38
    sR3, sC3, sHas = 39, 44, 45
    hT, hL16, hF, hA, hPt, hWh, hWt, hZ, hTag, hLate, hKv, hF2 = 1, 2, 3, 4, 5, 6, 7, 8, 9, 10, 11, 12
    h = [80 + k for k in range(8)]
    PART = 16
    tag_load(a, hZ, hTag)
    a.i('s_load_dwordx2 s[4:5], s[0:1], 16')
    a.i('s_load_dwordx2 s[6:7], s[0:1], 48')
    flag_srd(a)
    p2_ids(a, sHead, sT8)
    p3_ids(a, sR3, sC3, sHas)
    a.many(f'''
    s_lshl_b32 s{sT0}, s{sWv}, 6
    v_add_u32 v{hT}, s{sT0}, v0
    v_lshlrev_b32 v{hL16}, 4, v0
    s_waitcnt lgkmcnt(0)
    ''')
    if PF_WO:
        srd(a, sWo[0], 4, 5, 576*1152); srd(a, sWo[1], 6, 7, 576*1152)
        a.many(f'''
        s_lshr_b32 s{sT1}, s2, 3
        s_lshl_b32 s{sT1}, s{sT1}, 15
        v_lshlrev_b32 v{h[0]}, 7, v{hT}
        buffer_load_dword v{h[6]}, v{h[0]}, s[{sWo[0]}:{sWo[0]+3}], s{sT1} offen
        buffer_load_dword v{h[7]}, v{h[0]}, s[{sWo[1]}:{sWo[1]+3}], s{sT1} offen
        ''')
    hS1, hS2, hP2 = 13, 14, 15
    a.many(f'''
    s_lshl_b32 s{sT0}, s{sT8}, 5
    s_add_u32 s{sT0}, s{sT0}, s{sHead}
    s_lshl_b32 s{sT0}, s{sT0}, 8
    s_add_u32 s{sT0}, s{sT0}, {M1_OFF}
    v_and_b32 v{h[0]}, 3, v0
    v_bfe_u32 v{h[1]}, v0, 2, 2
    v_add_u32 v{h[2]}, -1, v{h[0]}
    v_cmp_gt_u32 s[24:25], 2, v{h[2]}
    v_cmp_lt_u32 s[28:29], 1, v{h[1]}
    s_cmp_eq_u32 s{sT8}, 0
    s_cselect_b64 s[24:25], 0, s[24:25]
    s_or_b64 s[24:25], s[24:25], s[28:29]
    v_and_b32 v{h[0]}, 15, v0
    v_cndmask_b32 v{h[1]}, 9, v{h[0]}, s[24:25]
    v_lshl_add_u32 v{hA}, v{h[1]}, 2, s{sT0}
    v_add_u32 v{h[0]}, 32, v{h[0]}
    v_and_b32 v{h[1]}, 1, v0
    v_add_u32 v{h[1]}, 16, v{h[1]}
    v_cmp_gt_u32 vcc, 16, v0
    v_cndmask_b32 v{h[0]}, v{h[1]}, v{h[0]}, vcc
    v_lshl_add_u32 v{hLate}, v{h[0]}, 2, s{sT0}
    ''')
    a.many(f'''
    s_and_b32 s{sT0}, s2, 7
    s_lshr_b32 s{sT1}, s2, 3
    s_and_b32 s24, s{sT0}, 1
    s_lshr_b32 s{sT0}, s{sT0}, 1
    s_lshl_b32 s{sT0}, s{sT0}, 2
    s_and_b32 s25, s{sT1}, 3
    s_add_u32 s25, s25, s{sT0}
    s_bfe_u32 s26, s{sT1}, 0x20002
    s_lshr_b32 s27, s25, 1
    s_and_b32 s28, s25, 1
    s_lshl_b32 s29, s27, 5
    s_lshl_b32 s30, s24, 4
    s_add_u32 s29, s29, s30
    v_and_b32 v{h[0]}, 15, v0
    v_add_u32 v{h[0]}, s29, v{h[0]}
    v_lshlrev_b32 v{h[0]}, 8, v{h[0]}
    v_mov_b32 v{h[3]}, s{sOOB}
    s_cmp_eq_u32 s59, 0
    s_cbranch_scc0 L_sV
    s_lshl_b32 s30, s28, 2
    s_add_u32 s30, s30, s26
    s_lshl_b32 s30, s30, 2
    s_add_u32 s30, s30, {M1_OFF}
    v_add_u32 v{h[0]}, s30, v{h[0]}
    v_add_u32 v{h[1]}, 32, v{h[0]}
    v_add_u32 v{h[2]}, 8192, v{h[0]}
    s_sub_u32 s30, s26, 1
    s_cmp_lt_u32 s30, 2
    s_cselect_b32 s30, 32, 16
    s_cmp_lt_u32 s27, 7
    s_cselect_b32 s30, s30, 16
    v_cmp_gt_u32 vcc, 16, v0
    v_cndmask_b32 v{h[1]}, v{h[2]}, v{h[1]}, vcc
    v_cmp_gt_u32 vcc, s30, v0
    v_cndmask_b32 v{hS1}, v{h[3]}, v{h[1]}, vcc
    s_branch L_sD
    L_sV:
    s_lshl_b32 s30, s28, 2
    s_add_u32 s30, s30, {M1_OFF + 64}
    v_add_u32 v{h[0]}, s30, v{h[0]}
    s_lshl_b32 s30, s24, 2
    s_add_u32 s30, s30, s26
    s_lshl_b32 s30, s30, 2
    v_and_b32 v{h[1]}, 3, v0
    v_bfe_u32 v{h[2]}, v0, 2, 3
    v_lshl_add_u32 v{h[1]}, v{h[2]}, 5, v{h[1]}
    v_add_u32 v{h[1]}, s30, v{h[1]}
    s_lshl_b32 s30, s25, 2
    s_add_u32 s30, s30, {M1_OFF + 128}
    v_lshl_add_u32 v{h[1]}, v{h[1]}, 8, s30
    s_cmp_eq_u32 s26, 0
    s_cselect_b32 s30, 48, 32
    v_cmp_gt_u32 vcc, 32, v0
    v_cndmask_b32 v{h[1]}, v{h[0]}, v{h[1]}, vcc
    v_cmp_gt_u32 vcc, s30, v0
    v_cndmask_b32 v{hS1}, v{h[3]}, v{h[1]}, vcc
    L_sD:
    ''')
    a.many(f'''
    s_mul_i32 s24, s{sT8}, {8*21846}
    s_lshr_b32 s24, s24, 16
    v_mul_u32_u24 v{h[0]}, 7282, v0
    v_lshrrev_b32 v{h[0]}, 16, v{h[0]}
    v_add_u32 v{h[0]}, s24, v{h[0]}
    v_mul_u32_u24 v{h[0]}, 96, v{h[0]}
    v_lshrrev_b32 v{h[0]}, 8, v{h[0]}
    v_sub_u32 v{h[1]}, s{sT8}, v{h[0]}
    s_mul_i32 s24, s24, 9
    v_add_u32 v{h[2]}, s24, v0
    v_lshlrev_b32 v{h[0]}, 1, v{h[2]}
    v_add_u32 v{h[0]}, v{h[0]}, v{h[1]}
    s_lshl_b32 s24, s{sHead}, 2
    s_add_u32 s24, s24, {M2_OFF}
    v_lshl_add_u32 v{h[0]}, v{h[0]}, 7, s24
    v_cmp_gt_u32 vcc, 2, v{h[1]}
    v_cndmask_b32 v{h[0]}, v{h[3]}, v{h[0]}, vcc
    v_cmp_gt_u32 vcc, 198, v{h[2]}
    v_cndmask_b32 v{h[0]}, v{h[3]}, v{h[0]}, vcc
    v_cmp_gt_u32 vcc, 36, v0
    v_cndmask_b32 v{hS2}, v{h[3]}, v{h[0]}, vcc
    s_mul_i32 s{sT0}, s{sR3}, 96
    s_add_u32 s{sT1}, s{sT0}, 95
    s_min_u32 s{sT1}, s{sT1}, 2047
    s_lshr_b32 s{sT0}, s{sT0}, 8
    s_lshr_b32 s{sT1}, s{sT1}, 8
    s_cmp_eq_u32 s{sT0}, s{sT1}
    s_cselect_b32 s{sT0}, 31, 63
    v_and_b32 v{h[0]}, s{sT0}, v0
    s_mul_i32 s{sT0}, s{sR3}, 9
    s_add_u32 s{sT0}, s{sT0}, s{sC3}
    s_lshl_b32 s{sT0}, s{sT0}, 8
    s_add_u32 s{sT0}, s{sT0}, {M2_OFF}
    v_lshl_add_u32 v{hP2}, v{h[0]}, 2, s{sT0}
    ''')
    a.many(f'''
    v_lshrrev_b32 v{h[0]}, 3, v0
    v_and_b32 v{h[1]}, 7, v0
    v_bfe_u32 v{h[2]}, v0, 4, 1
    v_lshlrev_b32 v{h[2]}, 1, v{h[2]}
    v_xor_b32 v{h[1]}, v{h[1]}, v{h[2]}
    v_lshlrev_b32 v{h[1]}, 4, v{h[1]}
    v_mul_u32_u24 v{hWh}, 1152, v{h[0]}
    v_add_u32 v{hWh}, v{hWh}, v{h[1]}
    v_lshrrev_b32 v{h[2]}, 1, v{h[0]}
    v_mul_u32_u24 v{h[2]}, 18, v{h[2]}
    v_and_b32 v{h[3]}, 1, v{h[0]}
    v_add3_u32 v{h[2]}, v{h[2]}, v{h[3]}, 16
    v_mul_u32_u24 v{hWt}, 1152, v{h[2]}
    v_add_u32 v{hWt}, v{hWt}, v{h[1]}
    s_mul_i32 s{sWh}, s{sWv}, {18*1152}
    s_mul_i32 s{sWt}, s{sWv}, {8*18*1152}
    s_lshl_b32 s{sM3}, s{sWv}, 11
    v_lshlrev_b32 v{hPt}, 4, v{hT}
    v_mov_b32 v{h[0]}, s{sOOB}
    v_cmp_gt_u32 vcc, 200, v{hT}
    v_cndmask_b32 v{hPt}, v{h[0]}, v{hPt}, vcc
    ''')
    a.many(f'''
    v_and_b32 v{h[0]}, 15, v{hT}
    v_lshrrev_b32 v{h[1]}, 4, v{hT}
    v_mul_u32_u24 v{h[0]}, 80, v{h[0]}
    v_lshl_add_u32 v{h[0]}, v{h[1]}, 3, v{h[0]}
    v_add_u32 v{h[1]}, {-160 & 0xffffffff}, v{hT}
    v_and_b32 v{h[2]}, 3, v{h[1]}
    v_lshrrev_b32 v{h[1]}, 2, v{h[1]}
    v_mul_u32_u24 v{h[2]}, 80, v{h[2]}
    v_lshl_add_u32 v{h[1]}, v{h[1]}, 3, v{h[2]}
    v_add_u32 v{h[1]}, 1280, v{h[1]}
    v_cmp_gt_u32 vcc, 160, v{hT}
    v_cndmask_b32 v{h[0]}, v{h[1]}, v{h[0]}, vcc
    v_mov_b32 v{h[1]}, 1920
    v_cmp_gt_u32 vcc, 200, v{hT}
    v_cndmask_b32 v{hKv}, v{h[1]}, v{h[0]}, vcc
    s_mul_i32 s{sT1}, s{sHead}, {64*KV_BLK}
    s_add_u32 s{sT1}, s{sT1}, {KA_OFF}
    ''')
    add64(a, sKA, 14, f's{sT1}'); srd(a, sKA, sKA, sKA+1, 64*KV_BLK)
    a.i(f's_mul_i32 s{sT1}, s{sHead}, {16*KVP_BLK}')
    a.i(f's_add_u32 s{sT1}, s{sT1}, {KVP_OFF}')
    add64(a, sKV, 14, f's{sT1}'); srd(a, sKV, sKV, sKV+1, 16*KVP_BLK)
    a.i(f's_add_u32 s{sGt}, s14, {G_OFF}'); a.i(f's_addc_u32 s{sGt+1}, s15, 0'); srd(a, sGt, sGt, sGt+1, 8192)
    a.i(f's_lshl_b32 s{sT0}, s{sC3}, 7')
    for side in range(2):
        add64(a, sWo[side], 4 + 2 * side, f's{sT0}')
        a.i(f's_sub_u32 s{sWo[side]+2}, {576*1152}, s{sT0}')
        a.i(f's_mul_i32 s{sWo[side]+2}, s{sWo[side]+2}, s{sHas}')
        a.i(f's_mov_b32 s{sWo[side]+3}, 0x20000')
    if PF_O:
        a.many(f'''
        s_add_u32 s{sPf}, s14, {O16_OFF}
        s_addc_u32 s{sPf+1}, s15, 0
        s_mov_b32 s{sPf+2}, {O16_SZ + O2_SZ}
        s_mov_b32 s{sPf+3}, 0x20000
        s_mul_i32 s{sT0}, s{sWv}, 48
        v_add_u32 v{h[0]}, s{sT0}, v0
        v_mul_u32_u24 v{h[1]}, 2731, v{h[0]}
        v_lshrrev_b32 v{h[1]}, 16, v{h[1]}
        v_mul_u32_u24 v{h[2]}, 24, v{h[1]}
        v_sub_u32 v{h[2]}, v{h[0]}, v{h[2]}
        v_lshlrev_b32 v{h[2]}, 7, v{h[2]}
        v_lshl_add_u32 v{h[1]}, v{h[1]}, 16, v{h[2]}
        s_lshl_b32 s{sT0}, s{sC3}, 19
        s_mul_i32 s{sT1}, s{sR3}, 3072
        s_add_u32 s{sT0}, s{sT0}, s{sT1}
        v_add_u32 v{h[1]}, s{sT0}, v{h[1]}
        v_mul_u32_u24 v{h[2]}, 21846, v{h[0]}
        v_lshrrev_b32 v{h[2]}, 16, v{h[2]}
        v_mul_u32_u24 v{h[3]}, 3, v{h[2]}
        v_sub_u32 v{h[3]}, v{h[0]}, v{h[3]}
        v_lshlrev_b32 v{h[3]}, 7, v{h[3]}
        v_lshl_add_u32 v{h[2]}, v{h[2]}, 13, v{h[3]}
        s_mul_i32 s{sT1}, s{sR3}, 384
        s_add_u32 s{sT1}, s{sT1}, {O16_SZ}
        v_add_u32 v{h[2]}, s{sT1}, v{h[2]}
        s_cmp_eq_u32 s{sC3}, 8
        s_cselect_b64 vcc, -1, 0
        v_cndmask_b32 v{h[1]}, v{h[1]}, v{h[2]}, vcc
        v_mov_b32 v{h[2]}, s{sOOB}
        v_cmp_gt_u32 vcc, 48, v0
        v_cndmask_b32 v{hF2}, v{h[2]}, v{h[1]}, vcc
        ''')
    wlist = [(st, k) for st in range(18) for k in range(2)]
    def dmaW(st, k):
        side, ls = divmod(st, 9)
        if ls < 8:
            a.i(f's_add_u32 s{sT2}, s{sWh}, {(4*ls*18 + 8*k)*1152}'); va = hWh
        else:
            a.i(f's_add_u32 s{sT2}, s{sWt}, {k*4*18*1152}'); va = hWt
        a.i(f's_add_u32 m0, s{sM3}, {wo_off(st) + k*1024}')
        tok = a.i(f'buffer_load_dwordx4 v{va}, s[{sWo[side]}:{sWo[side]+3}], s{sT2} offen lds')
        if WWIN and tok - WWIN >= 0: a.wait_vm(tok - WWIN)
        return tok
    a.many(f'''
    s_mov_b32 s{sCnt}, {SPIN}
    L_tg:
    s_waitcnt vmcnt(0)
    v_readfirstlane_b32 s{sTag}, v{hTag}
    s_cmp_lg_u32 s{sTag}, 0
    s_cbranch_scc1 L_tgk
    global_load_dword v{hTag}, v{hZ}, s[96:97] sc1
    s_sub_u32 s{sCnt}, s{sCnt}, 1
    s_cbranch_scc0 L_tg
    L_tgk:
    ''')
    a.many(f'''
    s_lshl_b32 s{sT1}, s{sT8}, 3
    s_sub_u32 s{sT1}, s{sT1}, 8
    s_mul_i32 s{sT1}, s{sT1}, {KV_BLK}
    s_lshl_b32 s47, s{sWv}, 10
    s_add_u32 s{sT1}, s{sT1}, s47
    s_cmp_eq_u32 s59, 0
    s_cbranch_scc1 L_nvb
    s_barrier
    L_nvb:
    ''')
    a.i('s_barrier')
    a.stamp(2)
    a.i(f's_cmp_lg_u32 s{sWv}, 1')
    a.i('s_cbranch_scc1 L_ns1')
    a.i(f'buffer_store_dword v{hTag}, v{hS1}, s[{sFl}:{sFl+3}], 0 offen sc1')
    a.label('L_ns1')
    a.i(f's_cmp_lg_u32 s{sWv}, 0')
    a.i('s_cbranch_scc1 L_nf1')
    poll(a, 'pollE', hA, hF)
    a.label('L_nf1')
    a.vm_done = a.vm_issued
    a.stamp(3)
    a.i('s_barrier')
    for k in range(10):
        a.i(f's_cmp_lt_i32 s{sT1}, 0')
        a.i(f's_cselect_b32 s{sT3}, s{sOOB}, s{sT1}')
        a.i(f'v_add_u32 v{h[k%5]}, s{sT3}, v{hL16}')
        a.i(f's_add_u32 m0, s47, {KB + 4096*k}')
        a.i(f'buffer_load_dwordx4 v{h[k%5]}, s[{sKA}:{sKA+3}], 0 offen {LD} lds')
        if k < 9: a.i(f's_add_u32 s{sT1}, s{sT1}, 4096')
    a.i(f'buffer_load_dword v{hF}, v{hLate}, s[{sFl}:{sFl+3}], 0 offen sc1')
    a.i('s_waitcnt vmcnt(0)')
    a.stamp(4)
    a.i('s_barrier')
    a.stamp(5)
    poll(a, 'pollL', hLate, hF, first_loaded=True)
    a.vm_done = a.vm_issued
    a.stamp(6)
    a.i(f's_mov_b32 s{sT1}, 0')
    for p in range(16):
        a.i(f'buffer_load_dwordx4 v[{PART+4*p}:{PART+4*p+3}], v{hPt}, s[{sKV}:{sKV+3}], s{sT1} offen {LD}')
        if p < 15: a.i(f's_add_u32 s{sT1}, s{sT1}, {KVP_BLK}')
    a.i(f's_lshl_b32 s{sT1}, s{sT8}, 10')
    a.i(f'v_lshlrev_b32 v{h[0]}, 2, v{hT}')
    ptok = a.i(f'buffer_load_dword v{h[1]}, v{h[0]}, s[{sGt}:{sGt+3}], s{sT1} offen {LD}')
    for _ in range(NFIRST): dmaW(*wlist.pop(0))
    a.wait_vm(ptok)
    a.stamp(7)
    a.i(f'ds_write_b32 v{h[0]}, v{h[1]} offset:{GL}')
    for lvl in (8, 4, 2, 1):
        for p in range(lvl):
            for hh in (0, 2):
                x = PART + 4 * p + hh; y = PART + 4 * (p + lvl) + hh
                a.i(f'v_pk_add_f32 v[{x}:{x+1}], v[{x}:{x+1}], v[{y}:{y+1}]')
    a.i(f'v_cvt_pk_bf16_f32 v{PART}, v{PART}, v{PART+1}')
    a.i(f'v_cvt_pk_bf16_f32 v{PART+1}, v{PART+2}, v{PART+3}')
    a.i(f'ds_write_b64 v{hKv}, v[{PART}:{PART+1}] offset:{KVL}')
    a.i('s_waitcnt lgkmcnt(0)')
    while len(wlist) > 36 - NSECOND: dmaW(*wlist.pop(0))
    a.stamp(8)
    a.i('s_barrier')
    a.stamp(9)
    while wlist[0][0] < 14: dmaW(*wlist.pop(0))
    a.stamp(10)
    a.i('s_barrier')
    while wlist: dmaW(*wlist.pop(0))
    a.i('s_barrier')
    a.stamp(11)
    a.i(f's_cmp_lg_u32 s{sWv}, 1')
    a.i('s_cbranch_scc1 L_ns2')
    a.i(f'buffer_store_dword v{hTag}, v{hS2}, s[{sFl}:{sFl+3}], 0 offen sc1')
    a.label('L_ns2')
    a.i(f's_cmp_eq_u32 s{sHas}, 0')
    a.i(f's_cbranch_scc1 L_hfin')
    a.i(f's_cmp_lg_u32 s{sWv}, 0')
    a.i('s_cbranch_scc1 L_nf3')
    poll(a, 'poll2', hP2, hF)
    a.label('L_nf3')
    a.i('s_waitcnt vmcnt(0)')
    a.stamp(12)
    a.i('s_barrier')
    if PF_O: a.i(f'buffer_load_dword v{h[0]}, v{hF2}, s[{sPf}:{sPf+3}], 0 offen {LD}')
    a.label('L_hfin')
    a.stamp_end(0, 14, 3)
    a.label('L_end')
    a.i('s_endpgm')
    return a.text() + kd(name, 256, 102), LDS_BYTES

if __name__ == '__main__':
    for x in range(2304): assert (x * 1821) >> 16 == x // 36
    for x in range(1280): assert (x * 3641) >> 16 == x // 18
    for x in range(208): assert (x * 2731) >> 16 == x // 24 and (x * 21846) >> 16 == x // 3
    txt, lds = gen()
    print(len(txt.split('\n')), 'lines')
```

```python
from asmlib import *
from layout import *

ST = ''
PRE1R = 6
PRE1V = 6
EPI_LAG = 2
EPI_PER = 7

def srd(a, d, lo, hi, nrec):
    if lo != d: a.i(f's_mov_b32 s{d}, s{lo}')
    if hi != d + 1: a.i(f's_mov_b32 s{d+1}, s{hi}')
    a.i(f's_mov_b32 s{d+2}, {nrec}')
    a.i(f's_mov_b32 s{d+3}, 0x20000')

def add64(a, d, lo, off):
    a.i(f's_add_u32 s{d}, s{lo}, {off}')
    a.i(f's_addc_u32 s{d+1}, s{lo+1}, 0')

def hedgehog(a, jobs, sC, T, sHi):
    E = [T + 26 * k for k in range(len(jobs))]
    M = [e + 18 for e in E]
    S = [e + 20 for e in E]
    U = [e + 22 for e in E]
    n = len(jobs)
    for k, (p, o) in enumerate(jobs):
        a.i(f'v_cndmask_b32 v{p+8}, v{p+8}, v{p+9}, s[{sHi}:{sHi+1}]')
    for k, (p, o) in enumerate(jobs):
        a.i(f'v_max3_f32 v{M[k]}, v{p}, v{p+1}, v{p+2}')
        a.i(f'v_max3_f32 v{M[k]+1}, -v{p}, -v{p+1}, -v{p+2}')
        for j in (3, 5, 7):
            a.i(f'v_max3_f32 v{M[k]}, v{M[k]}, v{p+j}, v{p+j+1}')
            a.i(f'v_max3_f32 v{M[k]+1}, v{M[k]+1}, -v{p+j}, -v{p+j+1}')
    for k in range(n): a.i(f'v_permlane32_swap_b32 v{M[k]}, v{M[k]+1}')
    for k in range(n): a.i(f'v_max_f32 v{M[k]}, v{M[k]}, v{M[k]+1}')
    for k in range(n): a.i(f'v_mul_f32 v{M[k]}, s{sC+1}, v{M[k]}')
    for k in range(n): a.i(f'v_mov_b32 v{M[k]+1}, v{M[k]}')
    for k in range(n): a.i(f'v_permlane32_swap_b32 v{M[k]}, v{M[k]+1}')
    for k, (p, o) in enumerate(jobs):
        for j in range(9):
            pj = p + j
            pe = pj & ~1
            sel = pj & 1
            a.i(f'v_pk_fma_f32 v[{E[k]+2*j}:{E[k]+2*j+1}], v[{pe}:{pe+1}], s[{sC}:{sC+1}], v[{M[k]}:{M[k]+1}] op_sel:[{sel},0,0] op_sel_hi:[{sel},1,1]')
        for j in range(18):
            a.i(f'v_exp_f32 v{E[k]+j}, v{E[k]+j}')
    for k in range(n):
        e = E[k]
        a.i(f'v_pk_add_f32 v[{S[k]}:{S[k]+1}], v[{e}:{e+1}], v[{e+2}:{e+3}]')
        a.i(f'v_pk_add_f32 v[{U[k]}:{U[k]+1}], v[{e+4}:{e+5}], v[{e+6}:{e+7}]')
        a.i(f'v_pk_add_f32 v[{U[k]+2}:{U[k]+3}], v[{e+8}:{e+9}], v[{e+10}:{e+11}]')
        a.i(f'v_pk_add_f32 v[{S[k]}:{S[k]+1}], v[{S[k]}:{S[k]+1}], v[{e+12}:{e+13}]')
        a.i(f'v_pk_add_f32 v[{U[k]}:{U[k]+1}], v[{U[k]}:{U[k]+1}], v[{e+14}:{e+15}]')
        a.i(f'v_pk_add_f32 v[{U[k]+2}:{U[k]+3}], v[{U[k]+2}:{U[k]+3}], v[{e+16}:{e+17}]')
        a.i(f'v_pk_add_f32 v[{S[k]}:{S[k]+1}], v[{S[k]}:{S[k]+1}], v[{U[k]}:{U[k]+1}]')
        a.i(f'v_pk_add_f32 v[{S[k]}:{S[k]+1}], v[{S[k]}:{S[k]+1}], v[{U[k]+2}:{U[k]+3}]')
    for k in range(n): a.i(f'v_permlane32_swap_b32 v{S[k]}, v{S[k]+1}')
    for k in range(n): a.i(f'v_add_f32 v{S[k]}, v{S[k]}, v{S[k]+1}')
    for k in range(n): a.i(f'v_rcp_f32 v{S[k]}, v{S[k]}')
    for k in range(n): a.i(f'v_mov_b32 v{S[k]+1}, v{S[k]}')
    for k in range(n): a.i(f'v_permlane32_swap_b32 v{S[k]}, v{S[k]+1}')
    for k, (p, o) in enumerate(jobs):
        for j in range(9):
            e = E[k] + 2 * j
            a.i(f'v_pk_mul_f32 v[{e}:{e+1}], v[{e}:{e+1}], v[{S[k]}:{S[k]+1}]')
        for j in range(9):
            e = E[k] + 2 * j
            a.i(f'v_cvt_pk_bf16_f32 v{o+j}, v{e}, v{e+1}')

def wphi_dma_addr(a, vD, vl, t0, t1, sOOBr):
    for k in range(3):
        a.i(f'v_add_u32 v{t0}, {64*k}, v{vl}')
        a.i(f'v_mul_u32_u24 v{t1}, 6554, v{t0}')
        a.i(f'v_lshrrev_b32 v{t1}, 16, v{t1}')
        a.i(f'v_mul_u32_u24 v{vD+k}, 10, v{t1}')
        a.i(f'v_sub_u32 v{vD+k}, v{t0}, v{vD+k}')
        a.i(f'v_cmp_eq_u32 vcc, 9, v{vD+k}')
        a.i(f'v_sub_u32 v{t0}, v{t0}, v{t1}')
        a.i(f'v_lshlrev_b32 v{t0}, 2, v{t0}')
        a.i(f'v_mov_b32 v{t1}, s{sOOBr}')
        a.i(f'v_cndmask_b32 v{vD+k}, v{t0}, v{t1}, vcc')
        if k == 2:
            a.i(f'v_cmp_lt_u32 vcc, 51, v{vl}')
            a.i(f'v_cndmask_b32 v{vD+k}, v{vD+k}, v{t1}, vcc')

def wphi_dma(a, vD, sP, sOff, sM, ldsoff):
    for k in range(3):
        a.i(f's_add_u32 m0, s{sM}, {ldsoff + 256*k}')
        tok = a.i(f'buffer_load_dword v{vD+k}, s[{sP}:{sP+3}], s{sOff} offen lds')
    return tok

def chunk_of_lane(a, dst, vl, t0, t1):
    a.i(f'v_bfe_u32 v{t0}, v{vl}, 1, 1')
    a.i(f'v_and_b32 v{t1}, 1, v{vl}')
    a.i(f'v_lshl_add_u32 v{dst}, v{t1}, 1, v{t0}')
    a.i(f'v_and_b32 v{t0}, 16, v{vl}')
    a.i(f'v_cmp_ne_u32 vcc, 0, v{t0}')
    a.i(f'v_cndmask_b32 v{dst}, v{dst}, 4, vcc')

def wphi_rd_addr(a, vA1, vA2, vl, t0, t1):
    chunk_of_lane(a, vA2, vl, t0, t1)
    a.i(f'v_bfe_u32 v{t0}, v{vl}, 2, 2')
    a.i(f'v_mul_u32_u24 v{t0}, 40, v{t0}')
    a.i(f'v_lshl_add_u32 v{vA2}, v{vA2}, 3, v{t0}')
    a.i(f'v_lshrrev_b32 v{t0}, 5, v{vl}')
    a.i(f'v_mul_u32_u24 v{t0}, 320, v{t0}')
    a.i(f'v_add_u32 v{vA1}, v{vA2}, v{t0}')

def wphi_read(a, F1, F2, vA1, vA2, off):
    a.i(f'ds_read_b64_tr_b16 v[{F1}:{F1+1}], v{vA1} offset:{off}')
    a.i(f'ds_read_b64_tr_b16 v[{F1+2}:{F1+3}], v{vA1} offset:{off+160}')
    return a.i(f'ds_read_b64_tr_b16 v[{F2}:{F2+1}], v{vA2} offset:{off+640}')

class Ring:
    def __init__(s, n, RS): s.n = n; s.XB = [16384 * i for i in range(n)]; s.WB0 = 16384 * n; s.WBUF = 64 * RS; s.end = s.WB0 + n * s.WBUF
RINGR = Ring(3, 576)
RINGV = Ring(4, 320)
sX, sW, sO, sP, sG = 16, 20, 24, 28, 32
sWave, sRow, sC_, sHH = 36, 37, 38, 39
sT0, sT1, sT2, sT3 = 40, 41, 42, 43
sSoW, sSoX, sMW, sMX = 44, 45, 46, 47
sK = 48
sOOB = 50

PF_CODE = 1
HCUT = 6
PF_L2 = 0
PF_AHEAD = 3
TAILST = 1
def code_prefetch(a, vl, vt, rng, sWv, sA=54):
    if not PF_CODE or not rng: return
    lab0, lab1, nbytes = rng
    here = f'L_pc_{len(a.lines)}_{lab0}'
    a.i(f's_getpc_b64 s[{sA}:{sA+1}]')
    a.label(here)
    if a.pc_after(lab0):
        a.i(f's_add_u32 s{sA}, s{sA}, {lab0}-{here}'); a.i(f's_addc_u32 s{sA+1}, s{sA+1}, 0')
    else:
        a.i(f's_sub_u32 s{sA}, s{sA}, {here}-{lab0}'); a.i(f's_subb_u32 s{sA+1}, s{sA+1}, 0')
    a.i(f's_lshr_b32 s{sA+2}, s2, 3')
    a.i(f's_lshl_b32 s{sA+2}, s{sA+2}, 2')
    a.i(f's_add_u32 s{sA+2}, s{sA+2}, s{sWv}')
    a.i(f's_lshl_b32 s{sA+2}, s{sA+2}, 7')
    a.i(f'v_lshl_add_u32 v{vt}, v{vl}, 14, s{sA+2}')
    a.i(f'v_min_u32 v{vt}, {lab1}-{lab0}-4, v{vt}')
    a.i(f'global_load_dword v{vt+1}, v{vt}, s[{sA}:{sA+1}]')

def helper_loop(a, G, nW, vWoff, vXoff, extra0=None, extra1=None, pf=None):
    WBUF, WB0, XB = G.WBUF, G.WB0, G.XB
    tok = {}
    def dma(st, k, n):
        b = st % G.n
        if k == 'W':
            a.i(f's_add_u32 m0, s{sMW}, {WB0 + b * WBUF + n * 4096}')
            tok[st, k, n] = a.i(f'buffer_load_dwordx4 v{vWoff+n}, s[{sW}:{sW+3}], s{sSoW} offen lds')
        else:
            a.i(f's_add_u32 m0, s{sMX}, {XB[b] + n * 1024}')
            tok[st, k, n] = a.i(f'buffer_load_dwordx4 v{vXoff+n}, s[{sX}:{sX+3}], s{sSoX} offen lds')
    def setup(st):
        a.i(f's_mov_b32 s{sSoW}, {st * 64 * 3456}')
        a.i(f's_mov_b32 s{sSoX}, {st * 128}')
    def stage(st, lo=0, hi=99):
        L = [('X', n) for n in range(4)] + [('W', n) for n in range(nW)]
        for k, n in L[lo:hi]: dma(st, k, n)
    need = [min(nW - 1, (nW * (s + 1) - 1) // 4) for s in range(4)]
    if pf:
        for k in range(PF_AHEAD): pf()
    setup(0)
    dma(0, 'W', 0)
    for n in range(4): dma(0, 'X', n)
    if extra0: extra0()
    for n in range(1, need[1] + 1): dma(0, 'W', n)
    first = max(tok[0, 'W', need[0]], a.x0tok if extra0 else 0)
    a.wait_vm(first); a.i('s_barrier')
    for n in range(need[1] + 1, nW): dma(0, 'W', n)
    a.wait_vm(tok[0, 'W', need[1]]); a.i('s_barrier')
    if pf: pf()
    setup(1); stage(1, 0, 4)
    a.wait_vm(tok[0, 'W', need[2]]); a.i('s_barrier')
    stage(1, 4, 6)
    a.wait_vm(tok[0, 'W', need[3]]); a.i('s_barrier')
    stage(1, 6)
    if extra1: extra1()
    npf = [PF_AHEAD + 1]
    def pf_more():
        if pf and npf[0] < 9: pf(); npf[0] += 1
    if G.n == 4:
        pf_more(); setup(2); stage(2, 0, (nW + 4) * HCUT // 8)
        for st in range(8):
            a.wait_vm(tok[st + 1, 'W', nW - 1]); a.i('s_barrier')
            if st == 0: stage(2, (nW + 4) * HCUT // 8)
            if st + 3 <= 8: pf_more(); setup(st + 3); stage(st + 3)
        return
    for st in range(8):
        allin = TAILST == 2 and a.tails and st == 6
        cut = 99 if allin else (nW + 4) * HCUT // 8
        if st + 2 <= 8: pf_more(); setup(st + 2); stage(st + 2, 0, cut)
        a.wait_vm(tok[8 if allin else st + 1, 'W', nW - 1])
        if not (TAILST == 2 and a.tails and st == 7): a.i('s_barrier')
        if st + 2 <= 8: stage(st + 2, cut)
        if st + 3 <= 8: a.i('s_barrier')

def mainloop(a, G, NT, gate, RS, vWb, vXr, vG, ACC, POOL, XF, D=7, P=8, tails=None):
    NM = NT + (1 if gate else 0)
    t0 = 9 - TAILST if tails else 9
    order = [(4 * st + s, m) for st in range(t0) for s in range(4) for m in range(NM)]
    if tails: order += [(s, m) for m in range(NM) for s in range(4 * t0, 36)]
    total = len(order)
    def xslot(step):
        if not tails or step < 4 * t0: return step & 1
        return 2 + step - 4 * t0
    tokW = {}; tokX = {}
    def issue_reads(q):
        if q >= total: return
        step, m = order[q]
        st, s = divmod(step, 4)
        b = st % G.n; XB = G.XB
        if st == 0 and m == 0: a.i('s_barrier')
        if step not in tokX:
            xf = XF + 4 * xslot(step)
            tokX[step] = a.i(f'ds_read_b128 v[{xf}:{xf+3}], v{vXr+s} offset:{XB[b]}')
        f = POOL + 4 * (q % P)
        if m < NT:
            for rd in range(2):
                tokW[q] = a.i(f'ds_read_b64_tr_b16 v[{f+2*rd}:{f+2*rd+1}], v{vWb+b} offset:{(16*s+4*rd)*RS + 32*m}')
        else:
            tokW[q] = a.i(f'ds_read_b128 v[{f}:{f+3}], v{vG} offset:{128*st + 32*s}')
    a.stamp(1)
    for q in range(D):
        issue_reads(q)
        if q == 0: a.stamp(2)
    b1 = 4 * NM - D
    def body(q, queue=None):
        step, m = order[q]
        st = min(q // (4 * NM), t0)
        ql = q - st * 4 * NM
        a.wait_lg(max(tokW[q], tokX[step]))
        f = POOL + 4 * (q % P)
        xf = XF + 4 * xslot(step)
        acc = ACC + 16 * m
        c = '0' if step == 0 else f'v[{acc}:{acc+15}]'
        a.i(f'v_mfma_f32_32x32x16_bf16 v[{acc}:{acc+15}], v[{f}:{f+3}], v[{xf}:{xf+3}], {c}')
        if ql == b1 and st < t0 and st < 8: a.i('s_barrier')
        issue_reads(q + D)
        if G.n == 3 and ql == 4 * NM - 1 and st + 3 <= 8: a.i('s_barrier')
        if queue:
            n = 0
            while queue and queue[0][0] <= ql and n < EPI_PER:
                a.i(queue.pop(0)[1]); n += 1
        if st < t0 and ql == 4 * NM - 1 and (tails or st == 8): a.stamp(3 + st if tails else 3)
    for q in range(4 * t0 * NM): body(q)
    if tails:
        for lab, br, qf in tails:
            if br: a.many(br)
        snap = a.snapshot(); sW_ = dict(tokW); sX_ = dict(tokX)
        for k, (lab, br, qf) in enumerate(tails):
            a.restore(snap); tokW.clear(); tokW.update(sW_); tokX.clear(); tokX.update(sX_)
            if lab: a.label(lab)
            queue = qf()
            for q in range(4 * t0 * NM, total): body(q, queue)
            a.stamp(11)
            for _, ins in queue: a.i(ins)
            a.stamp(12)
            a.finish('R')

def gen_k1(name='k1_kernel', pf=(), F=None):
    a = Asm()
    def fin(kind):
        if F: return F.finish(a, kind)
        if kind in 'RV': a.stamp_end(0, 14, sWave)
        a.i('s_endpgm')
    a.finish = fin
    if F: a.smap = F.smap1
    a.raw(f'.globl {name}\n.p2align 8\n.type {name},@function\n{name}:')
    a.many(f'''
    s_cmp_ge_u32 s2, 256
    s_cbranch_scc1 L_{name}_end''')
    a.stamp_begin()
    a.many(f'''
    s_load_dwordx4 s[4:7], s[0:1], 0
    s_load_dwordx4 s[8:11], s[0:1], 32
    s_load_dwordx2 s[12:13], s[0:1], 56
    s_load_dwordx2 s[14:15], s[0:1], 80
    s_load_dwordx2 s[96:97], s[0:1], 72
    v_lshrrev_b32 v1, 6, v0
    v_and_b32 v0, 63, v0
    s_and_b32 s{sT0}, s2, 7
    v_readfirstlane_b32 s{sWave}, v1
    s_lshr_b32 s{sT1}, s2, 3
    s_and_b32 s{sHH}, s{sT0}, 1
    s_lshr_b32 s{sT0}, s{sT0}, 1
    s_lshl_b32 s{sT0}, s{sT0}, 2
    s_and_b32 s{sRow}, s{sT1}, 3
    s_add_u32 s{sRow}, s{sRow}, s{sT0}
    s_bfe_u32 s{sC_}, s{sT1}, 0x20002
    s_mov_b32 s{sOOB}, {OOB}
    s_mov_b32 s3, s{sWave}
    s_cmp_ge_u32 s{sWave}, 4
    s_cbranch_scc1 L_{name}_H
    s_lshl_b32 s{sMX}, s{sWave}, 12
    ''')
    snapE = a.snapshot()
    R = RegAlloc(1, 256)
    vXr = R.get(4); vWb = R.get(4); vG = R.get(1)
    t = [R.get(1) for _ in range(6)]
    a.many(f'''
    v_and_b32 v{t[0]}, 31, v0
    v_lshrrev_b32 v{t[1]}, 5, v0
    v_bfe_u32 v{t[2]}, v0, 1, 3
    v_xor_b32 v{t[2]}, v{t[2]}, v{t[1]}
    v_lshlrev_b32 v{t[0]}, 7, v{t[0]}
    v_add_u32 v{t[0]}, s{sMX}, v{t[0]}
    ''')
    for s in range(4):
        if s == 0: a.i(f'v_lshl_add_u32 v{vXr}, v{t[2]}, 4, v{t[0]}')
        else:
            a.i(f'v_xor_b32 v{t[3]}, {2*s}, v{t[2]}')
            a.i(f'v_lshl_add_u32 v{vXr+s}, v{t[3]}, 4, v{t[0]}')
    vKrow, vH, vA8 = t[3], t[4], t[5]
    a.many(f'''
    v_bfe_u32 v{vKrow}, v0, 2, 2
    v_lshl_add_u32 v{vKrow}, v{t[1]}, 3, v{vKrow}
    v_and_b32 v{vH}, 1, v0
    v_bfe_u32 v{vA8}, v0, 4, 1
    v_bfe_u32 v{t[0]}, v0, 1, 1
    v_lshl_add_u32 v{vA8}, v{vA8}, 1, v{t[0]}
    v_lshlrev_b32 v{vA8}, 3, v{vA8}
    v_lshlrev_b32 v{vG}, 4, v{t[1]}
    s_cmp_ge_u32 s{sT1}, 16
    s_cbranch_scc1 L_{name}_V
    ''')
    snap0 = a.snapshot()
    def wb(G, RS, H):
        a.many(f'''
        v_mul_u32_u24 v{t[0]}, {RS}, v{vKrow}
        v_mul_u32_u24 v{t[1]}, {H}, v{vH}
        v_add3_u32 v{t[0]}, v{t[0]}, v{t[1]}, v{vA8}
        ''')
        for b in range(G.n): a.i(f'v_add_u32 v{vWb+b}, {G.WB0 + b*G.WBUF}, v{t[0]}')
    mark = R.mark()
    RS = 576
    wb(RINGR, RS, 288)
    XF = R.get(8 + 16 * TAILST, 4); POOL = R.get(32, 4); ACC = R.get(144, 4)
    vo = [R.get(1) for _ in range(3)]
    a.i('s_waitcnt lgkmcnt(0)')
    if F: F.publish_tag(a, t)
    a.many(f'''
    s_mov_b32 s{sT3}, {KV_BLK}
    s_mov_b32 s{sO+2}, {KV_SZ}
    s_mov_b32 s{sT2}, {KA_OFF}
    s_mov_b32 s{sK}, {f2u(QSCALE)}
    s_cmp_eq_u32 s{sC_}, 2
    s_cselect_b32 s{sT2}, {VA_OFF}, s{sT2}
    s_cselect_b32 s{sO+2}, {KV_SZ - QK_BLK}, s{sO+2}
    s_cmp_eq_u32 s{sC_}, 0
    s_cselect_b32 s{sT2}, {QA_OFF}, s{sT2}
    s_cselect_b32 s{sT3}, {QK_BLK}, s{sT3}
    s_cselect_b32 s{sO+2}, {QK_SZ}, s{sO+2}
    s_cmp_eq_u32 s{sC_}, 3
    s_cselect_b32 s{sT2}, {QB_OFF}, s{sT2}
    s_cselect_b32 s{sT3}, {QK_BLK}, s{sT3}
    s_cselect_b32 s{sO+2}, {QK_SZ}, s{sO+2}
    s_add_u32 s{sO}, s14, s{sT2}
    s_addc_u32 s{sO+1}, s15, 0
    s_mov_b32 s{sO+3}, 0x20000
    s_lshl_b32 s{sT0}, s{sHH}, 10
    s_lshl_b32 s{sT1}, s{sRow}, 2
    s_add_u32 s{sT0}, s{sT0}, s{sT1}
    s_add_u32 s{sT0}, s{sT0}, s{sWave}
    s_mul_i32 s51, s{sT0}, s{sT3}
    s_lshl_b32 s52, s{sT3}, 6
    s_lshl_b32 s{sT3}, s{sT3}, 9
    v_lshrrev_b32 v{t[0]}, 5, v0
    v_mul_lo_u32 v{t[0]}, v{t[0]}, s{sT3}
    v_and_b32 v{t[1]}, 31, v0
    v_bfe_u32 v{t[2]}, v0, 2, 1
    v_bfe_u32 v{t[3]}, v0, 3, 1
    v_and_b32 v{t[4]}, 0x13, v0
    v_lshl_add_u32 v{t[4]}, v{t[2]}, 3, v{t[4]}
    v_lshl_add_u32 v{t[4]}, v{t[3]}, 2, v{t[4]}
    s_cmp_eq_u32 s{sC_}, 1
    s_cselect_b64 vcc, -1, 0
    v_cndmask_b32 v{t[4]}, v{t[1]}, v{t[4]}, vcc
    v_lshl_add_u32 v{vo[0]}, v{t[4]}, 4, v{t[0]}
    v_add_u32 v{vo[1]}, 512, v{vo[0]}
    v_lshl_add_u32 v{vo[2]}, v{t[4]}, 2, v{t[0]}
    v_add_u32 v{vo[2]}, 1024, v{vo[2]}
    s_cmp_lg_u32 s{sC_}, 2
    s_cbranch_scc1 L_{name}_nv
    v_xor_b32 v{vo[1]}, 64, v{vo[1]}
    v_xor_b32 v{t[3]}, 1, v{t[3]}
    v_bfe_u32 v{t[2]}, v0, 4, 1
    v_and_b32 v{t[4]}, 7, v0
    v_lshl_add_u32 v{t[4]}, v{t[2]}, 3, v{t[4]}
    v_lshl_add_u32 v{t[4]}, v{t[3]}, 4, v{t[4]}
    v_lshl_add_u32 v{vo[2]}, v{t[4]}, 3, v{t[0]}
    v_add_u32 v{vo[2]}, 1024, v{vo[2]}
    L_{name}_nv:
    ''')
    def epi(isv, scale=False):
        def f():
            Q = []
            for u in range(8):
                b = ACC + 18 * u
                e = 4 * TAILST * ((18 * u + 17) // 16 + 1) - 1 + EPI_LAG
                for j in range(9):
                    if scale:
                        Q.append((e, f'v_mul_f32 v{b+2*j}, s{sK}, v{b+2*j}'))
                        Q.append((e, f'v_mul_f32 v{b+2*j+1}, s{sK}, v{b+2*j+1}'))
                for j in range(9): Q.append((e, f'v_cvt_pk_bf16_f32 v{b+j}, v{b+2*j}, v{b+2*j+1}'))
                if isv: Q.append((e, f'v_mov_b32 v{b+9}, 0x3f80'))
                Q.append((e, f'buffer_store_dwordx4 v[{b}:{b+3}], v{vo[0]}, s[{sO}:{sO+3}], s51 offen {ST}'))
                Q.append((e, f'buffer_store_dwordx4 v[{b+4}:{b+7}], v{vo[1]}, s[{sO}:{sO+3}], s51 offen {ST}'))
                if isv: Q.append((e, f'buffer_store_dwordx2 v[{b+8}:{b+9}], v{vo[2]}, s[{sO}:{sO+3}], s51 offen {ST}'))
                else: Q.append((e, f'buffer_store_dword v{b+8}, v{vo[2]}, s[{sO}:{sO+3}], s51 offen {ST}'))
                if u < 7: Q.append((e, f's_add_u32 s51, s51, s52'))
            return Q
        return f
    mainloop(a, RINGR, 9, False, RS, vWb, vXr, vG, ACC, POOL, XF,
             tails=[(None, f's_cmp_eq_u32 s{sC_}, 2\ns_cbranch_scc1 L_{name}_stv', epi(0)),
                    (f'L_{name}_stv', f's_cmp_eq_u32 s{sC_}, 0\ns_cbranch_scc1 L_{name}_stq', epi(1)),
                    (f'L_{name}_stq', None, epi(0, True))])
    hiR = R.hi
    a.label(f'L_{name}_V')
    a.restore(snap0)
    R.release(mark)
    RS = 320
    GOFS = RINGV.end
    WPH = GOFS + 4096
    wb(RINGV, RS, 160)
    a.many(f'''
    s_lshl_b32 s{sT0}, s{sHH}, 2
    s_add_u32 s{sC_}, s{sC_}, s{sT0}
    v_add_u32 v{vG}, {GOFS}, v{vG}
    ''')
    XF = R.get(8, 4); POOL = R.get(32, 4); ACC = R.get(96, 4)
    T = R.get(52, 4); F1 = T; F2 = T + 16
    vP = R.get(1); vP2 = R.get(1)
    wphi_rd_addr(a, vP, vP2, 0, t[0], t[1])
    a.i(f'v_add_u32 v{vP}, {WPH}, v{vP}')
    a.i(f'v_add_u32 v{vP2}, {WPH}, v{vP2}')
    a.i('s_mov_b32 s52, 0'); a.i('s_mov_b32 s53, -1')
    a.i('s_waitcnt lgkmcnt(0)')
    mainloop(a, RINGV, 5, True, RS, vWb, vXr, vG, ACC, POOL, XF)
    a.i(f's_mov_b32 s{sK}, {f2u(LOG2E)}')
    a.i(f's_mov_b32 s{sK+1}, {f2u(-LOG2E)}')
    for H in range(4): ptok = wphi_read(a, F1+4*H, F2+4*H, vP, vP2, 768*H)
    a.i('s_barrier')
    a.stamp(4)
    for H in range(4):
        b = ACC + 18 * H
        for j in range(9): a.i(f'v_cvt_pk_bf16_f32 v{b+j}, v{b+2*j}, v{b+2*j+1}')
        a.i(f'v_mov_b32 v{b+9}, 0x3f80')
        a.i(f'v_mov_b32 v{b+10}, 0')
        a.i(f'v_mov_b32 v{b+11}, 0')
    for H in range(4):
        b = ACC + 18 * H
        for j in range(4): a.i(f'v_permlane32_swap_b32 v{b+j}, v{b+4+j}')
    a.wait_lg(ptok)
    for H in range(4):
        a.i(f'v_cndmask_b32 v{F2+4*H}, v{F2+4*H}, 0, s[52:53]')
        for z in range(1, 4): a.i(f'v_mov_b32 v{F2+4*H+z}, 0')
    a.stamp(5)
    gl = t[5]
    a.i(f'v_mul_f32 v{gl}, s{sK+1}, v{ACC+80}')
    Dr = [XF, XF + 16, ACC + 80, R.get(16, 4)]
    for H in range(4):
        b = ACC + 18 * H
        a.i(f'v_mfma_f32_32x32x16_bf16 v[{Dr[H]}:{Dr[H]+15}], v[{F1+4*H}:{F1+4*H+3}], v[{b}:{b+3}], 0')
    for H in range(4):
        b = ACC + 18 * H
        a.i(f'v_mfma_f32_32x32x16_bf16 v[{Dr[H]}:{Dr[H]+15}], v[{F2+4*H}:{F2+4*H+3}], v[{b+8}:{b+11}], v[{Dr[H]}:{Dr[H]+15}]')
    vL = R.get(1); vLV = R.get(1)
    a.many(f'''
    v_exp_f32 v{gl}, v{gl}
    s_lshl_b32 s{sT0}, s{sRow}, 7
    s_lshl_b32 s{sT1}, s{sWave}, 5
    s_add_u32 s{sT0}, s{sT0}, s{sT1}
    s_lshl_b32 s{sT0}, s{sT0}, 2
    s_add_u32 s{sO}, s14, {G_OFF}
    s_addc_u32 s{sO+1}, s15, 0
    s_mov_b32 s{sO+2}, 8192
    s_mov_b32 s{sO+3}, 0x20000
    v_add_f32 v{gl}, 1.0, v{gl}
    v_rcp_f32 v{gl}, v{gl}
    v_and_b32 v{t[0]}, 31, v0
    v_lshlrev_b32 v{t[1]}, 2, v{t[0]}
    buffer_store_dword v{gl}, v{t[1]}, s[{sO}:{sO+3}], s{sT0} offen {ST}
    s_lshl_b32 s{sT1}, s{sWave}, 5
    v_add_u32 v{t[0]}, s{sT1}, v{t[0]}
    v_mul_u32_u24 v{t[0]}, 120, v{t[0]}
    v_lshrrev_b32 v{t[1]}, 5, v0
    v_mad_u32_u24 v{vL}, v{t[1]}, 40, v{t[0]}
    v_lshl_add_u32 v{vLV}, v{t[1]}, 4, v{t[0]}
    ''')
    for H in range(4):
        b = ACC + 18 * H
        o = H * 128 * 120 + 80
        a.i(f'ds_write_b64 v{vLV}, v[{b+4}:{b+5}] offset:{o}')
        a.i(f'ds_write_b64 v{vLV}, v[{b+6}:{b+7}] offset:{o+8}')
    a.i('s_mov_b64 exec, 0xffffffff00000000' if False else 's_mov_b32 exec_lo, 0')
    for H in range(4):
        b = ACC + 18 * H
        a.i(f'ds_write_b64 v{vLV}, v[{b+8}:{b+9}] offset:{H*128*120 + 80 + 16}')
    a.i('s_mov_b32 exec_lo, -1')
    a.stamp(6)
    for pair in range(2):
        jobs = [(Dr[2*pair+k], ACC + 18 * (2*pair+k)) for k in range(2)]
        hedgehog(a, jobs, sK, T, 52)
        for k in range(2):
            H = 2 * pair + k
            o = ACC + 18 * H
            for j in range(5):
                a.i(f'ds_write_b64 v{vL}, v[{o+2*j}:{o+2*j+1}] offset:{H*128*120 + 8*j}')
        a.stamp(7 + pair)
    a.many(f'''
    v_bfe_u32 v{t[0]}, v0, 4, 1
    v_bfe_u32 v{t[1]}, v0, 2, 2
    v_lshl_add_u32 v{t[0]}, v{t[0]}, 2, v{t[1]}
    v_lshrrev_b32 v{t[1]}, 5, v0
    v_lshlrev_b32 v{t[1]}, 1, v{t[1]}
    v_lshl_add_u32 v{t[0]}, v{t[0]}, 2, v{t[1]}
    s_lshl_b32 s{sT0}, s{sWave}, 7
    v_add_u32 v{t[0]}, s{sT0}, v{t[0]}
    v_mul_u32_u24 v{t[0]}, 120, v{t[0]}
    v_and_b32 v{t[1]}, 3, v0
    v_lshl_add_u32 v{t[0]}, v{t[1]}, 3, v{t[0]}
    s_lshl_b32 s{sT0}, s{sC_}, 2
    s_add_u32 s{sT0}, s{sT0}, s{sWave}
    s_lshl_b32 s{sT0}, s{sT0}, 4
    s_add_u32 s{sT0}, s{sT0}, s{sRow}
    s_mul_i32 s{sT0}, s{sT0}, {KVP_BLK}
    s_add_u32 s{sT0}, s{sT0}, {KVP_OFF}
    s_add_u32 s{sO}, s14, s{sT0}
    s_addc_u32 s{sO+1}, s15, 0
    s_mov_b32 s{sO+2}, {KVP_BLK}
    v_and_b32 v{t[1]}, 15, v0
    v_mul_u32_u24 v{t[1]}, 160, v{t[1]}
    v_lshrrev_b32 v{t[2]}, 4, v0
    v_lshl_add_u32 v{t[1]}, v{t[2]}, 4, v{t[1]}
    v_mov_b32 v{t[2]}, s{sOOB}
    v_cmp_gt_u32 vcc, 32, v0
    v_cndmask_b32 v{t[2]}, v{t[2]}, v{t[1]}, vcc
    s_waitcnt lgkmcnt(0)
    s_barrier
    ''')
    a.stamp(9)
    FR = T
    KV = XF
    toks = {}
    def rd_step(ts):
        fb = FR + 20 * (ts & 1)
        for k in range(5):
            co = 32 * k if k < 3 else 80 + 32 * (k - 3)
            for rd in range(2):
                toks[ts] = a.i(f'ds_read_b64_tr_b16 v[{fb+4*k+2*rd}:{fb+4*k+2*rd+1}], v{t[0]} offset:{(32*ts+rd)*120 + co}')
    rd_step(0); rd_step(1)
    for ts in range(4):
        a.wait_lg(toks[ts])
        fb = FR + 20 * (ts & 1)
        for ft in range(3):
            for dt in range(2):
                d = KV + 4 * (2 * ft + dt)
                c = '0' if ts == 0 else f'v[{d}:{d+3}]'
                a.i(f'v_mfma_f32_16x16x32_bf16 v[{d}:{d+3}], v[{fb+4*ft}:{fb+4*ft+3}], v[{fb+12+4*dt}:{fb+15+4*dt}], {c}')
        if ts + 2 < 4: rd_step(ts + 2)
    a.stamp(10)
    for ft in range(3):
        for dt in range(2):
            d = KV + 4 * (2 * ft + dt)
            va = t[2] if ft == 2 else t[1]
            a.i(f'buffer_store_dwordx4 v[{d}:{d+3}], v{va}, s[{sO}:{sO+3}], 0 offen offset:{dt*2560 + ft*64} {ST}')
    a.stamp(12)
    a.finish('V')
    a.label(f'L_{name}_H')
    a.restore(snapE)
    vXoff, vWoff, h = 1, 5, [14 + k for k in range(8)]
    a.many(f'''
    s_and_b32 s{sWave}, s{sWave}, 3''')
    code_prefetch(a, 0, h[4], pf, sWave)
    a.many(f'''
    s_lshl_b32 s{sMX}, s{sWave}, 12
    s_lshl_b32 s{sMW}, s{sWave}, 10
    v_lshrrev_b32 v{h[0]}, 3, v0
    v_lshrrev_b32 v{h[1]}, 4, v0
    v_and_b32 v{h[2]}, 7, v0
    s_lshl_b32 s{sT2}, s{sWave}, 5
    v_add_u32 v{h[0]}, s{sT2}, v{h[0]}
    v_mul_u32_u24 v{h[0]}, 1152, v{h[0]}
    v_xor_b32 v{h[3]}, v{h[2]}, v{h[1]}
    v_lshl_add_u32 v{vXoff}, v{h[3]}, 4, v{h[0]}
    v_xor_b32 v{h[3]}, 4, v{h[3]}
    v_lshl_add_u32 v{vXoff+1}, v{h[3]}, 4, v{h[0]}
    v_add_u32 v{vXoff+1}, {8*1152}, v{vXoff+1}
    v_add_u32 v{vXoff+2}, {16*1152}, v{vXoff}
    v_add_u32 v{vXoff+3}, {16*1152}, v{vXoff+1}
    s_lshl_b32 s{sT2}, s{sWave}, 6
    v_add_u32 v{h[0]}, s{sT2}, v0
    s_mov_b32 s{sT3}, 3456
    s_cmp_ge_u32 s{sT1}, 16
    s_cbranch_scc1 L_{name}_HV
    ''')
    snapH = a.snapshot()
    def xsrd():
        a.i('s_waitcnt lgkmcnt(0)')
        a.i(f's_mul_i32 s{sT2}, s{sRow}, {128*1152}')
        add64(a, sX, 4, f's{sT2}')
        srd(a, sX, sX, sX+1, 128*1152)
        if not PF_L2: return
        a.many(f'''
        s_lshr_b32 s{sT0}, s2, 3
        s_lshl_b32 s{sT0}, s{sT0}, 2
        s_add_u32 s{sT0}, s{sT0}, s{sWave}
        s_lshr_b32 s{sT2}, s{sT0}, 1
        s_mul_i32 s{sT2}, s{sT2}, 3456
        s_mul_i32 s{sT3}, s{sHH}, 512
        s_add_u32 s{sT2}, s{sT2}, s{sT3}
        s_bitcmp1_b32 s{sT0}, 0
        s_cselect_b32 s56, s8, s6
        s_cselect_b32 s57, s9, s7
        s_add_u32 s56, s56, s{sT2}
        s_addc_u32 s57, s57, 0
        s_and_b32 s{sT2}, s{sRow}, 12
        s_lshl_b32 s{sT2}, s{sT2}, 5
        s_add_u32 s{sT2}, s{sT2}, s{sT0}
        s_mul_i32 s{sT2}, s{sT2}, {4*1152}
        s_add_u32 s58, s4, s{sT2}
        s_addc_u32 s59, s5, 0
        v_min_u32 v{h[1]}, 18, v0
        v_mul_u32_u24 v{h[2]}, 13108, v{h[1]}
        v_lshrrev_b32 v{h[2]}, 16, v{h[2]}
        v_mul_u32_u24 v{h[3]}, {1152-640}, v{h[2]}
        v_lshl_add_u32 v{h[3]}, v{h[1]}, 7, v{h[3]}
        v_subrev_u32 v{h[1]}, 15, v{h[1]}
        v_mul_u32_u24 v{h[1]}, 1152, v{h[1]}
        v_cmp_gt_u32 vcc, 15, v0
        v_cndmask_b32 v{h[1]}, v{h[1]}, v{h[3]}, vcc
        v_mov_b32 v{h[2]}, s58
        v_mov_b32 v{h[3]}, s56
        v_cndmask_b32 v{vPF}, v{h[2]}, v{h[3]}, vcc
        v_mov_b32 v{h[2]}, s59
        v_mov_b32 v{h[3]}, s57
        v_cndmask_b32 v{vPF+1}, v{h[2]}, v{h[3]}, vcc
        v_mov_b32 v{h[2]}, 128
        v_mov_b32 v{h[3]}, {64*3456}
        v_cndmask_b32 v{vPF+2}, v{h[2]}, v{h[3]}, vcc
        v_add_co_u32 v{vPF}, vcc, v{vPF}, v{h[1]}
        v_addc_co_u32 v{vPF+1}, vcc, 0, v{vPF+1}, vcc
        ''')
    vPF = 24
    def pfn_():
        a.i(f'global_load_dword v{vPF+3}, v[{vPF}:{vPF+1}], off')
        a.i(f'v_add_co_u32 v{vPF}, vcc, v{vPF}, v{vPF+2}')
        a.i(f'v_addc_co_u32 v{vPF+1}, vcc, 0, v{vPF+1}, vcc')
    pfn = pfn_ if PF_L2 else None
    for n in range(9):
        a.many(f'''
        v_add_u32 v{h[1]}, {256*n}, v{h[0]}
        v_mul_u32_u24 v{h[2]}, 1821, v{h[1]}
        v_lshrrev_b32 v{h[2]}, 16, v{h[2]}
        v_mul_u32_u24 v{vWoff+n}, 36, v{h[2]}
        v_sub_u32 v{h[1]}, v{h[1]}, v{vWoff+n}
        v_lshlrev_b32 v{h[1]}, 4, v{h[1]}
        v_mad_u32_u24 v{vWoff+n}, v{h[2]}, s{sT3}, v{h[1]}
        ''')
    xsrd()
    a.many(f'''
    s_mul_i32 s{sT2}, s{sC_}, 1152
    s_cmp_eq_u32 s{sC_}, 3
    s_cselect_b32 s{sT2}, 0, s{sT2}
    s_cselect_b32 s{sW}, s8, s6
    s_cselect_b32 s{sW+1}, s9, s7
    s_mul_i32 s{sT3}, s{sHH}, 576
    s_add_u32 s{sT2}, s{sT2}, s{sT3}
    s_add_u32 s{sW}, s{sW}, s{sT2}
    s_addc_u32 s{sW+1}, s{sW+1}, 0
    s_sub_u32 s{sW+2}, {576*3456}, s{sT2}
    s_mov_b32 s{sW+3}, 0x20000
    ''')
    a.tails = True
    helper_loop(a, RINGR, 9, vWoff, vXoff, None, None, pfn)
    a.finish('hR')
    a.label(f'L_{name}_HV')
    a.restore(snapH)
    a.many(f'''
    s_lshl_b32 s{sT0}, s{sHH}, 2
    s_add_u32 s{sC_}, s{sC_}, s{sT0}
    v_mov_b32 v{h[7]}, s{sOOB}
    ''')
    for n in range(5):
        a.many(f'''
        v_add_u32 v{h[1]}, {256*n}, v{h[0]}
        v_mul_u32_u24 v{h[2]}, 3277, v{h[1]}
        v_lshrrev_b32 v{h[2]}, 16, v{h[2]}
        v_mul_u32_u24 v{h[3]}, 20, v{h[2]}
        v_sub_u32 v{h[1]}, v{h[1]}, v{h[3]}
        v_mul_u32_u24 v{h[2]}, s{sT3}, v{h[2]}
        v_lshl_add_u32 v{h[2]}, v{h[1]}, 4, v{h[2]}
        v_add_u32 v{h[3]}, {1152-160}, v{h[2]}
        v_cmp_lt_u32 vcc, 9, v{h[1]}
        v_cndmask_b32 v{h[2]}, v{h[2]}, v{h[3]}, vcc
        v_cmp_eq_u32 vcc, 9, v{h[1]}
        v_cndmask_b32 v{h[2]}, v{h[2]}, v{h[7]}, vcc
        v_cmp_eq_u32 vcc, 19, v{h[1]}
        v_cndmask_b32 v{vWoff+n}, v{h[2]}, v{h[7]}, vcc
        ''')
    xsrd()
    a.many(f'''
    s_mul_i32 s{sT2}, s{sC_}, 144
    s_add_u32 s{sT2}, s{sT2}, 1152
    s_add_u32 s{sW}, s8, s{sT2}
    s_addc_u32 s{sW+1}, s9, 0
    s_sub_u32 s{sW+2}, {576*3456}, s{sT2}
    s_mov_b32 s{sW+3}, 0x20000
    ''')
    srd(a, sG, 12, 13, 1152)
    srd(a, sP, 10, 11, 32*648)
    def ex0():
        a.i(f'v_lshlrev_b32 v{h[0]}, 4, v0')
        a.i(f's_add_u32 m0, s{sMW}, {GOFS}')
        a.x0tok = a.i(f'buffer_load_dwordx4 v{h[0]}, s[{sG}:{sG+3}], s{sMW} offen lds')
    def ex1():
        wphi_dma_addr(a, 10, 0, h[0], h[1], sOOB)
        a.i(f's_lshl_b32 s{sT0}, s{sC_}, 2')
        a.i(f's_add_u32 s{sT0}, s{sT0}, s{sWave}')
        a.i(f's_mul_i32 s{sT0}, s{sT0}, 648')
        a.i(f's_mul_i32 s{sT1}, s{sWave}, 768')
        wphi_dma(a, 10, sP, sT0, sT1, WPH)
    a.tails = False
    helper_loop(a, RINGV, 5, vWoff, vXoff, ex0, ex1, pfn)
    a.finish('hV')
    if F: return F.rest(a, name)
    a.label(f'L_{name}_end')
    a.i('s_endpgm')
    hi = max(hiR, R.hi)
    return a.text() + kd(name, hi, 102), 159744, hi

if __name__ == '__main__':
    for x in range(2304): assert (x * 1821) >> 16 == x // 36
    for x in range(1280): assert (x * 3277) >> 16 == x // 20
    for x in range(192): assert (x * 6554) >> 16 == x // 10
    for x in range(19): assert (x * 13108) >> 16 == x // 5
    txt, lds, hi = gen_k1()
    print(len(txt.split('\n')), 'lines; vgprs', hi)
```

```python
QK_BLK = 1152
V_BLK = 1280
KV_BLK = QK_BLK + V_BLK
QA_OFF = 0
QB_OFF = 2359296
QK_SZ = 2359296
KA_OFF = 2 * 2359296
VA_OFF = KA_OFF + QK_BLK
KV_SZ = 32 * 64 * KV_BLK
KVP_OFF = KA_OFF + KV_SZ
KVP_BLK = 3200
KVP_SZ = 32 * 16 * KVP_BLK
G_OFF = KVP_OFF + KVP_SZ
O16_OFF = G_OFF + 8192
O16_SZ = 2 * 32 * 64 * 1024
O2_OFF = O16_OFF + O16_SZ
O2_SZ = 2 * 64 * 8 * 512
WS_USED = O2_OFF + O2_SZ
FLG_OFF = (WS_USED + 4095) // 4096 * 4096
M1_OFF = 4096
M2_OFF = M1_OFF + 65536
FLG_SZ = M2_OFF + 65536
LOG2E = 1.4426950408889634
QSCALE = 18 ** -0.5 * LOG2E
OOB = 0x40000000
import struct
def f2u(x): return struct.unpack('<I', struct.pack('<f', x))[0]
```

```python
import sys
import asmlib, fz, align
def build(**opt):
    asmlib.Asm.prof = bool(int(opt.get('prof', 0)))
    if opt.get('prof') == '2': asmlib.Asm.clk = 's_memrealtime'
    for k, v in opt.items():
        if hasattr(fz, k) and k.isupper(): setattr(fz, k, int(v) if v.lstrip('-').isdigit() else v.replace('+', ' '))
    t, l = fz.gen()
    hdr = open('gated_mix__sliding_block__linear_kernel_hedgehog__prompt.s.ref').read().split('; Override')[0]
    hdr += f'; @launch grid=(256,1,1) block=(512,1,1) lds={l}\n'
    hdr += '.amdgcn_target "amdgcn-amd-amdhsa--gfx950"\n.text\n'
    txt = hdr + t + 'L_code_end:\n'
    if int(opt.get('align', 1)): txt = align.align(txt)
    return txt
if __name__ == '__main__':
    out = sys.argv[1]
    opt = dict(x.split('=') for x in sys.argv[2:])
    open(out, 'w').write(build(**opt))
```

```python
from asmlib import *
from layout import *
from k1 import srd, add64, hedgehog, wphi_dma_addr, wphi_dma, wphi_rd_addr, wphi_read

NAME = 'gated_mix__sliding_block__linear_kernel_hedgehog__prompt_kernel'
ST = 'sc1'; LD = 'sc1'
HCUT = 6; EPI_PER = 3; PF_CODE = 1; PF_WO = 0; PF_M = 1; PF_FIRST = 0; PF_INIT = 4; PF_EVERY = 18; ASPLIT = 6; UA = 4; PF_O = 1
PROFP1 = 0; SLEEP = 0; WWIN = 5
FORCE_FALLBACK = 0; UB = 14; SPIN = 1 << 14; NO = 16; NFIRST = 4; NSECOND = 12
DR, PR = 3, 4
DV, PV = 6, 8
NEG = f2u(-1e30)
class Ring:
    def __init__(s, n, wbuf): s.n = n; s.XB = [16384 * i for i in range(n)]; s.WB0 = 16384 * n; s.WBUF = wbuf; s.end = s.WB0 + n * wbuf
RINGR = Ring(3, 36864); RINGV = Ring(4, 20480)
GOFS = RINGV.end; WPH = GOFS + 4096
KB, KVL, GL, WO0 = 0, 40960, 43008, 47104
CNT = 161792; WP2 = 162048
LDS_BYTES = 163840
def wo_off(st): return WO0 + 8192 * st if st < 14 else 8192 * (st - 14)
sX, sW, sO, sP, sG = 16, 20, 24, 28, 32
sRow, sC, sHH = 37, 38, 39
sT0, sT1, sT2, sT3 = 40, 41, 42, 43
sSoW, sSoX, sMW, sMX = 44, 45, 46, 47
sFl = 48; sWv = 52; sOOB = 58; sK = 62; sHi = 60
sTag, sCnt = 98, 99

def p2_ids(a, sHead, sT8):
    a.many(f'''
    s_and_b32 s{sT0}, s2, 7
    s_lshr_b32 s{sT1}, s2, 3
    s_and_b32 s{sHead}, s{sT0}, 1
    s_lshl_b32 s{sHead}, s{sHead}, 4
    s_lshr_b32 s{sT2}, s{sT1}, 1
    s_add_u32 s{sHead}, s{sHead}, s{sT2}
    s_and_b32 s{sT8}, s{sT0}, 6
    s_and_b32 s{sT1}, s{sT1}, 1
    s_add_u32 s{sT8}, s{sT8}, s{sT1}
    ''')
def p3_ids(a, sR3, sC3, sHas):
    a.many(f'''
    s_and_b32 s{sT0}, s2, 7
    s_lshr_b32 s{sT1}, s2, 3
    s_mul_i32 s{sT0}, s{sT0}, 25
    s_add_u32 s{sT0}, s{sT0}, s{sT1}
    s_cmp_lt_u32 s{sT1}, 25
    s_cselect_b32 s{sT0}, s{sT0}, 255
    s_cmp_lt_u32 s{sT0}, 198
    s_cselect_b32 s{sHas}, 1, 0
    s_cselect_b32 s{sT0}, s{sT0}, 0
    s_mul_i32 s{sR3}, s{sT0}, 7282
    s_lshr_b32 s{sR3}, s{sR3}, 16
    s_mul_i32 s{sT1}, s{sR3}, 9
    s_sub_u32 s{sC3}, s{sT0}, s{sT1}
    ''')
def flag_srd(a):
    a.many(f'''
    s_add_u32 s{sFl}, s14, {FLG_OFF}
    s_addc_u32 s{sFl+1}, s15, 0
    s_mov_b32 s{sFl+2}, {FLG_SZ}
    s_mov_b32 s{sFl+3}, 0x20000
    ''')
def f1_index(a, dst):
    a.many(f'''
    s_and_b32 s{sT0}, s2, 7
    s_lshr_b32 s{sT1}, s2, 3
    s_and_b32 s{sT2}, s{sT0}, 1
    s_lshl_b32 s{sT2}, s{sT2}, 7
    s_lshr_b32 s{sT0}, s{sT0}, 1
    s_lshl_b32 s{sT0}, s{sT0}, 5
    s_add_u32 s{sT2}, s{sT2}, s{sT0}
    s_and_b32 s{sT0}, s{sT1}, 3
    s_lshl_b32 s{sT0}, s{sT0}, 3
    s_add_u32 s{sT2}, s{sT2}, s{sT0}
    s_lshr_b32 s{sT1}, s{sT1}, 2
    s_add_u32 s{sT2}, s{sT2}, s{sT1}
    s_lshl_b32 s{dst}, s{sT2}, 2
    s_add_u32 s{dst}, s{dst}, {F1_OFF}
    ''')
def tag_load(a, vz, vt):
    a.i(f'v_mov_b32 v{vz}, 0')
    a.i(f'global_load_dword v{vt}, v{vz}, s[96:97] sc1')
def signal(a, lab, vz, vt, vc, cnt_off, last, sIdx, have_tag=False):
    if not have_tag:
        a.many(f'''
        s_mov_b32 s{sCnt}, {SPIN}
        L_{lab}_t:
        s_waitcnt vmcnt(0)
        v_readfirstlane_b32 s{sTag}, v{vt}
        s_cmp_lg_u32 s{sTag}, 0
        s_cbranch_scc1 L_{lab}_k
        global_load_dword v{vt}, v{vz}, s[96:97] sc1
        s_sub_u32 s{sCnt}, s{sCnt}, 1
        s_cbranch_scc0 L_{lab}_t
        L_{lab}_k:
        ''')
    else: a.i('s_waitcnt vmcnt(0)')
    a.many(f'''
    v_mov_b32 v{vt}, 1
    v_mov_b32 v{vc}, {cnt_off}
    s_mov_b64 exec, 1
    ds_add_rtn_u32 v{vc}, v{vc}, v{vt}
    v_mov_b32 v{vt}, s{sTag}
    s_waitcnt lgkmcnt(0)
    v_readfirstlane_b32 s{sCnt}, v{vc}
    s_cmp_lg_u32 s{sCnt}, {last}
    s_cbranch_scc1 L_{lab}_n
    buffer_store_dword v{vt}, v{vz}, s[{sFl}:{sFl+3}], s{sIdx} offen sc1
    L_{lab}_n:
    s_mov_b64 exec, -1
    ''')
    a.vm_done = a.vm_issued
def poll(a, lab, vAddr, vF, first_loaded=False):
    a.i(f's_mov_b32 s{sCnt}, {SPIN}')
    if first_loaded: a.i(f's_branch L_{lab}_c')
    a.many(f'''
    L_{lab}:
    buffer_load_dword v{vF}, v{vAddr}, s[{sFl}:{sFl+3}], 0 offen sc1
    s_waitcnt vmcnt(0)
    L_{lab}_c:
    v_cmp_ne_u32 vcc, s{sTag}, v{vF}
    s_cmp_eq_u64 vcc, 0
    s_cbranch_scc1 L_{lab}_ok
    {'s_sleep %d' % SLEEP if SLEEP else ''}
    s_sub_u32 s{sCnt}, s{sCnt}, 1
    s_cbranch_scc0 L_{lab}
    L_{lab}_ok:
    ''')
def quad_transpose(a, Rg, Tm, sM):
    q1 = 'quad_perm:[1,0,3,2] row_mask:0xf bank_mask:0xf'; q2 = 'quad_perm:[2,3,0,1] row_mask:0xf bank_mask:0xf'
    L = []
    L.append('s_mov_b64 vcc, s[10:11]')
    L.append(f'v_cndmask_b32_dpp v{Tm[0]}, v{Rg[1]}, v{Rg[0]}, vcc {q1}')
    L.append(f'v_cndmask_b32_dpp v{Tm[2]}, v{Rg[3]}, v{Rg[2]}, vcc {q1}')
    L.append('s_not_b64 vcc, vcc')
    L.append(f'v_cndmask_b32_dpp v{Tm[1]}, v{Rg[0]}, v{Rg[1]}, vcc {q1}')
    L.append(f'v_cndmask_b32_dpp v{Tm[3]}, v{Rg[2]}, v{Rg[3]}, vcc {q1}')
    L.append('s_mov_b64 vcc, s[100:101]')
    L.append(f'v_cndmask_b32_dpp v{Rg[0]}, v{Tm[2]}, v{Tm[0]}, vcc {q2}')
    L.append(f'v_cndmask_b32_dpp v{Rg[1]}, v{Tm[3]}, v{Tm[1]}, vcc {q2}')
    L.append('s_not_b64 vcc, vcc')
    L.append(f'v_cndmask_b32_dpp v{Rg[2]}, v{Tm[0]}, v{Tm[2]}, vcc {q2}')
    L.append(f'v_cndmask_b32_dpp v{Rg[3]}, v{Tm[1]}, v{Tm[3]}, vcc {q2}')
    return L
def quad_masks(a, sM):
    for r, m in ((10, 0x55555555), (100, 0x33333333)):
        a.i(f's_mov_b32 s{r}, {m}'); a.i(f's_mov_b32 s{r+1}, {m}')

def pf_setup(a, vPF, t):
    if not PF_M: return
    nu = 5184 // (2 * (9 - PF_FIRST)); assert nu * 2 * (9 - PF_FIRST) == 5184
    a.many(f'''
    s_lshl_b32 s{sT0}, s2, 2
    s_add_u32 s{sT0}, s{sT0}, s{sWv}
    s_mul_i32 s{sT1}, s{sT0}, 2304
    s_add_u32 s{sT1}, s{sT1}, {128*PF_FIRST}
    s_add_u32 s16, s4, s{sT1}
    s_addc_u32 s17, s5, 0
    s_min_u32 s{sT1}, s{sT0}, 863
    s_cmp_lt_u32 s{sT1}, 432
    s_cselect_b32 s18, s6, s8
    s_cselect_b32 s19, s7, s9
    s_cselect_b32 s{sT2}, 0, 432
    s_sub_u32 s{sT1}, s{sT1}, s{sT2}
    s_lshl_b32 s{sT2}, s{sT1}, 9
    s_add_u32 s{sT2}, s{sT2}, {PF_FIRST*64*3456}
    s_add_u32 s18, s18, s{sT2}
    s_addc_u32 s19, s19, 0
    s_sub_u32 s18, s18, 256
    s_subb_u32 s19, s19, 0
    s_min_u32 s{sT1}, s{sT0}, {2*nu-1}
    s_cmp_lt_u32 s{sT1}, {nu}
    s_cselect_b32 s20, s20, s22
    s_cselect_b32 s21, s21, s23
    s_cselect_b32 s{sT2}, 0, {nu}
    s_sub_u32 s{sT1}, s{sT1}, s{sT2}
    s_mul_i32 s{sT2}, s{sT1}, {5184//nu*128}
    s_add_u32 s20, s20, s{sT2}
    s_addc_u32 s21, s21, 0
    s_sub_u32 s20, s20, {6*128}
    s_subb_u32 s21, s21, 0
    v_min_u32 v{t[0]}, 7, v0
    v_mul_u32_u24 v{t[1]}, 1152, v{t[0]}
    v_lshlrev_b32 v{t[0]}, 7, v{t[0]}
    v_cmp_gt_u32 vcc, 2, v0
    v_cmp_gt_u32 s[22:23], 6, v0
    v_cndmask_b32 v{t[0]}, v{t[0]}, v{t[1]}, vcc
    ''')
    for k, (x, w, o) in enumerate((('s16', 's18', 's20'), ('s17', 's19', 's21'), (128, 64*3456, 256))):
        a.i(f'v_mov_b32 v{vPF+k}, {o}'); a.i(f'v_mov_b32 v{t[1]}, {w}')
        a.i(f'v_cndmask_b32 v{vPF+k}, v{vPF+k}, v{t[1]}, s[22:23]')
        a.i(f'v_mov_b32 v{t[1]}, {x}')
        a.i(f'v_cndmask_b32 v{vPF+k}, v{vPF+k}, v{t[1]}, vcc')
    a.i(f'v_add_co_u32 v{vPF}, vcc, v{vPF}, v{t[0]}')
    a.i(f'v_addc_co_u32 v{vPF+1}, vcc, 0, v{vPF+1}, vcc')
    a.npf = 0
    a.vPF = vPF
    for _ in range(PF_INIT): pf_step(a)
def pf_step(a):
    if not PF_M or a.npf >= 9 - PF_FIRST: return
    v = a.vPF; a.npf += 1
    a.i(f'global_load_dword v{v+3}, v[{v}:{v+1}], off')
    a.i(f'v_add_co_u32 v{v}, vcc, v{v}, v{v+2}')
    a.i(f'v_addc_co_u32 v{v+1}, vcc, 0, v{v+1}, vcc')

def gemm_consumer(a, G, NN, wread, xread, ACCS, ACC, POOL, XF, D, P, tails=None):
    groups = [(s, m) for s in range(16) for m in range(9)]
    groups += [(s, m) for m in range(9) for s in (16, 17)] if tails else [(s, m) for s in (16, 17) for m in range(9)]
    total = len(groups)
    xpos = {}
    first = {}
    for q, (s, m) in enumerate(groups): first.setdefault(s, q)
    tokW = {}; tokX = {}
    def xreg(s, n): return XF + 4 * (NN * (s & 1) + n) if not (tails and s == 17) else XF + 4 * (2 * NN + n)
    def reads(q):
        if q >= total: return []
        s, m = groups[q]
        L = []
        if first[s] == q:
            if s < 2: L.append(('bar',))
            L += [('x', s, n) for n in range(NN)]
        L += [('w', q, 0), ('w', q, 1)]
        return L
    def emit(r):
        if r[0] == 'bar': a.i('s_barrier')
        elif r[0] == 'x': tokX[r[1]] = xread(xreg(r[1], r[2]), r[1], r[2])
        else:
            s, m = groups[r[1]]
            tokW[r[1]] = wread(POOL + 4 * (r[1] % P) + 2 * r[2], s, m, r[2])
    a.stamp(1)
    for q in range(D):
        for r in reads(q): emit(r)
        if q == 0: a.stamp(2)
    def body(q, queue=None):
        s, m = groups[q]
        nxt = reads(q + D)
        newstage = q + D < total and (q + D) % 18 == 0
        for n in range(NN):
            if n == 0: a.wait_lg(max(tokW[q], tokX[s]))
            f = POOL + 4 * (q % P); xf = xreg(s, n); acc = ACC + ACCS * n + 4 * m
            c = '0' if s == 0 else f'v[{acc}:{acc+3}]'
            a.i(f'v_mfma_f32_16x16x32_bf16 v[{acc}:{acc+3}], v[{f}:{f+3}], v[{xf}:{xf+3}], {c}')
            if n == 0 and newstage: a.i('s_barrier')
            k = -(-len(nxt) // (NN - n))
            for r in nxt[:k]: emit(r)
            nxt = nxt[k:]
            if queue:
                j = 0
                while queue and queue[0][0] <= 4 * (q - 144) + n and j < EPI_PER:
                    a.i(queue.pop(0)[1]); j += 1
        if G.n == 3 and q % 18 == 17 and q // 18 + 3 <= 8: a.i('s_barrier')
        if q % PF_EVERY == PF_EVERY - 1: pf_step(a)
        if PROFP1 and q % 18 == 17 and q < 144: a.stamp(105 + q // 18)
    for q in range(144 if tails else total): body(q)
    if tails:
        for lab, br, qf in tails:
            if br: a.many(br)
        snap = a.snapshot(); sW_ = dict(tokW); sX_ = dict(tokX)
        for lab, br, qf in tails:
            a.restore(snap); tokW.clear(); tokW.update(sW_); tokX.clear(); tokX.update(sX_)
            if lab: a.label(lab)
            queue = qf()
            for q in range(144, total): body(q, queue)
            a.stamp(3)
            for _, ins in queue: a.i(ins)
            a.stamp(4)
            a.i('s_branch L_p2C')

def gemm_producer(a, G, nW, need0, vWoff, vXoff, extra0=None, early=None, after=None):
    tok = {}
    def dma(st, k, n):
        b = st % G.n
        if k == 'W':
            a.i(f's_add_u32 m0, s{sMW}, {G.WB0 + b * G.WBUF + n * 4096}')
            tok[st, k, n] = a.i(f'buffer_load_dwordx4 v{vWoff+n}, s[{sW}:{sW+3}], s{sSoW} offen lds')
        else:
            a.i(f's_add_u32 m0, s{sMX}, {G.XB[b] + n * 1024}')
            tok[st, k, n] = a.i(f'buffer_load_dwordx4 v{vXoff+n}, s[{sX}:{sX+3}], s{sSoX} offen lds')
    def setup(st):
        a.i(f's_mov_b32 s{sSoW}, {st * 64 * 3456}'); a.i(f's_mov_b32 s{sSoX}, {st * 128}')
    def stage(st, lo=0, hi=99):
        for k, n in ([('X', n) for n in range(4)] + [('W', n) for n in range(nW)])[lo:hi]: dma(st, k, n)
    setup(0)
    dma(0, 'W', 0)
    for n in range(4): dma(0, 'X', n)
    for n in range(1, min(need0 + 2, nW)): dma(0, 'W', n)
    a.wait_vm(tok[0, 'W', need0]); a.i('s_waitcnt lgkmcnt(0)'); a.i('s_barrier')
    for n in range(need0 + 2, nW): dma(0, 'W', n)
    if early: early()
    setup(1); stage(1, 0, 4)
    a.wait_vm(tok[0, 'W', nW - 1]); a.i('s_barrier')
    stage(1, 4)
    if extra0: extra0()
    cut = (nW + 4) * HCUT // 8
    if G.n == 4:
        setup(2); stage(2, 0, cut)
        for st in range(8):
            a.wait_vm(tok[st + 1, 'W', nW - 1]); a.i('s_barrier')
            if st == 0: stage(2, cut)
            if st + 3 <= 8: setup(st + 3); stage(st + 3)
            if after:
                if st == 0: after(0)
                after(st + 1)
        return
    for st in range(8):
        if st + 2 <= 8: setup(st + 2); stage(st + 2, 0, cut)
        a.wait_vm(tok[st + 1, 'W', nW - 1]); a.i('s_barrier')
        if st + 2 <= 8: stage(st + 2, cut)
        if st + 3 <= 8: a.i('s_barrier')

def gen():
    a = Asm()
    name = NAME
    a.raw(f'.globl {name}\n.p2align 8\n.type {name},@function\n{name}:')
    a.many(f'''
    s_cmp_ge_u32 s2, 256
    s_cbranch_scc1 L_end''')
    a.stamp_begin()
    a.smap = {k: k for k in range(1, 14)}
    if PROFP1: a.smap = {1: 1, 2: 2, 3: 11, 4: 12, **{105 + k: 3 + k for k in range(8)}}
    a.many(f'''
    s_load_dwordx4 s[4:7], s[0:1], 0
    s_load_dwordx4 s[8:11], s[0:1], 32
    s_load_dwordx2 s[12:13], s[0:1], 56
    s_load_dwordx2 s[14:15], s[0:1], 80
    s_load_dwordx2 s[96:97], s[0:1], 72
    s_load_dwordx2 s[20:21], s[0:1], 16
    s_load_dwordx2 s[22:23], s[0:1], 48
    v_lshrrev_b32 v1, 6, v0
    v_and_b32 v0, 63, v0
    s_and_b32 s{sT0}, s2, 7
    v_readfirstlane_b32 s3, v1
    s_lshr_b32 s{sT1}, s2, 3
    s_and_b32 s{sHH}, s{sT0}, 1
    s_lshr_b32 s{sT0}, s{sT0}, 1
    s_lshl_b32 s{sT0}, s{sT0}, 2
    s_and_b32 s{sRow}, s{sT1}, 3
    s_add_u32 s{sRow}, s{sRow}, s{sT0}
    s_bfe_u32 s{sC}, s{sT1}, 0x20002
    s_mov_b32 s{sOOB}, {OOB}
    s_and_b32 s{sWv}, s3, 3
    s_cmp_lt_u32 s3, 4
    s_cbranch_scc1 L_C
    ''')
    snapE = a.snapshot()
    head_lines = a.lines; a.lines = ['L_C:']
    R = RegAlloc(1, 256)
    vXr = R.get(2); vWb = R.get(6); t = [R.get(1) for _ in range(6)]; vPF = R.get(4, 2)
    vI, vGk = t[4], t[5]
    a.many(f'''
    v_and_b32 v{vI}, 15, v0
    v_lshrrev_b32 v{vGk}, 4, v0
    v_lshrrev_b32 v{t[0]}, 1, v{vI}
    v_xor_b32 v{t[0]}, v{t[0]}, v{vGk}
    v_lshlrev_b32 v{t[1]}, 7, v{vI}
    v_lshl_add_u32 v{vXr}, v{t[0]}, 4, v{t[1]}
    v_bfe_u32 v{t[2]}, v0, 2, 2
    v_and_b32 v{t[3]}, 3, v0
    s_cmp_ge_u32 s{sT1}, 16
    s_cbranch_scc1 L_V
    ''')
    snap0 = a.snapshot(); mark = R.mark()
    XF = R.get(48, 4); POOL = R.get(4 * PR, 4); ACC = R.get(144, 4); TL = R.get(16, 4); vo = R.get(2)
    sTg, sCh = 53, 54
    a.many(f'''
    s_and_b32 s{sTg}, s{sWv}, 1
    s_lshr_b32 s{sCh}, s{sWv}, 1
    s_lshl_b32 s{sT2}, s{sTg}, 13
    v_add_u32 v{vXr}, s{sT2}, v{vXr}
    v_xor_b32 v{vXr+1}, 64, v{vXr}
    v_lshl_add_u32 v{t[0]}, v{vGk}, 3, v{t[2]}
    v_mul_u32_u24 v{t[0]}, 576, v{t[0]}
    v_mul_u32_u24 v{t[1]}, 72, v{t[3]}
    v_and_b32 v{t[2]}, 1, v{vGk}
    v_lshl_add_u32 v{t[1]}, v{t[2]}, 5, v{t[1]}
    s_mul_i32 s{sT2}, s{sCh}, 288
    v_add_u32 v{t[1]}, s{sT2}, v{t[1]}
    v_add_u32 v{t[0]}, v{t[0]}, v{t[1]}
    v_add_u32 v{t[2]}, {-576 & 0xffffffff}, v{t[0]}
    v_cmp_eq_u32 vcc, {288+216+32}, v{t[1]}
    v_cndmask_b32 v{t[1]}, v{t[0]}, v{t[2]}, vcc
    ''')
    for b in range(3):
        a.i(f'v_add_u32 v{vWb+2*b}, {RINGR.WB0 + b*RINGR.WBUF}, v{t[0]}')
        a.i(f'v_add_u32 v{vWb+2*b+1}, {RINGR.WB0 + b*RINGR.WBUF}, v{t[1]}')
    a.i('s_waitcnt lgkmcnt(0)')
    pf_setup(a, vPF, t)
    a.many(f'''
    s_or_b32 s{sT2}, s2, s3
    s_cmp_lg_u32 s{sT2}, 0
    s_cbranch_scc1 L_notag
    s_add_u32 s56, s14, {FLG_OFF}
    s_addc_u32 s57, s15, 0
    s_load_dword s{sT2}, s[56:57], 0
    v_mov_b32 v{t[1]}, 0
    s_waitcnt lgkmcnt(0)
    s_add_u32 s{sT2}, s{sT2}, 1
    s_max_u32 s{sT2}, s{sT2}, 1
    v_mov_b32 v{t[0]}, s{sT2}
    global_store_dword v{t[1]}, v{t[0]}, s[96:97] sc1
    global_store_dword v{t[1]}, v{t[0]}, s[56:57] sc1
    L_notag:
    s_mov_b32 s{sT3}, {KV_BLK}
    s_mov_b32 s{sO+2}, {KV_SZ}
    s_mov_b32 s{sT2}, {KA_OFF}
    s_mov_b32 s{sK}, {f2u(QSCALE)}
    s_cmp_eq_u32 s{sC}, 2
    s_cselect_b32 s{sT2}, {VA_OFF}, s{sT2}
    s_cselect_b32 s{sO+2}, {KV_SZ - QK_BLK}, s{sO+2}
    s_cmp_eq_u32 s{sC}, 0
    s_cselect_b32 s{sT2}, {QA_OFF}, s{sT2}
    s_cselect_b32 s{sT3}, {QK_BLK}, s{sT3}
    s_cselect_b32 s{sO+2}, {QK_SZ}, s{sO+2}
    s_cmp_eq_u32 s{sC}, 3
    s_cselect_b32 s{sT2}, {QB_OFF}, s{sT2}
    s_cselect_b32 s{sT3}, {QK_BLK}, s{sT3}
    s_cselect_b32 s{sO+2}, {QK_SZ}, s{sO+2}
    s_add_u32 s{sO}, s14, s{sT2}
    s_addc_u32 s{sO+1}, s15, 0
    s_mov_b32 s{sO+3}, 0x20000
    s_lshl_b32 s{sT0}, s{sHH}, 10
    s_lshl_b32 s{sT1}, s{sCh}, 9
    s_add_u32 s{sT0}, s{sT0}, s{sT1}
    s_lshl_b32 s{sT1}, s{sRow}, 2
    s_add_u32 s{sT0}, s{sT0}, s{sT1}
    s_lshl_b32 s{sT1}, s{sTg}, 1
    s_add_u32 s{sT0}, s{sT0}, s{sT1}
    s_mul_i32 s56, s{sT0}, s{sT3}
    s_lshl_b32 s{sT0}, s{sT3}, 6
    s_add_u32 s57, s56, s{sT0}
    v_lshlrev_b32 v{t[0]}, 7, v{vGk}
    v_lshrrev_b32 v{t[1]}, 3, v{vI}
    v_add_u32 v{t[0]}, v{t[0]}, v{t[1]}
    v_mul_lo_u32 v{t[0]}, v{t[0]}, s{sT3}
    v_and_b32 v{t[1]}, 7, v0
    v_lshl_add_u32 v{vo}, v{t[1]}, 4, v{t[0]}
    v_xor_b32 v{vo+1}, 64, v{vo}
    ''')
    a.vm_issued -= 2
    for z in (1, 3, 5, 7, 9, 11, 13, 15): a.i(f'v_mov_b32 v{TL+z}, 0x3f80')
    def epi(isv, scale=False):
        def f():
            Q = []
            def part(v0, nv, dsts, ready):
                e = 8 * ready + 7 + 3
                for n in range(4):
                    b = ACC + 36 * n + v0
                    for j in range(0, nv, 2):
                        if scale:
                            Q.append((e, f'v_mul_f32 v{b+j}, s{sK}, v{b+j}')); Q.append((e, f'v_mul_f32 v{b+j+1}, s{sK}, v{b+j+1}'))
                        Q.append((e, f'v_cvt_pk_bf16_f32 v{dsts(n) + j//2}, v{b+j}, v{b+j+1}'))
                    if nv == 8:
                        pl = ((v0 % 18) // 8)
                        va = vo + 1 if (isv and pl) else vo
                        Q.append((e, f'buffer_store_dwordx4 v[{b}:{b+3}], v{va}, s[{sO}:{sO+3}], s{56 + v0//18} offen offset:{128*n + 512*pl} {ST}'))
                if nv == 2:
                    hs = v0 // 18; tl = TL + 8 * hs
                    if isv:
                        Q.append((e, f'buffer_store_dwordx4 v[{tl}:{tl+3}], v{vo}, s[{sO}:{sO+3}], s{56+hs} offen offset:{1024+128} {ST}'))
                        Q.append((e, f'buffer_store_dwordx4 v[{tl+4}:{tl+7}], v{vo}, s[{sO}:{sO+3}], s{56+hs} offen offset:1024 {ST}'))
                    else:
                        Q.append((e, f'buffer_store_dwordx4 v[{tl}:{tl+3}], v{vo}, s[{sO}:{sO+3}], s{56+hs} offen offset:1024 {ST}'))
            for hs in range(2):
                v = 18 * hs
                td = (lambda n, hs=hs: TL + 8 * hs + (4 * (n & 1) + 2 * (n >> 1) if isv else n))
                part(v, 8, lambda n, v=v: ACC + 36 * n + v, (v + 7) // 4)
                part(v + 8, 8, lambda n, v=v: ACC + 36 * n + v + 8, (v + 15) // 4)
                part(v + 16, 2, td, (v + 17) // 4)
            return Q
        return f
    def wreadR(f, s, m, rd):
        b = (s // 2) % 3
        return a.i(f'ds_read_b64_tr_b16 v[{f}:{f+1}], v{vWb + 2*b + (m >= 5)} offset:{(32*(s&1) + 4*rd)*576 + 8*m}')
    def xreadR(f, s, n):
        return a.i(f'ds_read_b128 v[{f}:{f+3}], v{vXr + (s&1)} offset:{RINGR.XB[(s//2)%3] + 2048*n}')
    gemm_consumer(a, RINGR, 4, wreadR, xreadR, 36, ACC, POOL, XF, DR, PR,
                  tails=[(None, f's_cmp_eq_u32 s{sC}, 2\ns_cbranch_scc1 L_stv', epi(0)),
                         ('L_stv', f's_cmp_eq_u32 s{sC}, 0\ns_cbranch_scc1 L_stq', epi(1)),
                         ('L_stq', None, epi(0, True))])
    a.label('L_V')
    a.restore(snap0); R.release(mark)
    XF = R.get(16, 4); POOL = R.get(4 * PV, 4); ACC = R.get(72, 4)
    T = R.get(52, 4); F1 = T; F2 = T + 16
    Z = R.get(32, 4); Y = R.get(6, 4); vP = R.get(1); vP2 = R.get(1); vL = R.get(1); vLV = R.get(1); vLT = R.get(1); vONE = R.get(1)
    a.many(f'''
    s_lshl_b32 s{sT0}, s{sHH}, 2
    s_add_u32 s{sC}, s{sC}, s{sT0}
    s_lshl_b32 s{sT2}, s{sWv}, 12
    v_add_u32 v{vXr}, s{sT2}, v{vXr}
    v_xor_b32 v{vXr+1}, 64, v{vXr}
    v_lshrrev_b32 v{t[0]}, 1, v{vGk}
    v_and_b32 v{t[1]}, 1, v{vGk}
    v_lshl_add_u32 v{t[0]}, v{t[0]}, 2, v{t[1]}
    v_lshl_add_u32 v{t[0]}, v{t[0]}, 2, v{t[2]}
    v_mul_u32_u24 v{t[0]}, 288, v{t[0]}
    v_mul_u32_u24 v{t[1]}, 72, v{t[3]}
    v_add_u32 v{t[0]}, v{t[0]}, v{t[1]}
    ''')
    for b in range(4): a.i(f'v_add_u32 v{vWb+b}, {RINGV.WB0 + b*RINGV.WBUF}, v{t[0]}')
    wphi_rd_addr(a, vP, vP2, 0, t[0], t[1])
    a.many(f'''
    v_add_u32 v{vP}, {WPH}, v{vP}
    v_add_u32 v{vP2}, {WPH}, v{vP2}
    s_mov_b32 s{sHi}, 0
    s_mov_b32 s{sHi+1}, -1
    s_mov_b32 s{sK}, {f2u(LOG2E)}
    s_mov_b32 s{sK+1}, {f2u(-LOG2E)}
    v_and_b32 v{t[0]}, 31, v0
    s_lshl_b32 s{sT1}, s{sWv}, 5
    v_add_u32 v{t[0]}, s{sT1}, v{t[0]}
    v_mul_u32_u24 v{t[0]}, 120, v{t[0]}
    v_lshrrev_b32 v{t[1]}, 5, v0
    v_mad_u32_u24 v{vL}, v{t[1]}, 40, v{t[0]}
    v_lshl_add_u32 v{vLV}, v{t[1]}, 4, v{t[0]}
    v_mul_u32_u24 v{t[1]}, 15360, v{t[1]}
    v_add3_u32 v{vLT}, v{t[1]}, v{t[0]}, 64
    v_add_u32 v{vLT}, 48, v{vLT}
    v_mov_b32 v{vONE}, 0x3f80
    v_mov_b32 v{Y+4}, 0
    v_mov_b32 v{Y+5}, 0
    s_waitcnt lgkmcnt(0)
    ''')
    pf_setup(a, vPF, t)
    def wreadV(f, s, m, rd):
        return a.i(f'ds_read_b64_tr_b16 v[{f}:{f+1}], v{vWb + (s//2)%4} offset:{(32*(s&1) + 8*rd)*288 + 8*m}')
    def xreadV(f, s, n):
        return a.i(f'ds_read_b128 v[{f}:{f+3}], v{vXr + (s&1)} offset:{RINGV.XB[(s//2)%4] + 2048*n}')
    gemm_consumer(a, RINGV, 2, wreadV, xreadV, 36, ACC, POOL, XF, DV, PV)
    a.stamp(3)
    for H in range(4): ptok = wphi_read(a, F1+4*H, F2+4*H, vP, vP2, 768*H)
    a.i('s_barrier')
    ypos = [0, 2, 1, 3]
    for hs in range(2):
        for kh in range(2):
            for n in range(2):
                for j in range(4):
                    b = ACC + 36 * n + 18 * hs + 8 * kh + 2 * j
                    a.i(f'v_cvt_pk_bf16_f32 v{Z + 16*hs + 4*(2*kh+n) + j}, v{b}, v{b+1}')
        for n in range(2):
            b = ACC + 36 * n + 18 * hs + 16
            a.i(f'v_cvt_pk_bf16_f32 v{Y + ypos[2*hs+n]}, v{b}, v{b+1}')
    sets = [[Z + 16 * hs + 4 * k + j for k in range(4)] for hs in range(2) for j in range(4)] + [[Y + ypos[k] for k in range(4)]]
    for S_ in sets:
        a.i(f'v_permlane32_swap_b32 v{S_[0]}, v{S_[2]}'); a.i(f'v_permlane32_swap_b32 v{S_[1]}, v{S_[3]}')
    for S_ in sets:
        a.i(f'v_permlane16_swap_b32 v{S_[0]}, v{S_[1]}'); a.i(f'v_permlane16_swap_b32 v{S_[2]}, v{S_[3]}')
    a.wait_lg(ptok)
    for H in range(4):
        if H & 1: a.i(f'v_cndmask_b32 v{F2+4*H}, 0, v{F2+4*H}, s[{sHi}:{sHi+1}]')
        else: a.i(f'v_cndmask_b32 v{F2+4*H}, v{F2+4*H}, 0, s[{sHi}:{sHi+1}]')
        for z in range(1, 4): a.i(f'v_mov_b32 v{F2+4*H+z}, 0')
    Dr = [ACC + 16 * H for H in range(4)]
    for H in range(4):
        kf = Z + 16 * (H & 1) + 4 * (H >> 1)
        a.i(f'v_mfma_f32_32x32x16_bf16 v[{Dr[H]}:{Dr[H]+15}], v[{F1+4*H}:{F1+4*H+3}], v[{kf}:{kf+3}], 0')
    for H in range(4):
        y = Y + 2 * (H >> 1)
        a.i(f'v_mfma_f32_32x32x16_bf16 v[{Dr[H]}:{Dr[H]+15}], v[{F2+4*H}:{F2+4*H+3}], v[{y}:{y+3}], v[{Dr[H]}:{Dr[H]+15}]')
    for H in range(4):
        vf = Z + 16 * (H & 1) + 4 * (2 + (H >> 1)); o = H * 15360 + 80
        a.i(f'ds_write_b64 v{vLV}, v[{vf}:{vf+1}] offset:{o}')
        a.i(f'ds_write_b64 v{vLV}, v[{vf+2}:{vf+3}] offset:{o+8}')
    a.i(f'ds_write2_b32 v{vLT}, v{Y+1}, v{vONE} offset0:0 offset1:1')
    a.i(f'v_add_u32 v{vLT}, {2*15360}, v{vLT}')
    a.i(f'ds_write2_b32 v{vLT}, v{Y+3}, v{vONE} offset0:0 offset1:1')
    PHo = [XF, XF + 10, XF + 20, XF + 30]
    for H in range(4): a.i(f'v_mov_b32 v{PHo[H]+9}, 0')
    for pair in range(2):
        hedgehog(a, [(Dr[2*pair+k], PHo[2*pair+k]) for k in range(2)], sK, T, sHi)
        for k in range(2):
            H = 2 * pair + k
            for j in range(5): a.i(f'ds_write_b64 v{vL}, v[{PHo[H]+2*j}:{PHo[H]+2*j+1}] offset:{H*15360 + 8*j}')
    a.many(f'''
    v_bfe_u32 v{t[0]}, v0, 4, 1
    v_bfe_u32 v{t[1]}, v0, 2, 2
    v_lshl_add_u32 v{t[0]}, v{t[0]}, 2, v{t[1]}
    v_lshrrev_b32 v{t[1]}, 5, v0
    v_lshlrev_b32 v{t[1]}, 1, v{t[1]}
    v_lshl_add_u32 v{t[0]}, v{t[0]}, 2, v{t[1]}
    s_lshl_b32 s{sT0}, s{sWv}, 7
    v_add_u32 v{t[0]}, s{sT0}, v{t[0]}
    v_mul_u32_u24 v{t[0]}, 120, v{t[0]}
    v_and_b32 v{t[1]}, 3, v0
    v_lshl_add_u32 v{t[0]}, v{t[1]}, 3, v{t[0]}
    s_lshl_b32 s{sT0}, s{sC}, 2
    s_add_u32 s{sT0}, s{sT0}, s{sWv}
    s_lshl_b32 s{sT0}, s{sT0}, 4
    s_add_u32 s{sT0}, s{sT0}, s{sRow}
    s_mul_i32 s{sT0}, s{sT0}, {KVP_BLK}
    s_add_u32 s{sT0}, s{sT0}, {KVP_OFF}
    s_add_u32 s{sO}, s14, s{sT0}
    s_addc_u32 s{sO+1}, s15, 0
    s_mov_b32 s{sO+2}, {KVP_BLK}
    s_mov_b32 s{sO+3}, 0x20000
    v_lshlrev_b32 v{t[1]}, 4, v0
    v_mov_b32 v{t[3]}, s{sOOB}
    v_cndmask_b32 v{t[2]}, v{t[1]}, v{t[3]}, s[{sHi}:{sHi+1}]
    v_lshl_add_u32 v{vP}, v{vGk}, 2, v{vI}
    v_lshlrev_b32 v{vP}, 4, v{vP}
    v_cmp_gt_u32 vcc, 4, v{vI}
    v_cndmask_b32 v{vP}, v{t[3]}, v{vP}, vcc
    s_waitcnt lgkmcnt(0)
    s_barrier
    ''')
    FR = T; KV = ACC
    toks = {}
    def rd_step(ts):
        fb = FR + 20 * (ts & 1)
        for k in range(5):
            co = 32 * k if k < 3 else 80 + 32 * (k - 3)
            for rd in range(2):
                toks[ts] = a.i(f'ds_read_b64_tr_b16 v[{fb+4*k+2*rd}:{fb+4*k+2*rd+1}], v{t[0]} offset:{(32*ts+rd)*120 + co}')
    rd_step(0); rd_step(1)
    for ts in range(4):
        a.wait_lg(toks[ts])
        fb = FR + 20 * (ts & 1)
        for ft in range(3):
            for dt in range(2):
                d = KV + 4 * (2 * ft + dt)
                c = '0' if ts == 0 else f'v[{d}:{d+3}]'
                a.i(f'v_mfma_f32_16x16x32_bf16 v[{d}:{d+3}], v[{fb+4*ft}:{fb+4*ft+3}], v[{fb+12+4*dt}:{fb+15+4*dt}], {c}')
        if ts + 2 < 4: rd_step(ts + 2)
    for dt in range(2):
        for ft in range(3):
            d = KV + 4 * (2 * ft + dt)
            va = vP if dt else (t[2] if ft == 2 else t[1])
            off = 2560 + 256 * ft if dt else 1024 * ft
            a.i(f'buffer_store_dwordx4 v[{d}:{d+3}], v{va}, s[{sO}:{sO+3}], 0 offen offset:{off} {ST}')
    a.stamp(4)
    a.label('L_p2C')
    a.reset_state(); a.vm_issued = 1
    sQA, sQB, sO16, sO2 = 16, 20, 28, 32
    sHead, sT8, sVF, sTile, sIdx = 53, 54, 55, 56, 57
    sSO = 4; sM = None
    R = RegAlloc(1, 256)
    vL16 = R.get(1); vTau = R.get(1); vZ = R.get(1); vTag = R.get(1)
    t = [R.get(1) for _ in range(6)]
    vK = R.get(1); vK2 = R.get(1); vV = R.get(4); vKV = R.get(1); vo2 = R.get(1); vGL = R.get(1)
    G = R.get(2)
    QA = R.get(16, 4)
    MD = R.get(16, 4); ME = R.get(16, 4)
    KF = R.get(16, 4); VF = R.get(16, 4)
    BIG = R.get(144, 4); XT = R.get(8, 4)
    Sb = [BIG, BIG + 16]; O = [BIG + 32, BIG + 48]; PH = [BIG + 120, BIG + 132]
    QB = KF; F1 = VF; F2 = VF + 4; vP = VF + 11; vP2 = VF + 12; vQt = VF + 13; QT = VF + 14
    D = Sb; T = BIG + 32
    a.i('s_nop 1')
    wphi_rd_addr(a, vP, vP2, 0, t[0], t[1])
    a.i(f'v_add_u32 v{vP}, {WP2}, v{vP}'); a.i(f'v_add_u32 v{vP2}, {WP2}, v{vP2}')
    ptk = wphi_read(a, F1, F2, vP, vP2, 0)
    p2_ids(a, sHead, sT8)
    a.many(f'''
    s_cmp_eq_u32 s{sT8}, 0
    s_cselect_b32 s{sVF}, 8, 0
    s_lshl_b32 s{sTile}, s{sT8}, 3
    s_lshl_b32 s{sT0}, s{sWv}, 1
    s_add_u32 s{sTile}, s{sTile}, s{sT0}
    s_mov_b32 s{sK}, {f2u(LOG2E)}
    s_mov_b32 s{sK+1}, {f2u(-LOG2E)}
    s_mov_b32 s{sHi}, 0
    s_mov_b32 s{sHi+1}, -1
    v_lshlrev_b32 v{vL16}, 4, v0
    v_and_b32 v{t[0]}, 7, v0
    v_bfe_u32 v{t[1]}, v0, 3, 2
    v_lshl_add_u32 v{vTau}, v{t[0]}, 2, v{t[1]}
    v_lshl_add_u32 v{vGL}, v{t[1]}, 4, v{t[0]}
    s_lshl_b32 s{sT2}, s{sWv}, 8
    s_add_u32 s{sT2}, s{sT2}, {GL}
    v_lshl_add_u32 v{vGL}, v{vGL}, 2, s{sT2}
    v_lshrrev_b32 v{t[1]}, 5, v0
    v_mul_u32_u24 v{t[0]}, {QK_BLK}, v{t[1]}
    v_lshl_add_u32 v{vQt}, v{vTau}, 2, v{t[0]}
    s_mul_i32 s{sT0}, s{sHead}, {64*QK_BLK}
    s_add_u32 s{sQB}, s14, s{sT0}
    s_addc_u32 s{sQB+1}, s15, 0
    s_add_u32 s{sQA}, s{sQB}, {QA_OFF}
    s_addc_u32 s{sQA+1}, s{sQB+1}, 0
    s_add_u32 s{sQB}, s{sQB}, {QB_OFF}
    s_addc_u32 s{sQB+1}, s{sQB+1}, 0
    s_lshl_b32 s{sT0}, s{sHead}, 6
    s_add_u32 s{sT0}, s{sT0}, s{sTile}
    s_lshl_b32 s{sSO}, s{sT0}, 10
    s_add_u32 s{sSO+1}, s{sSO}, 1024
    s_add_u32 s{sSO+2}, s{sSO}, {2048*1024}
    s_add_u32 s{sSO+3}, s{sSO}, {2049*1024}
    s_lshl_b32 s{sSO+4}, s{sT0}, 7
    v_bfe_u32 v{t[2]}, v0, 2, 3
    v_and_b32 v{t[3]}, 1, v0
    v_lshl_add_u32 v{t[2]}, v{t[3]}, 3, v{t[2]}
    v_bfe_u32 v{t[3]}, v0, 1, 1
    v_lshlrev_b32 v{t[3]}, 14, v{t[3]}
    v_add_u32 v{t[2]}, v{t[2]}, v{t[3]}
    v_lshlrev_b32 v{t[2]}, 4, v{t[2]}
    v_mov_b32 v{t[3]}, s{sOOB}
    v_cndmask_b32 v{vo2}, v{t[2]}, v{t[3]}, s[{sHi}:{sHi+1}]
    ''')
    srd(a, sQB, sQB, sQB+1, 64*QK_BLK); srd(a, sQA, sQA, sQA+1, 64*QK_BLK)
    a.i(f's_add_u32 s{sO16}, s14, {O16_OFF}'); a.i(f's_addc_u32 s{sO16+1}, s15, 0'); srd(a, sO16, sO16, sO16+1, O16_SZ)
    a.i(f's_add_u32 s{sO2}, s14, {O2_OFF}'); a.i(f's_addc_u32 s{sO2+1}, s15, 0'); srd(a, sO2, sO2, sO2+1, O2_SZ)
    quad_masks(a, sM)
    a.wait_lg(ptk)
    for z in range(1, 4): a.i(f'v_mov_b32 v{F2+z}, 0')
    for x in range(2):
        for z in range(5, 8):
            a.i(f'v_mov_b32 v{QA+8*x+z}, 0'); a.i(f'v_mov_b32 v{QB+8*x+z}, 0')
        for z in range(9, 12): a.i(f'v_mov_b32 v{PH[x]+z}, 0')
    tmpA, tmpB = MD, MD + 1
    a.many(f'''
    s_mul_i32 s{sT1}, s{sWv}, {2*KV_BLK}
    v_add_u32 v{vK}, s{sT1}, v{vL16}
    s_add_u32 s{sT2}, s{sT1}, {KB+1024}
    v_lshl_add_u32 v{vK2}, v{vTau}, 2, s{sT2}
    s_add_u32 s{sT1}, s{sT1}, {KB+QK_BLK}
    v_bfe_u32 v{t[2]}, v0, 2, 2
    v_and_b32 v{t[3]}, 1, v0
    v_bfe_u32 v{t[4]}, v0, 1, 1
    v_bfe_u32 v{t[5]}, v0, 4, 1
    v_cmp_eq_u32 vcc, 1, v{t[5]}
    v_xor_b32 v{tmpA}, v{t[1]}, v{t[3]}
    v_lshl_add_u32 v{tmpA}, v{tmpA}, 2, v{t[2]}
    v_lshlrev_b32 v{tmpA}, 4, v{tmpA}
    v_lshl_add_u32 v{tmpA}, v{t[3]}, 9, v{tmpA}
    v_lshl_add_u32 v{tmpA}, v{t[4]}, 3, v{tmpA}
    v_add_u32 v{tmpA}, s{sT1}, v{tmpA}
    v_lshl_add_u32 v{tmpB}, v{t[1]}, 2, v{t[2]}
    v_lshlrev_b32 v{tmpB}, 4, v{tmpB}
    v_add_u32 v{tmpB}, s{sT1}, v{tmpB}
    ''')
    for s in range(2):
        for rd in range(2):
            d = vV + 2 * s + rd
            a.i(f'v_add_u32 v{t[3]}, {256*s + 128*rd}, v{tmpA}')
            a.i(f'v_add_u32 v{t[4]}, {1024 + 128*(1-rd) + 8*s}, v{tmpB}')
            a.i(f'v_cndmask_b32 v{d}, v{t[3]}, v{t[4]}, vcc')
    a.many(f'''
    v_bfe_u32 v{t[2]}, v0, 3, 2
    v_bfe_u32 v{t[3]}, v0, 2, 1
    v_lshl_add_u32 v{t[3]}, v{t[3]}, 1, v{t[2]}
    v_cmp_lt_u32 vcc, 1, v{t[2]}
    v_cndmask_b32 v{t[3]}, v{t[3]}, 4, vcc
    v_and_b32 v{t[2]}, 3, v0
    v_lshl_add_u32 v{t[3]}, v{t[3]}, 2, v{t[2]}
    v_mul_u32_u24 v{t[3]}, 80, v{t[3]}
    v_mad_u32_u24 v{vKV}, v{t[1]}, 40, v{t[3]}
    v_add_u32 v{vKV}, {KVL}, v{vKV}
    v_lshlrev_b32 v{t[3]}, 4, v{t[1]}
    v_sub_u32 v{t[2]}, v{vTau}, v{t[3]}
    v_mov_b32 v{t[3]}, {NEG}
    ''')
    for r in range(16):
        kc = 4 * (r & 3) + (r >> 2)
        sp = 40 + 2 * (r & 3)
        a.i(f'v_cmp_le_i32 s[{sp}:{sp+1}], {kc}, v{t[2]}')
        if r & 3 == 3:
            for rr in range(r - 3, r + 1):
                sq = 40 + 2 * (rr & 3)
                a.i(f'v_cndmask_b32 v{MD+rr}, v{t[3]}, 0, s[{sq}:{sq+1}]')
                a.i(f'v_cndmask_b32 v{ME+rr}, 0, v{t[3]}, s[{sq}:{sq+1}]')
    a.stamp(5)
    a.i('s_waitcnt vmcnt(0)')
    a.i(f's_mul_i32 s{sT1}, s{sTile}, {QK_BLK}')
    a.i(f's_add_u32 s{sT2}, s{sT1}, {QK_BLK}')
    a.stamp(6)
    a.i('s_barrier')
    a.i('s_barrier')
    a.stamp(7)
    def loadQ(sR, Q, qt):
        for x in range(2):
            so = sT1 if x == 0 else sT2
            a.i(f'buffer_load_dwordx4 v[{Q+8*x}:{Q+8*x+3}], v{vL16}, s[{sR}:{sR+3}], s{so} offen {LD}')
        return a.i(f'buffer_load_dword v{qt}, v{vQt}, s[{sR}:{sR+3}], s{sT1} offen offset:1024 {LD}')
    tokB = loadQ(sQB, QB, QT)
    tokA = loadQ(sQA, QA, QT + 1)
    a.wait_vm(tokB)
    a.i(f'v_cndmask_b32 v{QB+4}, v{QT}, 0, s[{sHi}:{sHi+1}]')
    a.i(f'v_cndmask_b32 v{QB+12}, 0, v{QT}, s[{sHi}:{sHi+1}]')
    for x in range(2):
        a.i(f'v_mfma_f32_32x32x16_bf16 v[{D[x]}:{D[x]+15}], v[{F1}:{F1+3}], v[{QB+8*x}:{QB+8*x+3}], 0')
    for x in range(2):
        a.i(f'v_mfma_f32_32x32x16_bf16 v[{D[x]}:{D[x]+15}], v[{F2}:{F2+3}], v[{QB+8*x+4}:{QB+8*x+7}], v[{D[x]}:{D[x]+15}]')
    hedgehog(a, [(D[0], PH[0]), (D[1], PH[1])], sK, T, sHi)
    a.wait_vm(tokA)
    a.i(f'v_cndmask_b32 v{QA+4}, v{QT+1}, 0, s[{sHi}:{sHi+1}]')
    a.i(f'v_cndmask_b32 v{QA+12}, 0, v{QT+1}, s[{sHi}:{sHi+1}]')
    a.stamp(8)
    a.i('s_barrier')
    a.stamp(9)
    units = [(0, 0)] + [(x, n) for n in range(1, 9) for x in range(2)] + [(1, 9)]
    kt = {}; vt = {}
    def rdK(n):
        if n > 9 or n in kt: return
        f = KF + 8 * (n & 1)
        a.i(f'ds_read_b128 v[{f}:{f+3}], v{vK} offset:{n*KV_BLK}')
        kt[n] = a.i(f'ds_read_b32 v{f+4}, v{vK2} offset:{n*KV_BLK}')
    def rdV(n):
        if n > 9 or n in vt: return
        f = VF + 8 * (n & 1)
        for s in range(2):
            for rd in range(2):
                vt[n] = a.i(f'ds_read_b64_tr_b16 v[{f+4*s+2*rd}:{f+4*s+2*rd+1}], v{vV+2*s+rd} offset:{n*KV_BLK}')
    def mS(u, part):
        if u >= 18: return
        x, n = units[u]; f = KF + 8 * (n & 1); sn = Sb[u & 1]
        if part == 0:
            a.wait_lg(kt[n])
            c = f'v[{ME}:{ME+15}]' if n - x == 0 else (f'v[{MD}:{MD+15}]' if n - x == 8 else '0')
            a.i(f'v_mfma_f32_32x32x16_bf16 v[{sn}:{sn+15}], v[{f}:{f+3}], v[{QA+8*x}:{QA+8*x+3}], {c}')
        else:
            a.i(f'v_mfma_f32_32x32x16_bf16 v[{sn}:{sn+15}], v[{f+4}:{f+7}], v[{QA+8*x+4}:{QA+8*x+7}], v[{sn}:{sn+15}]')
    first = {0: True, 1: True}
    def mPV(u, part, P):
        x, n = units[u]; f = VF + 8 * (n & 1)
        a.wait_lg(vt[n])
        c = '0' if first[x] else f'v[{O[x]}:{O[x]+15}]'
        first[x] = False
        a.i(f'v_mfma_f32_32x32x16_bf16 v[{O[x]}:{O[x]+15}], v[{f+4*part}:{f+4*part+3}], v[{P}:{P+3}], {c}')
    KVF = BIG + 96; DB = [BIG + 64, BIG + 80]; SC = BIG + 108
    rdK(0); rdK(1); rdV(0); rdV(1)
    for z in range(9, 12): a.i(f'v_mov_b32 v{KVF+z}, 0')
    mS(0, 0); mS(0, 1)
    pend = None
    for u in range(18):
        x, n = units[u]; sn = Sb[u & 1]
        E = lambda r: a.i(f'v_exp_f32 v{sn+r}, v{sn+r}')
        C = lambda r: a.i(f'v_cvt_pk_bf16_f32 v{sn + (r if r < 4 else r + 4)}, v{sn+2*r}, v{sn+2*r+1}')
        E(0); E(1)
        if pend: mPV(*pend); pend = None
        E(2); E(3); E(4)
        mS(u + 1, 0)
        if u + 1 < 18 and units[u + 1][0] == 1 or u == 0: rdK(units[min(u + 1, 17)][1] + 1)
        E(5); C(0); C(1); E(6); E(7)
        mS(u + 1, 1)
        E(8); C(2); C(3); E(9); E(10)
        mPV(u, 0, sn)
        if ASPLIT and u == UA: a.i('s_barrier')
        if u == UB:
            a.i('s_barrier')
            for s_ in range(2):
                a.i(f'ds_read_b64 v[{KVF+4*s_}:{KVF+4*s_+1}], v{vKV} offset:{16*s_}')
                a.i(f'ds_read_b64 v[{KVF+4*s_+2}:{KVF+4*s_+3}], v{vKV} offset:{16*s_+8}')
            a.i(f'ds_read_b32 v{KVF+8}, v{vKV} offset:32')
            a.i(f'ds_read_b32 v{G}, v{vGL}')
            ktok = a.i(f'ds_read_b32 v{G+1}, v{vGL} offset:32')
        if u in (UB + 1, UB + 2, UB + 3):
            a.wait_lg(ktok)
            s_ = u - UB - 1
            for x_ in range(2):
                c = '0' if s_ == 0 else f'v[{DB[x_]}:{DB[x_]+15}]'
                a.i(f'v_mfma_f32_32x32x16_bf16 v[{DB[x_]}:{DB[x_]+15}], v[{KVF+4*s_}:{KVF+4*s_+3}], v[{PH[x_]+4*s_}:{PH[x_]+4*s_+3}], {c}')
                if x_ == 0: E(11); E(12)
        else: E(11); E(12)
        E(13); C(4); C(5); E(14); E(15)
        if x == 0 and u > 0: rdV(n + 1)
        C(6); C(7)
        pend = (u, 1, sn + 8)
    mPV(*pend)
    a.stamp(10)
    def store_o(Oreg, side, x, scale):
        for j in range(5):
            a.i(f'v_pk_mul_f32 v[{Oreg+2*j}:{Oreg+2*j+1}], v[{Oreg+2*j}:{Oreg+2*j+1}], v[{scale}:{scale+1}] op_sel_hi:[1,0]')
        for j in range(4):
            a.i(f'v_cvt_pk_bf16_f32 v{Oreg+j}, v{Oreg+2*j}, v{Oreg+2*j+1}')
        a.i(f'buffer_store_dwordx4 v[{Oreg}:{Oreg+3}], v{vL16}, s[{sO16}:{sO16+3}], s{sSO+2*side+x} offen {ST}')
        a.i(f'v_cvt_pk_bf16_f32 v{XT+2*side+x}, v{Oreg+8}, v{Oreg+9}')
    for x in range(2):
        sc = SC + 2 * x
        a.i(f'v_add_f32 v{sc}, {f2u(1e-6)}, v{DB[x]+10}')
        a.i(f'v_rcp_f32 v{sc}, v{sc}')
        a.i(f'v_sub_f32 v{sc+1}, 1.0, v{G+x}')
        a.i(f'v_mul_f32 v{sc}, v{sc}, v{sc+1}')
        store_o(DB[x], 1, x, sc)
    lo, hi = (f2u(2.0 ** -30), f2u(2.0 ** 30)) if not FORCE_FALLBACK else (f2u(2.0 ** 30), f2u(2.0 ** 31))
    a.many(f'''
    v_min_f32 v{t[1]}, v{O[0]+10}, v{O[1]+10}
    v_max_f32 v{t[2]}, v{O[0]+10}, v{O[1]+10}
    v_add_f32 v{t[3]}, v{O[0]+10}, v{O[1]+10}
    v_rcp_f32 v{SC+4}, v{O[0]+10}
    v_rcp_f32 v{SC+6}, v{O[1]+10}
    v_cmp_nle_f32 vcc, {lo}, v{t[1]}
    s_mov_b64 s[24:25], vcc
    v_cmp_nge_f32 vcc, {hi}, v{t[2]}
    s_or_b64 s[24:25], s[24:25], vcc
    v_cmp_u_f32 vcc, v{t[3]}, v{t[3]}
    s_or_b64 s[24:25], s[24:25], vcc
    s_cbranch_scc1 L_exact
    ''')
    snapX = a.snapshot()
    for x in range(2):
        sc = SC + 4 + 2 * x
        a.i(f'v_mul_f32 v{sc}, v{sc}, v{G+x}')
        store_o(O[x], 0, x, sc)
    a.label('L_p3C')
    a.i('s_barrier')
    for ins in quad_transpose(a, [XT + k for k in range(4)], [XT + 4 + k for k in range(4)], sM): a.i(ins)
    a.i(f'buffer_store_dwordx4 v[{XT}:{XT+3}], v{vo2}, s[{sO2}:{sO2+3}], s{sSO+4} offen {ST}')
    sR3, sC3, sHas, sOut = 16, 17, 18, 24
    R3 = RegAlloc(24, 240)
    u = t
    vOut = R3.get(1); vA = R3.get(6); vOt = R3.get(1)
    TT = R3.get(4, 4)
    OF = R3.get(4 * NO, 4); P = 8; POOL = R3.get(4 * P, 4); ACC = R3.get(32, 4)
    a.i('s_load_dwordx2 s[12:13], s[0:1], 64')
    p3_ids(a, sR3, sC3, sHas)
    a.many(f'''
    s_mul_i32 s{sT1}, s{sR3}, 3
    s_add_u32 s{sT1}, s{sT1}, s{sWv}
    s_cmp_ge_u32 s{sT1}, 64
    s_cselect_b32 s19, 0, s{sHas}
    s_cmp_eq_u32 s{sWv}, 3
    s_cselect_b32 s19, 0, s19
    s_lshl_b32 s{sT2}, s{sT1}, 10
    s_add_u32 s20, s{sO16}, s{sT2}
    s_addc_u32 s21, s{sO16+1}, 0
    s_mov_b32 s22, {O16_SZ - 63*1024}
    s_mov_b32 s23, 0x20000
    s_lshl_b32 s{sT2}, s{sT1}, 7
    s_add_u32 s36, s{sO2}, s{sT2}
    s_addc_u32 s37, s{sO2+1}, 0
    s_mov_b32 s38, {O2_SZ - 63*128}
    s_mov_b32 s39, 0x20000
    s_mul_i32 s{sT3}, s{sT1}, {32*1152}
    s_lshl_b32 s{sT0}, s{sC3}, 7
    s_add_u32 s{sT3}, s{sT3}, s{sT0}
    v_lshrrev_b32 v{u[0]}, 5, v0
    v_bfe_u32 v{u[1]}, v0, 2, 2
    v_lshl_add_u32 v{u[2]}, v{u[0]}, 3, v{u[1]}
    v_lshlrev_b32 v{u[2]}, 7, v{u[2]}
    v_and_b32 v{u[3]}, 1, v0
    v_lshlrev_b32 v{u[3]}, 2, v{u[3]}
    v_bfe_u32 v{u[4]}, v0, 4, 1
    v_add_u32 v{u[3]}, v{u[3]}, v{u[4]}
    v_and_b32 v{u[1]}, 2, v{u[1]}
    v_xor_b32 v{u[3]}, v{u[3]}, v{u[1]}
    v_bfe_u32 v{u[4]}, v0, 1, 1
    v_lshl_add_u32 v{u[2]}, v{u[4]}, 3, v{u[2]}
    v_lshl_add_u32 v{vA+4}, v{u[3]}, 4, v{u[2]}
    v_xor_b32 v{u[3]}, 2, v{u[3]}
    v_lshl_add_u32 v{vA+5}, v{u[3]}, 4, v{u[2]}
    v_add_u32 v{vA}, {WO0}, v{vA+4}
    v_add_u32 v{vA+1}, {WO0}, v{vA+5}
    v_add_u32 v{vA+2}, {WO0+65536}, v{vA+4}
    v_add_u32 v{vA+3}, {WO0+65536}, v{vA+5}
    v_mul_u32_u24 v{vOut}, 1152, v{vTau}
    v_lshl_add_u32 v{vOut}, v{u[0]}, 6, v{vOut}
    v_and_b32 v{u[1]}, 3, v0
    v_lshl_add_u32 v{u[1]}, v{u[0]}, 2, v{u[1]}
    v_lshlrev_b32 v{u[1]}, 13, v{u[1]}
    v_bfe_u32 v{u[2]}, v0, 2, 3
    v_lshl_add_u32 v{vOt}, v{u[2]}, 4, v{u[1]}
    s_waitcnt lgkmcnt(0)
    ''')
    add64(a, sOut, 12, f's{sT3}')
    a.i(f's_sub_u32 s{sOut+2}, {2048*1152}, s{sT3}'); a.i(f's_mov_b32 s{sOut+3}, 0x20000')
    a.i('s_waitcnt vmcnt(0)')
    a.stamp(11)
    a.i('s_barrier')
    a.i('s_cmp_eq_u32 s19, 0')
    a.i('s_cbranch_scc1 L_fin')
    otok = {}; ftok = {}
    def loadO(step):
        if step >= 72: return
        side, ls = divmod(step, 36)
        f = OF + 4 * (step % NO)
        if ls < 32:
            a.i(f's_mov_b32 s{sT2}, {(side*32 + ls)*65536}')
            otok[step] = a.i(f'buffer_load_dwordx4 v[{f}:{f+3}], v{vL16}, s[20:23], s{sT2} offen {LD}')
        else:
            a.i(f's_mov_b32 s{sT2}, {(side*32 + 8*(ls-32))*8192}')
            otok[step] = a.i(f'buffer_load_dwordx4 v[{f}:{f+3}], v{vOt}, s[36:39], s{sT2} offen {LD}')
    def rd(q):
        if q >= 144: return
        step, m = divmod(q, 2)
        st = step // 4
        base, bi = (WO0, 0) if st < 8 else ((WO0 + 65536, 1) if st < 14 else (0, 2))
        f = POOL + 4 * (q % P)
        for r in range(2):
            ftok[q] = a.i(f'ds_read_b64_tr_b16 v[{f+2*r}:{f+2*r+1}], v{vA+2*bi+m} offset:{wo_off(st) - base + (16*(step%4)+4*r)*128}')
    a.i('s_barrier')
    a.stamp(12)
    for s in range(NO): loadO(s)
    Dd = 6
    for q in range(Dd): rd(q)
    for q in range(144):
        step, m = divmod(q, 2)
        a.wait_vm(otok[step]); a.wait_lg(ftok[q])
        f = POOL + 4 * (q % P); o = OF + 4 * (step % NO); acc = ACC + 16 * m
        c = '0' if step == 0 else f'v[{acc}:{acc+15}]'
        a.i(f'v_mfma_f32_32x32x16_bf16 v[{acc}:{acc+15}], v[{f}:{f+3}], v[{o}:{o+3}], {c}')
        rd(q + Dd)
        if m == 0 and step + 1 < 72 and (step + 1) % 36 >= 32:
            a.wait_vm(otok[step + 1])
            o2 = OF + 4 * ((step + 1) % NO)
            for ins in quad_transpose(a, [o2 + k for k in range(4)], [TT + k for k in range(4)], sM): a.i(ins)
        if m == 1: loadO(step + NO)
    for j in range(16):
        a.i(f'v_cvt_pk_bf16_f32 v{ACC+j}, v{ACC+2*j}, v{ACC+2*j+1}')
    for j in range(4):
        a.i(f'buffer_store_dwordx4 v[{ACC+4*j}:{ACC+4*j+3}], v{vOut}, s[{sOut}:{sOut+3}], 0 offen offset:{16*j}')
    a.label('L_fin')
    a.stamp_end(0, 14, 3)
    a.i('s_endpgm')
    a.label('L_exact')
    a.restore(snapX)
    a.i('s_nop 7')
    S = BIG; OE = VF
    for z in (13, 14, 15): a.i(f'v_mov_b32 v{KF+z}, 0')
    for x in range(2):
        kt = {}
        def rdK2(n):
            f = KF + 8 * (n & 1)
            a.i(f'ds_read_b128 v[{f}:{f+3}], v{vK} offset:{(x+n)*KV_BLK}')
            kt[n] = a.i(f'ds_read_b32 v{f+4}, v{vK2} offset:{(x+n)*KV_BLK}')
        for z in (5, 6, 7): a.i(f'v_mov_b32 v{KF+z}, 0')
        rdK2(0); rdK2(1)
        for n in range(9):
            a.wait_lg(kt[n])
            f = KF + 8 * (n & 1); sn = S + 16 * n
            c = f'v[{ME}:{ME+15}]' if n == 0 else (f'v[{MD}:{MD+15}]' if n == 8 else '0')
            a.i(f'v_mfma_f32_32x32x16_bf16 v[{sn}:{sn+15}], v[{f}:{f+3}], v[{QA+8*x}:{QA+8*x+3}], {c}')
            a.i(f'v_mfma_f32_32x32x16_bf16 v[{sn}:{sn+15}], v[{f+4}:{f+7}], v[{QA+8*x+4}:{QA+8*x+7}], v[{sn}:{sn+15}]')
            if n + 2 < 9: rdK2(n + 2)
        a.flush_hazards()
        a.i(f's_lshl_b32 s{sT0}, s{sWv}, 1')
        for n in range(8):
            a.i(f's_add_u32 s{sT1}, s{sT0}, {x+n}')
            a.i(f's_cmp_ge_u32 s{sT1}, s{sVF}')
            a.i(f's_cbranch_scc1 L_valid{x}')
            for r in range(16): a.i(f'v_mov_b32 v{S+16*n+r}, {NEG}')
        a.label(f'L_valid{x}')
        m = t[0:4]
        for k in range(4):
            b = S + 36 * k
            a.i(f'v_max3_f32 v{m[k]}, v{b}, v{b+1}, v{b+2}')
        for j in range(3, 35, 2):
            for k in range(4):
                b = S + 36 * k
                a.i(f'v_max3_f32 v{m[k]}, v{m[k]}, v{b+j}, v{b+j+1}')
        for k in range(4): a.i(f'v_max_f32 v{m[k]}, v{m[k]}, v{S+36*k+35}')
        a.i(f'v_max3_f32 v{m[0]}, v{m[0]}, v{m[1]}, v{m[2]}')
        a.i(f'v_max_f32 v{m[0]}, v{m[0]}, v{m[3]}')
        a.i(f'v_mov_b32 v{m[1]}, v{m[0]}')
        a.i(f'v_permlane32_swap_b32 v{m[0]}, v{m[1]}')
        a.i(f'v_max_f32 v{m[0]}, v{m[0]}, v{m[1]}')
        for n in range(9):
            sn = S + 16 * n
            for s in range(2):
                for rd_ in range(2):
                    vtk = a.i(f'ds_read_b64_tr_b16 v[{KF+4*s+2*rd_}:{KF+4*s+2*rd_+1}], v{vV+2*s+rd_} offset:{(x+n)*KV_BLK}')
            for r in range(16): a.i(f'v_sub_f32 v{sn+r}, v{sn+r}, v{m[0]}')
            for r in range(16): a.i(f'v_exp_f32 v{sn+r}, v{sn+r}')
            for r in range(8): a.i(f'v_cvt_pk_bf16_f32 v{sn+r}, v{sn+2*r}, v{sn+2*r+1}')
            a.wait_lg(vtk)
            c = '0' if n == 0 else f'v[{OE}:{OE+15}]'
            a.i(f'v_mfma_f32_32x32x16_bf16 v[{OE}:{OE+15}], v[{KF}:{KF+3}], v[{sn}:{sn+3}], {c}')
            a.i(f'v_mfma_f32_32x32x16_bf16 v[{OE}:{OE+15}], v[{KF+4}:{KF+7}], v[{sn+4}:{sn+7}], v[{OE}:{OE+15}]')
        sc = S
        a.i(f'v_rcp_f32 v{sc}, v{OE+10}')
        a.i(f'v_mul_f32 v{sc}, v{sc}, v{G+x}')
        store_o(OE, 0, x, sc)
    a.i('s_nop 1')
    a.i('s_branch L_p3C')
    cons_lines = a.lines; a.lines = []
    a.restore(snapE)
    vXoff, vWoff, h = 1, 5, [14 + k for k in range(8)]
    if PF_CODE:
        a.many(f'''
        s_getpc_b64 s[54:55]
        L_pc:
        s_sub_u32 s54, s54, L_pc-{name}
        s_subb_u32 s55, s55, 0
        s_lshl_b32 s56, s{sT1}, 2
        s_add_u32 s56, s56, s{sWv}
        s_lshl_b32 s56, s56, 7
        v_lshl_add_u32 v{h[4]}, v0, 14, s56
        v_min_u32 v{h[4]}, L_code_end-{name}-4, v{h[4]}
        global_load_dword v{h[5]}, v{h[4]}, s[54:55]
        ''')
    a.many(f'''
    s_lshl_b32 s{sMX}, s{sWv}, 12
    s_lshl_b32 s{sMW}, s{sWv}, 10
    s_lshr_b32 s{sT2}, s{sWv}, 1
    s_lshl_b32 s{sT2}, s{sT2}, 5
    s_and_b32 s{sT3}, s{sWv}, 1
    s_add_u32 s{sT2}, s{sT2}, s{sT3}
    s_mul_i32 s{sT2}, s{sT2}, {2*1152}
    v_lshrrev_b32 v{h[0]}, 3, v0
    v_lshrrev_b32 v{h[1]}, 4, v0
    v_and_b32 v{h[2]}, 7, v0
    v_mul_u32_u24 v{h[0]}, {4*1152}, v{h[0]}
    v_add_u32 v{h[0]}, s{sT2}, v{h[0]}
    v_xor_b32 v{h[3]}, v{h[2]}, v{h[1]}
    v_lshl_add_u32 v{vXoff}, v{h[3]}, 4, v{h[0]}
    v_xor_b32 v{h[3]}, 4, v{h[3]}
    v_lshl_add_u32 v{vXoff+1}, v{h[3]}, 4, v{h[0]}
    v_add_u32 v{vXoff+1}, {32*1152}, v{vXoff+1}
    v_add_u32 v{vXoff+2}, 1152, v{vXoff}
    v_add_u32 v{vXoff+3}, 1152, v{vXoff+1}
    s_lshl_b32 s{sT2}, s{sWv}, 6
    v_add_u32 v{h[0]}, s{sT2}, v0
    s_mov_b32 s{sT3}, 3456
    s_cmp_ge_u32 s{sT1}, 16
    s_cbranch_scc1 L_HV
    ''')
    snapH = a.snapshot()
    def xsrd():
        a.i('s_waitcnt lgkmcnt(0)')
        a.i(f's_mul_i32 s{sT2}, s{sRow}, {128*1152}')
        add64(a, sX, 4, f's{sT2}')
        srd(a, sX, sX, sX+1, 128*1152)
    def wp2():
        srd(a, sP, 10, 11, 32*648)
        wphi_dma_addr(a, 24, 0, h[0], h[1], sOOB)
        p2_ids(a, 53, 54)
        a.i(f's_mul_i32 s{sT0}, s53, 648')
        a.i(f's_mov_b32 s{sT1}, 0')
        a.i(f's_cmp_eq_u32 s{sWv}, 0')
        a.i(f's_cselect_b32 s{sT1}, {WP2}, {WP2+768}' if False else f's_cselect_b32 s{sT1}, 0, 768')
        wphi_dma(a, 24, sP, sT0, sT1, WP2)
    for n in range(9):
        a.many(f'''
        v_add_u32 v{h[1]}, {256*n}, v{h[0]}
        v_mul_u32_u24 v{h[2]}, 1821, v{h[1]}
        v_lshrrev_b32 v{h[2]}, 16, v{h[2]}
        v_mul_u32_u24 v{h[3]}, 36, v{h[2]}
        v_sub_u32 v{h[1]}, v{h[1]}, v{h[3]}
        v_bfe_u32 v{h[3]}, v{h[2]}, 3, 1
        v_lshlrev_b32 v{h[3]}, 1, v{h[3]}
        v_sub_u32 v{h[1]}, v{h[1]}, v{h[3]}
        v_add_u32 v{h[3]}, 36, v{h[1]}
        v_min_u32 v{h[1]}, v{h[1]}, v{h[3]}
        v_lshlrev_b32 v{h[1]}, 4, v{h[1]}
        v_mad_u32_u24 v{vWoff+n}, v{h[2]}, s{sT3}, v{h[1]}
        ''')
    xsrd()
    a.many(f'''
    s_mul_i32 s{sT2}, s{sC}, 1152
    s_cmp_eq_u32 s{sC}, 3
    s_cselect_b32 s{sT2}, 0, s{sT2}
    s_cselect_b32 s{sW}, s8, s6
    s_cselect_b32 s{sW+1}, s9, s7
    s_mul_i32 s{sT3}, s{sHH}, 576
    s_add_u32 s{sT2}, s{sT2}, s{sT3}
    s_add_u32 s{sW}, s{sW}, s{sT2}
    s_addc_u32 s{sW+1}, s{sW+1}, 0
    s_sub_u32 s{sW+2}, {576*3456}, s{sT2}
    s_mov_b32 s{sW+3}, 0x20000
    ''')
    gemm_producer(a, RINGR, 9, 4, vWoff, vXoff, wp2)
    a.i('s_branch L_p2H')
    a.label('L_HV')
    a.restore(snapH)
    a.many(f'''
    s_mov_b32 s55, s{sC}
    s_lshl_b32 s{sT0}, s{sHH}, 2
    s_add_u32 s{sC}, s{sC}, s{sT0}
    v_mov_b32 v{h[7]}, s{sOOB}
    ''')
    for n in range(5):
        a.many(f'''
        v_add_u32 v{h[1]}, {256*n}, v{h[0]}
        v_mul_u32_u24 v{h[2]}, 3641, v{h[1]}
        v_lshrrev_b32 v{h[2]}, 16, v{h[2]}
        v_mul_u32_u24 v{h[3]}, 18, v{h[2]}
        v_sub_u32 v{h[1]}, v{h[1]}, v{h[3]}
        v_and_b32 v{h[3]}, 0x73, v{h[2]}
        v_bfe_u32 v{h[4]}, v{h[2]}, 2, 1
        v_lshl_add_u32 v{h[3]}, v{h[4]}, 3, v{h[3]}
        v_bfe_u32 v{h[4]}, v{h[2]}, 3, 1
        v_lshl_add_u32 v{h[3]}, v{h[4]}, 2, v{h[3]}
        v_mul_u32_u24 v{h[3]}, s{sT3}, v{h[3]}
        v_lshl_add_u32 v{h[3]}, v{h[1]}, 4, v{h[3]}
        v_add_u32 v{h[4]}, {1152-144}, v{h[3]}
        v_cmp_lt_u32 vcc, 8, v{h[1]}
        v_cndmask_b32 v{vWoff+n}, v{h[3]}, v{h[4]}, vcc
        ''')
        if n == 4:
            a.i(f'v_cmp_lt_u32 vcc, 63, v{h[2]}')
            a.i(f'v_cndmask_b32 v{vWoff+n}, v{vWoff+n}, v{h[7]}, vcc')
    xsrd()
    a.many(f'''
    s_mul_i32 s{sT2}, s{sC}, 144
    s_add_u32 s{sT2}, s{sT2}, 1152
    s_add_u32 s{sW}, s8, s{sT2}
    s_addc_u32 s{sW+1}, s9, 0
    s_sub_u32 s{sW+2}, {576*3456}, s{sT2}
    s_mov_b32 s{sW+3}, 0x20000
    ''')
    gX, gG, gA, vgx, vgg = 32, 48, 64, 28, 27
    def exV():
        wp2()
        a.i(f's_lshl_b32 s{sT0}, s{sC}, 2')
        a.i(f's_add_u32 s{sT0}, s{sT0}, s{sWv}')
        a.i(f's_mul_i32 s{sT0}, s{sT0}, 648')
        a.i(f's_mul_i32 s{sT1}, s{sWv}, 768')
        wphi_dma(a, 24, sP, sT0, sT1, WPH)
        a.many(f'''
        v_and_b32 v{h[0]}, 31, v0
        v_lshrrev_b32 v{h[1]}, 5, v0
        v_bfe_u32 v{h[2]}, v0, 1, 3
        v_lshlrev_b32 v{h[3]}, 2, v{h[1]}
        v_xor_b32 v{h[2]}, v{h[2]}, v{h[3]}
        v_lshlrev_b32 v{h[0]}, 7, v{h[0]}
        v_add_u32 v{h[0]}, s{sMX}, v{h[0]}
        v_lshlrev_b32 v{vgg}, 6, v{h[1]}
        v_add_u32 v{vgg}, {GOFS}, v{vgg}
        ''')
        for j in range(4):
            a.i(f'v_xor_b32 v{h[3]}, {j}, v{h[2]}')
            a.i(f'v_lshl_add_u32 v{vgx+j}, v{h[3]}, 4, v{h[0]}')
            a.i(f'v_mov_b32 v{gA+j}, 0')
    def earlyV():
        srd(a, sG, 12, 13, 1152)
        a.i(f'v_lshlrev_b32 v{h[0]}, 4, v0')
        a.i(f's_add_u32 m0, s{sMW}, {GOFS}')
        a.i(f'buffer_load_dwordx4 v{h[0]}, s[{sG}:{sG+3}], s{sMW} offen lds')
    def gate_stage(st):
        a.i('s_cmp_lg_u32 s55, 0')
        a.i(f's_cbranch_scc1 L_ng{st}')
        for j in range(4):
            a.i(f'ds_read_b128 v[{gX+4*j}:{gX+4*j+3}], v{vgx+j} offset:{RINGV.XB[st%4]}')
            a.i(f'ds_read_b128 v[{gG+4*j}:{gG+4*j+3}], v{vgg} offset:{128*st + 16*j}')
        a.i('s_waitcnt lgkmcnt(0)')
        for k in range(4):
            for j in range(4): a.i(f'v_dot2_f32_bf16 v{gA+j}, v{gX+4*j+k}, v{gG+4*j+k}, v{gA+j}')
            if k < 3: a.i('s_nop 1')
        a.label(f'L_ng{st}')
    gemm_producer(a, RINGV, 5, 2, vWoff, vXoff, exV, earlyV, after=gate_stage)
    a.i('s_barrier')
    a.many(f'''
    s_cmp_lg_u32 s55, 0
    s_cbranch_scc1 L_ngs
    s_nop 3
    v_add_f32 v{gA}, v{gA}, v{gA+1}
    v_add_f32 v{gA+2}, v{gA+2}, v{gA+3}
    v_add_f32 v{gA}, v{gA}, v{gA+2}
    v_mov_b32 v{gA+1}, v{gA}
    v_permlane32_swap_b32 v{gA}, v{gA+1}
    v_add_f32 v{gA}, v{gA}, v{gA+1}
    v_mul_f32 v{gA}, {f2u(-LOG2E)}, v{gA}
    v_exp_f32 v{gA}, v{gA}
    s_add_u32 s{sG}, s14, {G_OFF}
    s_addc_u32 s{sG+1}, s15, 0
    s_mov_b32 s{sG+2}, 8192
    v_add_f32 v{gA}, 1.0, v{gA}
    v_rcp_f32 v{gA}, v{gA}
    s_lshl_b32 s{sT0}, s{sRow}, 9
    s_lshl_b32 s{sT1}, s{sWv}, 7
    s_add_u32 s{sT0}, s{sT0}, s{sT1}
    v_lshlrev_b32 v{h[0]}, 2, v0
    v_and_b32 v{h[1]}, 35, v0
    v_cmp_eq_u32 vcc, 0, v{h[1]}
    v_cndmask_b32 v{h[0]}, v{h[7]}, v{h[0]}, vcc
    v_mov_b32_dpp v{gA+1}, v{gA} quad_perm:[1,1,1,1] row_mask:0xf bank_mask:0xf
    v_mov_b32_dpp v{gA+2}, v{gA} quad_perm:[2,2,2,2] row_mask:0xf bank_mask:0xf
    v_mov_b32_dpp v{gA+3}, v{gA} quad_perm:[3,3,3,3] row_mask:0xf bank_mask:0xf
    buffer_store_dwordx4 v[{gA}:{gA+3}], v{h[0]}, s[{sG}:{sG+3}], s{sT0} offen {ST}
    L_ngs:
    ''')
    a.i('s_mov_b32 s59, 1')
    a.i('s_branch L_p2H2')
    a.label('L_p2H')
    a.i('s_mov_b32 s59, 0')
    a.label('L_p2H2')
    a.reset_state(); a.vm_issued = 1
    a.stamp(1)
    sWo = [16, 20]; sKA, sKV, sGt, sPf = 24, 28, 32, 8
    sWh, sWt, sM3 = 36, 37, 38
    sR3, sC3, sHas = 39, 44, 45
    hT, hL16, hF, hA, hPt, hWh, hWt, hZ, hTag, hLate, hKv, hF2 = 1, 2, 3, 4, 5, 6, 7, 8, 9, 10, 11, 12
    h = [80 + k for k in range(8)]
    PART = 16
    tag_load(a, hZ, hTag)
    a.i('s_load_dwordx2 s[4:5], s[0:1], 16')
    a.i('s_load_dwordx2 s[6:7], s[0:1], 48')
    flag_srd(a)
    p2_ids(a, sHead, sT8)
    p3_ids(a, sR3, sC3, sHas)
    a.many(f'''
    s_lshl_b32 s{sT0}, s{sWv}, 6
    v_add_u32 v{hT}, s{sT0}, v0
    v_lshlrev_b32 v{hL16}, 4, v0
    s_waitcnt lgkmcnt(0)
    ''')
    if PF_WO:
        srd(a, sWo[0], 4, 5, 576*1152); srd(a, sWo[1], 6, 7, 576*1152)
        a.many(f'''
        s_lshr_b32 s{sT1}, s2, 3
        s_lshl_b32 s{sT1}, s{sT1}, 15
        v_lshlrev_b32 v{h[0]}, 7, v{hT}
        buffer_load_dword v{h[6]}, v{h[0]}, s[{sWo[0]}:{sWo[0]+3}], s{sT1} offen
        buffer_load_dword v{h[7]}, v{h[0]}, s[{sWo[1]}:{sWo[1]+3}], s{sT1} offen
        ''')
    hS1, hS2, hP2 = 13, 14, 15
    a.many(f'''
    s_lshl_b32 s{sT0}, s{sT8}, 5
    s_add_u32 s{sT0}, s{sT0}, s{sHead}
    s_lshl_b32 s{sT0}, s{sT0}, 8
    s_add_u32 s{sT0}, s{sT0}, {M1_OFF}
    v_and_b32 v{h[0]}, 3, v0
    v_bfe_u32 v{h[1]}, v0, 2, 2
    v_add_u32 v{h[2]}, -1, v{h[0]}
    v_cmp_gt_u32 s[24:25], 2, v{h[2]}
    v_cmp_lt_u32 s[28:29], 1, v{h[1]}
    s_cmp_eq_u32 s{sT8}, 0
    s_cselect_b64 s[24:25], 0, s[24:25]
    s_or_b64 s[24:25], s[24:25], s[28:29]
    v_and_b32 v{h[0]}, 15, v0
    v_cndmask_b32 v{h[1]}, 9, v{h[0]}, s[24:25]
    v_lshl_add_u32 v{hA}, v{h[1]}, 2, s{sT0}
    v_add_u32 v{h[0]}, 32, v{h[0]}
    v_and_b32 v{h[1]}, 1, v0
    v_add_u32 v{h[1]}, 16, v{h[1]}
    v_cmp_gt_u32 vcc, 16, v0
    v_cndmask_b32 v{h[0]}, v{h[1]}, v{h[0]}, vcc
    v_lshl_add_u32 v{hLate}, v{h[0]}, 2, s{sT0}
    ''')
    a.many(f'''
    s_and_b32 s{sT0}, s2, 7
    s_lshr_b32 s{sT1}, s2, 3
    s_and_b32 s24, s{sT0}, 1
    s_lshr_b32 s{sT0}, s{sT0}, 1
    s_lshl_b32 s{sT0}, s{sT0}, 2
    s_and_b32 s25, s{sT1}, 3
    s_add_u32 s25, s25, s{sT0}
    s_bfe_u32 s26, s{sT1}, 0x20002
    s_lshr_b32 s27, s25, 1
    s_and_b32 s28, s25, 1
    s_lshl_b32 s29, s27, 5
    s_lshl_b32 s30, s24, 4
    s_add_u32 s29, s29, s30
    v_and_b32 v{h[0]}, 15, v0
    v_add_u32 v{h[0]}, s29, v{h[0]}
    v_lshlrev_b32 v{h[0]}, 8, v{h[0]}
    v_mov_b32 v{h[3]}, s{sOOB}
    s_cmp_eq_u32 s59, 0
    s_cbranch_scc0 L_sV
    s_lshl_b32 s30, s28, 2
    s_add_u32 s30, s30, s26
    s_lshl_b32 s30, s30, 2
    s_add_u32 s30, s30, {M1_OFF}
    v_add_u32 v{h[0]}, s30, v{h[0]}
    v_add_u32 v{h[1]}, 32, v{h[0]}
    v_add_u32 v{h[2]}, 8192, v{h[0]}
    s_sub_u32 s30, s26, 1
    s_cmp_lt_u32 s30, 2
    s_cselect_b32 s30, 32, 16
    s_cmp_lt_u32 s27, 7
    s_cselect_b32 s30, s30, 16
    v_cmp_gt_u32 vcc, 16, v0
    v_cndmask_b32 v{h[1]}, v{h[2]}, v{h[1]}, vcc
    v_cmp_gt_u32 vcc, s30, v0
    v_cndmask_b32 v{hS1}, v{h[3]}, v{h[1]}, vcc
    s_branch L_sD
    L_sV:
    s_lshl_b32 s30, s28, 2
    s_add_u32 s30, s30, {M1_OFF + 64}
    v_add_u32 v{h[0]}, s30, v{h[0]}
    s_lshl_b32 s30, s24, 2
    s_add_u32 s30, s30, s26
    s_lshl_b32 s30, s30, 2
    v_and_b32 v{h[1]}, 3, v0
    v_bfe_u32 v{h[2]}, v0, 2, 3
    v_lshl_add_u32 v{h[1]}, v{h[2]}, 5, v{h[1]}
    v_add_u32 v{h[1]}, s30, v{h[1]}
    s_lshl_b32 s30, s25, 2
    s_add_u32 s30, s30, {M1_OFF + 128}
    v_lshl_add_u32 v{h[1]}, v{h[1]}, 8, s30
    s_cmp_eq_u32 s26, 0
    s_cselect_b32 s30, 48, 32
    v_cmp_gt_u32 vcc, 32, v0
    v_cndmask_b32 v{h[1]}, v{h[0]}, v{h[1]}, vcc
    v_cmp_gt_u32 vcc, s30, v0
    v_cndmask_b32 v{hS1}, v{h[3]}, v{h[1]}, vcc
    L_sD:
    ''')
    a.many(f'''
    s_mul_i32 s24, s{sT8}, {8*21846}
    s_lshr_b32 s24, s24, 16
    v_mul_u32_u24 v{h[0]}, 7282, v0
    v_lshrrev_b32 v{h[0]}, 16, v{h[0]}
    v_add_u32 v{h[0]}, s24, v{h[0]}
    v_mul_u32_u24 v{h[0]}, 96, v{h[0]}
    v_lshrrev_b32 v{h[0]}, 8, v{h[0]}
    v_sub_u32 v{h[1]}, s{sT8}, v{h[0]}
    s_mul_i32 s24, s24, 9
    v_add_u32 v{h[2]}, s24, v0
    v_lshlrev_b32 v{h[0]}, 1, v{h[2]}
    v_add_u32 v{h[0]}, v{h[0]}, v{h[1]}
    s_lshl_b32 s24, s{sHead}, 2
    s_add_u32 s24, s24, {M2_OFF}
    v_lshl_add_u32 v{h[0]}, v{h[0]}, 7, s24
    v_cmp_gt_u32 vcc, 2, v{h[1]}
    v_cndmask_b32 v{h[0]}, v{h[3]}, v{h[0]}, vcc
    v_cmp_gt_u32 vcc, 198, v{h[2]}
    v_cndmask_b32 v{h[0]}, v{h[3]}, v{h[0]}, vcc
    v_cmp_gt_u32 vcc, 36, v0
    v_cndmask_b32 v{hS2}, v{h[3]}, v{h[0]}, vcc
    s_mul_i32 s{sT0}, s{sR3}, 96
    s_add_u32 s{sT1}, s{sT0}, 95
    s_min_u32 s{sT1}, s{sT1}, 2047
    s_lshr_b32 s{sT0}, s{sT0}, 8
    s_lshr_b32 s{sT1}, s{sT1}, 8
    s_cmp_eq_u32 s{sT0}, s{sT1}
    s_cselect_b32 s{sT0}, 31, 63
    v_and_b32 v{h[0]}, s{sT0}, v0
    s_mul_i32 s{sT0}, s{sR3}, 9
    s_add_u32 s{sT0}, s{sT0}, s{sC3}
    s_lshl_b32 s{sT0}, s{sT0}, 8
    s_add_u32 s{sT0}, s{sT0}, {M2_OFF}
    v_lshl_add_u32 v{hP2}, v{h[0]}, 2, s{sT0}
    ''')
    a.many(f'''
    v_lshrrev_b32 v{h[0]}, 3, v0
    v_and_b32 v{h[1]}, 7, v0
    v_bfe_u32 v{h[2]}, v0, 4, 1
    v_lshlrev_b32 v{h[2]}, 1, v{h[2]}
    v_xor_b32 v{h[1]}, v{h[1]}, v{h[2]}
    v_lshlrev_b32 v{h[1]}, 4, v{h[1]}
    v_mul_u32_u24 v{hWh}, 1152, v{h[0]}
    v_add_u32 v{hWh}, v{hWh}, v{h[1]}
    v_lshrrev_b32 v{h[2]}, 1, v{h[0]}
    v_mul_u32_u24 v{h[2]}, 18, v{h[2]}
    v_and_b32 v{h[3]}, 1, v{h[0]}
    v_add3_u32 v{h[2]}, v{h[2]}, v{h[3]}, 16
    v_mul_u32_u24 v{hWt}, 1152, v{h[2]}
    v_add_u32 v{hWt}, v{hWt}, v{h[1]}
    s_mul_i32 s{sWh}, s{sWv}, {18*1152}
    s_mul_i32 s{sWt}, s{sWv}, {8*18*1152}
    s_lshl_b32 s{sM3}, s{sWv}, 11
    v_lshlrev_b32 v{hPt}, 4, v{hT}
    v_mov_b32 v{h[0]}, s{sOOB}
    v_cmp_gt_u32 vcc, 200, v{hT}
    v_cndmask_b32 v{hPt}, v{h[0]}, v{hPt}, vcc
    ''')
    a.many(f'''
    v_and_b32 v{h[0]}, 15, v{hT}
    v_lshrrev_b32 v{h[1]}, 4, v{hT}
    v_mul_u32_u24 v{h[0]}, 80, v{h[0]}
    v_lshl_add_u32 v{h[0]}, v{h[1]}, 3, v{h[0]}
    v_add_u32 v{h[1]}, {-160 & 0xffffffff}, v{hT}
    v_and_b32 v{h[2]}, 3, v{h[1]}
    v_lshrrev_b32 v{h[1]}, 2, v{h[1]}
    v_mul_u32_u24 v{h[2]}, 80, v{h[2]}
    v_lshl_add_u32 v{h[1]}, v{h[1]}, 3, v{h[2]}
    v_add_u32 v{h[1]}, 1280, v{h[1]}
    v_cmp_gt_u32 vcc, 160, v{hT}
    v_cndmask_b32 v{h[0]}, v{h[1]}, v{h[0]}, vcc
    v_mov_b32 v{h[1]}, 1920
    v_cmp_gt_u32 vcc, 200, v{hT}
    v_cndmask_b32 v{hKv}, v{h[1]}, v{h[0]}, vcc
    s_mul_i32 s{sT1}, s{sHead}, {64*KV_BLK}
    s_add_u32 s{sT1}, s{sT1}, {KA_OFF}
    ''')
    add64(a, sKA, 14, f's{sT1}'); srd(a, sKA, sKA, sKA+1, 64*KV_BLK)
    a.i(f's_mul_i32 s{sT1}, s{sHead}, {16*KVP_BLK}')
    a.i(f's_add_u32 s{sT1}, s{sT1}, {KVP_OFF}')
    add64(a, sKV, 14, f's{sT1}'); srd(a, sKV, sKV, sKV+1, 16*KVP_BLK)
    a.i(f's_add_u32 s{sGt}, s14, {G_OFF}'); a.i(f's_addc_u32 s{sGt+1}, s15, 0'); srd(a, sGt, sGt, sGt+1, 8192)
    a.i(f's_lshl_b32 s{sT0}, s{sC3}, 7')
    for side in range(2):
        add64(a, sWo[side], 4 + 2 * side, f's{sT0}')
        a.i(f's_sub_u32 s{sWo[side]+2}, {576*1152}, s{sT0}')
        a.i(f's_mul_i32 s{sWo[side]+2}, s{sWo[side]+2}, s{sHas}')
        a.i(f's_mov_b32 s{sWo[side]+3}, 0x20000')
    if PF_O:
        a.many(f'''
        s_add_u32 s{sPf}, s14, {O16_OFF}
        s_addc_u32 s{sPf+1}, s15, 0
        s_mov_b32 s{sPf+2}, {O16_SZ + O2_SZ}
        s_mov_b32 s{sPf+3}, 0x20000
        s_mul_i32 s{sT0}, s{sWv}, 48
        v_add_u32 v{h[0]}, s{sT0}, v0
        v_mul_u32_u24 v{h[1]}, 2731, v{h[0]}
        v_lshrrev_b32 v{h[1]}, 16, v{h[1]}
        v_mul_u32_u24 v{h[2]}, 24, v{h[1]}
        v_sub_u32 v{h[2]}, v{h[0]}, v{h[2]}
        v_lshlrev_b32 v{h[2]}, 7, v{h[2]}
        v_lshl_add_u32 v{h[1]}, v{h[1]}, 16, v{h[2]}
        s_lshl_b32 s{sT0}, s{sC3}, 19
        s_mul_i32 s{sT1}, s{sR3}, 3072
        s_add_u32 s{sT0}, s{sT0}, s{sT1}
        v_add_u32 v{h[1]}, s{sT0}, v{h[1]}
        v_mul_u32_u24 v{h[2]}, 21846, v{h[0]}
        v_lshrrev_b32 v{h[2]}, 16, v{h[2]}
        v_mul_u32_u24 v{h[3]}, 3, v{h[2]}
        v_sub_u32 v{h[3]}, v{h[0]}, v{h[3]}
        v_lshlrev_b32 v{h[3]}, 7, v{h[3]}
        v_lshl_add_u32 v{h[2]}, v{h[2]}, 13, v{h[3]}
        s_mul_i32 s{sT1}, s{sR3}, 384
        s_add_u32 s{sT1}, s{sT1}, {O16_SZ}
        v_add_u32 v{h[2]}, s{sT1}, v{h[2]}
        s_cmp_eq_u32 s{sC3}, 8
        s_cselect_b64 vcc, -1, 0
        v_cndmask_b32 v{h[1]}, v{h[1]}, v{h[2]}, vcc
        v_mov_b32 v{h[2]}, s{sOOB}
        v_cmp_gt_u32 vcc, 48, v0
        v_cndmask_b32 v{hF2}, v{h[2]}, v{h[1]}, vcc
        ''')
    wlist = [(st, k) for st in range(18) for k in range(2)]
    def dmaW(st, k):
        side, ls = divmod(st, 9)
        if ls < 8:
            a.i(f's_add_u32 s{sT2}, s{sWh}, {(4*ls*18 + 8*k)*1152}'); va = hWh
        else:
            a.i(f's_add_u32 s{sT2}, s{sWt}, {k*4*18*1152}'); va = hWt
        a.i(f's_add_u32 m0, s{sM3}, {wo_off(st) + k*1024}')
        tok = a.i(f'buffer_load_dwordx4 v{va}, s[{sWo[side]}:{sWo[side]+3}], s{sT2} offen lds')
        if WWIN and tok - WWIN >= 0: a.wait_vm(tok - WWIN)
        return tok
    a.many(f'''
    s_mov_b32 s{sCnt}, {SPIN}
    L_tg:
    s_waitcnt vmcnt(0)
    v_readfirstlane_b32 s{sTag}, v{hTag}
    s_cmp_lg_u32 s{sTag}, 0
    s_cbranch_scc1 L_tgk
    global_load_dword v{hTag}, v{hZ}, s[96:97] sc1
    s_sub_u32 s{sCnt}, s{sCnt}, 1
    s_cbranch_scc0 L_tg
    L_tgk:
    ''')
    a.many(f'''
    s_lshl_b32 s{sT1}, s{sT8}, 3
    s_sub_u32 s{sT1}, s{sT1}, 8
    s_mul_i32 s{sT1}, s{sT1}, {KV_BLK}
    s_lshl_b32 s47, s{sWv}, 10
    s_add_u32 s{sT1}, s{sT1}, s47
    s_cmp_eq_u32 s59, 0
    s_cbranch_scc1 L_nvb
    s_barrier
    L_nvb:
    ''')
    a.i('s_barrier')
    a.stamp(2)
    a.i(f's_cmp_lg_u32 s{sWv}, 1')
    a.i('s_cbranch_scc1 L_ns1')
    a.i(f'buffer_store_dword v{hTag}, v{hS1}, s[{sFl}:{sFl+3}], 0 offen sc1')
    a.label('L_ns1')
    a.i(f's_cmp_lg_u32 s{sWv}, 0')
    a.i('s_cbranch_scc1 L_nf1')
    poll(a, 'pollE', hA, hF)
    a.label('L_nf1')
    a.vm_done = a.vm_issued
    a.stamp(3)
    a.i('s_barrier')
    for k in range(10):
        a.i(f's_cmp_lt_i32 s{sT1}, 0')
        a.i(f's_cselect_b32 s{sT3}, s{sOOB}, s{sT1}')
        a.i(f'v_add_u32 v{h[k%5]}, s{sT3}, v{hL16}')
        a.i(f's_add_u32 m0, s47, {KB + 4096*k}')
        tk = a.i(f'buffer_load_dwordx4 v{h[k%5]}, s[{sKA}:{sKA+3}], 0 offen {LD} lds')
        if k == ASPLIT - 1: tokA1 = tk
        if k < 9: a.i(f's_add_u32 s{sT1}, s{sT1}, 4096')
    a.i(f'buffer_load_dword v{hF}, v{hLate}, s[{sFl}:{sFl+3}], 0 offen sc1')
    if ASPLIT:
        a.wait_vm(tokA1); a.i('s_barrier')
    a.i('s_waitcnt vmcnt(0)')
    a.stamp(4)
    a.i('s_barrier')
    a.stamp(5)
    poll(a, 'pollL', hLate, hF, first_loaded=True)
    a.vm_done = a.vm_issued
    a.stamp(6)
    a.i(f's_mov_b32 s{sT1}, 0')
    for p in range(16):
        a.i(f'buffer_load_dwordx4 v[{PART+4*p}:{PART+4*p+3}], v{hPt}, s[{sKV}:{sKV+3}], s{sT1} offen {LD}')
        if p < 15: a.i(f's_add_u32 s{sT1}, s{sT1}, {KVP_BLK}')
    a.i(f's_lshl_b32 s{sT1}, s{sT8}, 10')
    a.i(f'v_lshlrev_b32 v{h[0]}, 2, v{hT}')
    ptok = a.i(f'buffer_load_dword v{h[1]}, v{h[0]}, s[{sGt}:{sGt+3}], s{sT1} offen {LD}')
    for _ in range(NFIRST): dmaW(*wlist.pop(0))
    a.wait_vm(ptok)
    a.stamp(7)
    a.i(f'ds_write_b32 v{h[0]}, v{h[1]} offset:{GL}')
    for lvl in (8, 4, 2, 1):
        for p in range(lvl):
            for hh in (0, 2):
                x = PART + 4 * p + hh; y = PART + 4 * (p + lvl) + hh
                a.i(f'v_pk_add_f32 v[{x}:{x+1}], v[{x}:{x+1}], v[{y}:{y+1}]')
    a.i(f'v_cvt_pk_bf16_f32 v{PART}, v{PART}, v{PART+1}')
    a.i(f'v_cvt_pk_bf16_f32 v{PART+1}, v{PART+2}, v{PART+3}')
    a.i(f'ds_write_b64 v{hKv}, v[{PART}:{PART+1}] offset:{KVL}')
    a.i('s_waitcnt lgkmcnt(0)')
    while len(wlist) > 36 - NSECOND: dmaW(*wlist.pop(0))
    a.stamp(8)
    a.i('s_barrier')
    a.stamp(9)
    while wlist[0][0] < 14: dmaW(*wlist.pop(0))
    a.stamp(10)
    a.i('s_barrier')
    while wlist: dmaW(*wlist.pop(0))
    a.i('s_barrier')
    a.stamp(11)
    a.i(f's_cmp_lg_u32 s{sWv}, 1')
    a.i('s_cbranch_scc1 L_ns2')
    a.i(f'buffer_store_dword v{hTag}, v{hS2}, s[{sFl}:{sFl+3}], 0 offen sc1')
    a.label('L_ns2')
    a.i(f's_cmp_eq_u32 s{sHas}, 0')
    a.i(f's_cbranch_scc1 L_hfin')
    a.i(f's_cmp_lg_u32 s{sWv}, 0')
    a.i('s_cbranch_scc1 L_nf3')
    poll(a, 'poll2', hP2, hF)
    a.label('L_nf3')
    a.i('s_waitcnt vmcnt(0)')
    a.stamp(12)
    a.i('s_barrier')
    if PF_O: a.i(f'buffer_load_dword v{h[0]}, v{hF2}, s[{sPf}:{sPf+3}], 0 offen {LD}')
    a.label('L_hfin')
    a.stamp_end(0, 14, 3)
    a.label('L_end')
    a.i('s_endpgm')
    k = a.lines.index('L_p2H:')
    a.lines = head_lines + a.lines[:k] + cons_lines + a.lines[k:]
    return a.text() + kd(name, 256, 102), LDS_BYTES

if __name__ == '__main__':
    for x in range(2304): assert (x * 1821) >> 16 == x // 36
    for x in range(1280): assert (x * 3641) >> 16 == x // 18
    for x in range(208): assert (x * 2731) >> 16 == x // 24 and (x * 21846) >> 16 == x // 3
    txt, lds = gen()
    print(len(txt.split('\n')), 'lines')
```
